```python
import torch

def _softmax(x, axis=-1):
    return torch.softmax(x, dim=axis)
def _gelu(x):
    return torch.nn.functional.gelu(x, approximate="tanh")
def _silu(x):
    return torch.nn.functional.silu(x)
def _sigmoid(x):
    return torch.sigmoid(x)
def _layernorm(x, axis=-1, eps=1e-5):
    m = x.mean(dim=axis, keepdim=True)
    v = x.var(dim=axis, keepdim=True, unbiased=False)
    return (x - m) / torch.sqrt(v + eps)
def _scatter_add(tgt, idx, src, axis=0):
    return tgt.clone().index_add_(axis, idx, src)
def _segment_sum(src, seg, n):
    out = torch.zeros((n,) + src.shape[1:], dtype=src.dtype)
    return out.index_add_(0, seg, src)
def _pad(x, pw):
    flat = tuple(v for pair in reversed(pw) for v in pair)
    return torch.nn.functional.pad(x, flat)

kernel_name = 'standalone__w4a16_gemm_dequant__prompt'

def setup_inputs():

    _w = (lambda a: (lambda t: t.to(torch.bfloat16) if t.is_floating_point() else t)(torch.as_tensor(a)))
    B, S, D, F = 1, 2048, 576, 4608
    G = 32 if 32 > 0 else D
    D = (D // G) * G
    ng = D // G
    qw = torch.randint(0, 16, (D, F)).to(torch.int32)
    return {
        "x": _w((lambda *s: torch.randn(*s, dtype=torch.bfloat16) * 0.05)(B, S, D)),
        "qw": _w(qw),
        "scales": _w(torch.abs((lambda *s: torch.randn(*s, dtype=torch.bfloat16) * 0.05)(ng, F)) + 0.01),
        "zeros": _w(torch.full((ng, F), 8.0, dtype=float)),
    }

def reference(x, qw, scales, zeros):
    B, S, D = x.shape
    ng, F = scales.shape
    G = D // ng
    s = (lambda x, n, axis: torch.repeat_interleave(x, n, dim=axis))(scales, G, axis=0)
    z = (lambda x, n, axis: torch.repeat_interleave(x, n, dim=axis))(zeros, G, axis=0)
    w = ((lambda x, dt: x.to(dt))(qw, x.dtype) - z) * s
    return x @ w
```

```python
import sys
NAME = "standalone__w4a16_gemm_dequant__prompt_kernel"

def frame(body, nst, grid=256, block=256, lds=0, vgpr=256, acc=256, xcdmap=True):
    L = []
    A = L.append
    A(f"; @launch grid=({grid},1,1) block=({block},1,1) lds={lds}")
    A('.amdgcn_target "amdgcn-amd-amdhsa--gfx950"')
    A(".text")
    A(f".globl {NAME}")
    A(".p2align 8")
    A(f".type {NAME},@function")
    A(f"{NAME}:")
    A("  s_memrealtime s[40:41]")
    A("  s_memtime s[42:43]")
    A(f"  s_cmp_ge_u32 s2, {grid}")
    A("  s_cbranch_scc1 L_end")
    A("  s_load_dwordx8 s[4:11], s[0:1], 0")
    A("  s_load_dwordx4 s[12:15], s[0:1], 32")
    A("  s_load_dwordx2 s[16:17], s[0:1], 48")
    A("  s_waitcnt lgkmcnt(0)")
    for d, b, n in ((20, 4, 2048*576*2), (24, 6, 576*4608*4), (28, 12, 2048*4608*2), (32, 16, 256 << 20)):
        A(f"  s_mov_b32 s{d}, s{b}")
        A(f"  s_and_b32 s{d+1}, s{b+1}, 0xffff")
        A(f"  s_mov_b32 s{d+2}, {n}")
        A(f"  s_mov_b32 s{d+3}, 0x20000")
    A("  s_and_b32 s36, s2, 7")
    A("  s_lshr_b32 s37, s2, 3")
    A("  s_and_b32 s38, s37, 7")
    A("  s_lshr_b32 s37, s37, 3")
    A("  s_lshl_b32 s36, s36, 2")
    A("  s_add_u32 s39, s36, s37")
    A("  v_and_b32 v1, 63, v0")
    A("  v_lshrrev_b32 v2, 6, v0")
    A("  s_nop 0")
    A("  v_readfirstlane_b32 s3, v2")
    L.extend(body)
    A("  s_waitcnt vmcnt(0) lgkmcnt(0)")
    A(f"  s_memtime s[{42+2*(nst-3)}:{43+2*(nst-3)}]")
    A(f"  s_memrealtime s[{42+2*(nst-2)}:{43+2*(nst-2)}]")
    A("  s_waitcnt lgkmcnt(0)")
    A("  s_cmp_lg_u32 s3, 0")
    A("  s_cbranch_scc1 L_end")
    A(f"  s_mul_i32 s18, s2, {nst*8}")
    A("  v_mov_b32 v2, s18")
    A("  s_mov_b64 exec, 1")
    for i in range(nst):
        A(f"  v_mov_b32 v4, s{40+2*i}")
        A(f"  v_mov_b32 v5, s{41+2*i}")
        A(f"  buffer_store_dwordx2 v[4:5], v2, s[32:35], 0 offen offset:{8*i}")
        A("  s_nop 1")
    A("  s_waitcnt vmcnt(0)")
    A("L_end:")
    A("  s_endpgm")
    A('.section .rodata,"a"')
    A(".p2align 6")
    A(f".amdhsa_kernel {NAME}")
    A(f"  .amdhsa_next_free_vgpr {vgpr}")
    A("  .amdhsa_next_free_sgpr 96")
    A(f"  .amdhsa_accum_offset {acc}")
    A("  .amdhsa_group_segment_fixed_size 0")
    A("  .amdhsa_kernarg_size 56")
    A("  .amdhsa_user_sgpr_count 2")
    A("  .amdhsa_user_sgpr_kernarg_segment_ptr 1")
    A("  .amdhsa_system_sgpr_workgroup_id_x 1")
    A(".end_amdhsa_kernel")
    return "\n".join(L) + "\n"

def stamp(i):
    return [f"  s_memtime s[{42+2*i}:{43+2*i}]"]

def store_body(pat, flags):
    B = []
    A = B.append
    A("  s_lshl_b32 s60, s38, 8")
    A("  s_lshl_b32 s61, s3, 6")
    A("  s_add_u32 s60, s60, s61")
    A("  s_mul_i32 s60, s60, 9216")
    A("  s_mul_i32 s61, s39, 288")
    A("  s_add_u32 s60, s60, s61")
    A("  s_movk_i32 s62, 9216")
    for r in range(4, 8): A(f"  v_mov_b32 v{r}, 0")
    if pat == "A":
        A("  v_and_b32 v2, 15, v1"); A("  v_lshrrev_b32 v3, 4, v1")
        A("  v_mul_lo_u32 v2, v2, s62"); A("  v_lshlrev_b32 v8, 4, v3"); A("  v_add_u32 v8, v8, v2")
        A("  v_lshlrev_b32 v9, 3, v3"); A("  v_add_u32 v9, v9, v2")
        for rb in range(4):
            A(f"  s_add_u32 s63, s60, {rb*16*9216}")
            for cb in range(4):
                A(f"  buffer_store_dwordx4 v[4:7], v8, s[28:31], s63 offen offset:{cb*64} {flags}")
            A(f"  buffer_store_dwordx2 v[4:5], v9, s[28:31], s63 offen offset:256 {flags}")
    elif pat == "B":
        A("  v_lshrrev_b32 v2, 2, v1"); A("  v_and_b32 v3, 3, v1")
        A("  v_mul_lo_u32 v2, v2, s62"); A("  v_lshlrev_b32 v8, 4, v3"); A("  v_add_u32 v8, v8, v2")
        A("  v_lshlrev_b32 v9, 3, v3"); A("  v_add_u32 v9, v9, v2")
        for rb in range(4):
            A(f"  s_add_u32 s63, s60, {rb*16*9216}")
            for cb in range(4):
                A(f"  buffer_store_dwordx4 v[4:7], v8, s[28:31], s63 offen offset:{cb*64} {flags}")
            A(f"  buffer_store_dwordx2 v[4:5], v9, s[28:31], s63 offen offset:256 {flags}")
    elif pat == "C":
        A("  s_mov_b32 s64, 0xE38E38F")
        for i in range(18):
            A(f"  v_add_u32 v2, {i*64}, v1")
            A("  v_mul_hi_u32 v3, v2, s64")
            A("  v_mul_u32_u24 v10, 18, v3")
            A("  v_sub_u32 v10, v2, v10")
            A("  v_mul_lo_u32 v3, v3, s62")
            A(f"  v_lshl_add_u32 v{20+i}, v10, 4, v3")
        B.extend(stamp(1))
        for i in range(18):
            A(f"  buffer_store_dwordx4 v[4:7], v{20+i}, s[28:31], s60 offen {flags}")
    return B

def loadx_body(pat, flags="", reps=1):
    B = []
    A = B.append
    A("  s_lshl_b32 s60, s38, 8")
    A("  s_lshl_b32 s61, s3, 6")
    A("  s_add_u32 s60, s60, s61")
    A("  s_mul_i32 s60, s60, 1152")
    A("  s_movk_i32 s62, 1152")
    if pat == "A":
        A("  v_and_b32 v2, 15, v1"); A("  v_lshrrev_b32 v3, 4, v1")
        A("  v_mul_lo_u32 v2, v2, s62"); A("  v_lshlrev_b32 v8, 4, v3"); A("  v_add_u32 v8, v8, v2")
    elif pat in ("B", "BL"):
        A("  v_lshrrev_b32 v2, 2, v1"); A("  v_and_b32 v3, 3, v1")
        A("  v_mul_lo_u32 v2, v2, s62"); A("  v_lshlrev_b32 v8, 4, v3"); A("  v_add_u32 v8, v8, v2")
    elif pat in ("D", "DL"):
        A("  v_lshrrev_b32 v2, 3, v1"); A("  v_and_b32 v3, 7, v1")
        A("  v_mul_lo_u32 v2, v2, s62"); A("  v_lshlrev_b32 v8, 4, v3"); A("  v_add_u32 v8, v8, v2")
    elif pat in ("C", "CL"):
        A("  v_lshlrev_b32 v8, 4, v1")
    A("  s_lshl_b32 s65, s3, 14")
    for rep in range(reps):
        if rep: B.extend(["  s_waitcnt vmcnt(0)"] + stamp(rep))
        n = 0
        if pat in ("A", "B", "BL"):
            order = [(ks, rb) for ks in range(18) for rb in range(4)]
            for ks, rb in order:
                A(f"  s_add_u32 s63, s60, {rb*16*1152 + ks*64}")
                if pat == "BL":
                    A(f"  s_add_u32 m0, s65, {(n%16)*1024}")
                    A("  s_nop 0")
                    A(f"  buffer_load_dwordx4 v8, s[20:23], s63 offen lds {flags}")
                else:
                    r = 16 + (n % 56) * 4
                    A(f"  buffer_load_dwordx4 v[{r}:{r+3}], v8, s[20:23], s63 offen {flags}")
                n += 1
        elif pat in ("D", "DL"):
            for ks in range(9):
                for rb in range(8):
                    A(f"  s_add_u32 s63, s60, {rb*8*1152 + ks*128}")
                    if pat == "DL":
                        A(f"  s_add_u32 m0, s65, {(n%16)*1024}")
                        A("  s_nop 0")
                        A(f"  buffer_load_dwordx4 v8, s[20:23], s63 offen lds {flags}")
                    else:
                        r = 16 + (n % 56) * 4
                        A(f"  buffer_load_dwordx4 v[{r}:{r+3}], v8, s[20:23], s63 offen {flags}")
                    n += 1
        else:
            for i in range(72):
                A(f"  s_add_u32 s63, s60, {i*1024}")
                if pat == "CL":
                    A(f"  s_add_u32 m0, s65, {(n%16)*1024}")
                    A("  s_nop 0")
                    A(f"  buffer_load_dwordx4 v8, s[20:23], s63 offen lds {flags}")
                else:
                    r = 16 + (n % 56) * 4
                    A(f"  buffer_load_dwordx4 v[{r}:{r+3}], v8, s[20:23], s63 offen {flags}")
                n += 1
    return B

def loadq_body(flags="", reps=1):
    B = []
    A = B.append
    A("  s_mul_i32 s60, s3, %d" % (144*18432))
    A("  s_mul_i32 s61, s39, 576")
    A("  s_add_u32 s60, s60, s61")
    A("  s_mov_b32 s62, 18432")
    A("  s_mov_b32 s64, 0x71C71C8")
    for i in range(9):
        A(f"  v_add_u32 v2, {i*64}, v1")
        A("  v_mul_hi_u32 v3, v2, s64")
        A("  v_mul_u32_u24 v10, 36, v3")
        A("  v_sub_u32 v10, v2, v10")
        A("  v_mul_lo_u32 v3, v3, s62")
        A(f"  v_lshl_add_u32 v{240+i}, v10, 4, v3")
    for rep in range(reps):
        if rep: B.extend(["  s_waitcnt vmcnt(0)"] + stamp(rep))
        n = 0
        for blk in range(9):
            A(f"  s_add_u32 s63, s60, {blk*16*18432}")
            for i in range(9):
                r = 16 + (n % 56) * 4
                A(f"  buffer_load_dwordx4 v[{r}:{r+3}], v{240+i}, s[24:27], s63 offen {flags}")
                n += 1
    return B

if __name__ == "__main__":
    out = {}
    out["mb_empty"] = frame([], 4)
    for pat in "ABC":
        for fn, fl in (("p", ""), ("sc1", "sc1"), ("sc01", "sc0 sc1"), ("nt", "nt")):
            out[f"mb_st_{pat}_{fn}"] = frame(store_body(pat, fl), 5)
    for pat in ("A", "B", "C", "D", "BL", "CL", "DL"):
        out[f"mb_ldx_{pat}"] = frame(loadx_body(pat, reps=3), 6, lds=65536)
    out["mb_ldq"] = frame(loadq_body(reps=3), 6)
    for k, v in out.items():
        open(k + ".s", "w").write(v)
    print(" ".join(out))
```

```python
from mb import frame, stamp
def body(pat, reps=4):
    B=[]; A=B.append
    A("  s_lshl_b32 s60, s39, 9"); A("  s_lshl_b32 s61, s3, 7"); A("  s_add_u32 s60, s60, s61")
    A("  s_mov_b32 s62, 18432")
    if pat=="x2":
        A("  v_and_b32 v2, 15, v1"); A("  v_lshrrev_b32 v3, 4, v1"); A("  v_lshlrev_b32 v3, 4, v3")
        A("  v_mul_lo_u32 v3, v3, s62"); A("  v_lshl_add_u32 v8, v2, 3, v3")
        n=144; w=2; rows=lambda i: (i//16)*64+(i%16)
    elif pat=="x4":
        A("  v_and_b32 v2, 7, v1"); A("  v_lshrrev_b32 v3, 3, v1"); A("  v_lshlrev_b32 v3, 3, v3")
        A("  v_mul_lo_u32 v3, v3, s62"); A("  v_lshl_add_u32 v8, v2, 4, v3")
        n=72; w=4; rows=lambda i: (i//8)*64+(i%8)
    elif pat=="x1":
        A("  v_and_b32 v2, 31, v1"); A("  v_lshrrev_b32 v3, 5, v1"); A("  v_lshlrev_b32 v3, 3, v3")
        A("  v_mul_lo_u32 v3, v3, s62"); A("  v_lshl_add_u32 v8, v2, 2, v3")
        n=288; w=1; rows=lambda i: (i//8)*16+(i%8)
    elif pat=="x4h":
        A("  v_and_b32 v2, 3, v1"); A("  v_bfe_u32 v3, v1, 4, 1"); A("  v_lshl_add_u32 v2, v3, 2, v2")
        A("  v_bfe_u32 v3, v1, 2, 2"); A("  v_bfe_u32 v4, v1, 5, 1"); A("  v_lshl_add_u32 v3, v4, 2, v3"); A("  v_lshlrev_b32 v3, 3, v3")
        A("  v_mul_lo_u32 v3, v3, s62"); A("  v_lshl_add_u32 v8, v2, 4, v3")
        n=72; w=4; rows=lambda i: (i//8)*64+(i%8)
    elif pat=="x3":
        pass
    for rep in range(reps):
        if rep: B.extend(["  s_waitcnt vmcnt(0)"]+stamp(rep))
        for i in range(n):
            A(f"  s_add_u32 s63, s60, {rows(i)*18432}")
            r=16+(i%56)*4
            if w==1: A(f"  buffer_load_dword v{r}, v8, s[24:27], s63 offen")
            else: A(f"  buffer_load_dwordx{w} v[{r}:{r+w-1}], v8, s[24:27], s63 offen")
    return B
names=[]
for p in ("x2","x4","x1","x4h"):
    open(f"mb3_{p}.s","w").write(frame(body(p),7))
    names.append(f"mb3_{p}.s")
print(" ".join(names))
```

```python
import sys, argparse
NAME = "standalone__w4a16_gemm_dequant__prompt_kernel"
INF = 10 ** 9

def rl(p, b, n): return [f"{p}{b+i}" for i in range(n)]
def rg(p, b, n): return f"{p}[{b}:{b+n-1}]" if n > 1 else f"{p}{b}"

class Op:
    cnt = 0
    def __init__(s, kind, text, rd=(), wr=(), pre=None, lds=None, cls=None, e=0, dl=INF, prio=None, after=(), tag=None, grp=None):
        s.kind = kind; s.text = text; s.rd = list(rd); s.wr = list(wr); s.pre = pre; s.lds = lds; s.cls = cls
        s.e = e; s.dl = dl; s.prio = dl if prio is None else prio; s.after = list(after); s.tag = tag; s.grp = grp
        s.gap = None; s.needs = []; s.id = Op.cnt; Op.cnt += 1

class Gap:
    def __init__(s, mfma=None, free=None, bar=False, name=""):
        s.mfma = mfma; s.free = free; s.bar = bar; s.ops = []; s.name = name; s.stamp = False; s.label = None
        s.fragwait = False

def gen(R=8, rotA=4, rotB=2, D=3, NA=5, b1=8, bpos=20, nb1=2, vmsp=2, dmasp=4, stamps=False, st="", lw="", lx="", lx2="",
        nacc=3, skip18=True, verbose=False, recvd=5, p1per=1, w2all=0, w2sp=2, drop=''):
    NT, NST = 19, 9
    NS = NT - R
    assert R % 2 == 0 and 4 <= R <= 10
    RING = 24576
    SLOT0 = 53248
    def ringbuf(s): return RING + (s % 3) * R * 2048
    def slot(n): return SLOT0 + ((n + 2) % 6) * 18432
    assert RING + 3 * R * 2048 <= slot(0)
    S_X, S_W, S_S, S_Z, S_O = 20, 24, 28, 32, 36
    S_WOFS, S_XOFS, S_P2, S_D1, S_D9 = 40, 48, 56, 66, 75
    S_M0X, S_M0W, S_C24, S_MSK, S_OS, S_NTL = 84, 85, 86, 87, 88, 89
    STREGS = [90, 92, 94, 96, 98, 100, 4, 6, 8, 10, 12, 14, 66, 68]
    V_W, V_X, V_X2, V_R, V_O0, V_O1, V_TR, V_TW, V_E, V_S = 2, 3, 4, 5, 8, 9, 10, 11, 12, 13
    V_SZ, V_RAW, V_F, V_T = 16, 32, 96, 240
    V_EW = 0
    def raw(p, j): return V_RAW + p * 32 + j * 4
    def F(i, u): return V_F + (i * 4 + u) * 4
    def acc1(t, u): return (t * 4 + u) * 4
    A_FR = 16 * R
    def fr(f): return A_FR + (f % NA) * 4
    def acc2(n, u): return V_RAW + (n % nacc) * 16 + u * 4
    V_RECV = V_RAW + 48
    nst = [0]
    def stamp_text(real=False):
        r = STREGS[nst[0]]; nst[0] += 1
        return f"s_memrealtime s[{r}:{r+1}]" if real else f"s_memtime s[{r}:{r+1}]"

    G = []
    def S(t): return Op("S", t)
    def V(t, rd=(), wr=(), **k): return Op("V", t, rd, wr, **k)
    def fixed(ops, name="", bar=False):
        g = Gap(free="fixed", name=name, bar=bar); g.ops = list(ops)
        for o in g.ops: o.gap = len(G)
        G.append(g); return g
    def txt(lines):
        out = []
        for x in lines:
            out.append(Op("V" if x.startswith("v_") else "S", x))
        return out

    def ldW(i, j):
        r = raw(i & 1, j)
        so = "0" if j == 0 else f"s{S_WOFS+j}"
        return Op("VM", f"buffer_load_dwordx4 {rg('v',r,4)}, v{V_W}, s[{S_W}:{S_W+3}], {so} offen {lw}".rstrip(),
                  rd=[f"v{V_W}"], wr=rl("v", r, 4), cls="VM", tag=("W", i, j))
    def ldSZ(m):
        r = V_T + 4 * m
        return [Op("VM", f"buffer_load_dwordx2 {rg('v',r,2)}, v{V_S+m}, s[{S_S}:{S_S+3}], 0 offen", rd=[f"v{V_S+m}"], wr=rl("v", r, 2), cls="VM"),
                Op("VM", f"buffer_load_dwordx2 {rg('v',r+2,2)}, v{V_S+m}, s[{S_Z}:{S_Z+3}], 0 offen", rd=[f"v{V_S+m}"], wr=rl("v", r + 2, 2), cls="VM")]
    def ldX(s, e):
        so = f"s{S_XOFS+e}" if e else "0"
        b = ringbuf(s)
        return Op("VM", f"buffer_load_dwordx4 v{V_X}, s[{S_X}:{S_X+3}], {so} offen offset:{(e&3)*1024} {lx} lds".rstrip(),
                  rd=[f"v{V_X}"], pre=("m0", f"s_add_u32 m0, s{S_M0X}, {b + (e>>2)*4096}"), lds=("w", b, b + R * 2048, False),
                  cls="DMA", tag=("X", s, e), grp=("X", s))
    def ldP(p, e):
        b = slot(2 * p) + e * 4096
        return Op("VM", f"buffer_load_dwordx4 v{V_X2}, s[{S_X}:{S_X+3}], s{S_P2+e} offen {lx2} lds".rstrip(),
                  rd=[f"v{V_X2}"], pre=("m0", f"s_add_u32 m0, s{S_M0W}, {b}"), lds=("w", b, b + 4096, False),
                  cls="DMA", tag=("P", p, e), grp=("P", p))
    def advW(i): return V(f"v_lshl_add_u32 v{V_W}, s{S_D9+i}, 17, v{V_W}", [f"v{V_W}"], [f"v{V_W}"])
    def advX(i): return V(f"v_lshl_add_u32 v{V_X}, s{S_D1+i}, 7, v{V_X}", [f"v{V_X}"], [f"v{V_X}"])
    def prep(m, t):
        r = V_T + 4 * m
        o = []
        for h in range(2):
            o.append(V(f"v_lshlrev_b32 v{t+2*h}, 16, v{r+h}", [f"v{r+h}"], [f"v{t+2*h}"]))
            o.append(V(f"v_and_b32 v{t+2*h+1}, s{S_MSK}, v{r+h}", [f"v{r+h}"], [f"v{t+2*h+1}"]))
        for h in range(2):
            o.append(V(f"v_lshlrev_b32 v{t+4+2*h}, 16, v{r+2+h}", [f"v{r+2+h}"], [f"v{t+4+2*h}"]))
            o.append(V(f"v_and_b32 v{t+4+2*h+1}, s{S_MSK}, v{r+2+h}", [f"v{r+2+h}"], [f"v{t+4+2*h+1}"]))
        for u in range(4):
            o.append(V(f"v_mul_f32_e64 v{t+4+u}, -v{t+4+u}, v{t+u}", [f"v{t+4+u}", f"v{t+u}"], [f"v{t+4+u}"]))
        for u in range(4):
            o.append(V(f"v_mul_f32 v{t+u}, s{S_C24}, v{t+u}", [f"v{t+u}"], [f"v{t+u}"]))
        o.append(Op("DS", f"ds_write_b128 v{V_TW}, {rg('v',t,4)} offset:{m*2048}", rd=[f"v{V_TW}"] + rl("v", t, 4), lds=("w", 0, 24576, True)))
        o.append(Op("DS", f"ds_write_b128 v{V_TW}, {rg('v',t+4,4)} offset:{m*2048+256}", rd=[f"v{V_TW}"] + rl("v", t + 4, 4), lds=("w", 0, 24576, True)))
        return o
    def rdSZ(i):
        z = V_SZ + (i & 1) * 8
        return [Op("DS", f"ds_read_b128 {rg('v',z,4)}, v{V_TR} offset:{i*512}", rd=[f"v{V_TR}"], wr=rl("v", z, 4), lds=("r", 0, 24576, True)),
                Op("DS", f"ds_read_b128 {rg('v',z+4,4)}, v{V_TR} offset:{i*512+256}", rd=[f"v{V_TR}"], wr=rl("v", z + 4, 4), lds=("r", 0, 24576, True))]
    def deq(i, jj):
        p = i & 1; z = V_SZ + p * 8
        fm = []; cv = []
        for j in (2 * jj, 2 * jj + 1):
            for u in range(4):
                r = raw(p, j) + u
                fm.append(V(f"v_fma_mix_f32 v{r}, v{r}, v{z+u}, v{z+4+u} op_sel_hi:[1,0,0]", [f"v{r}", f"v{z+u}", f"v{z+4+u}"], [f"v{r}"]))
        for u in range(4):
            a, b = raw(p, 2 * jj) + u, raw(p, 2 * jj + 1) + u
            cv.append(V(f"v_cvt_pk_bf16_f32 v{F(i,u)+jj}, v{a}, v{b}", [f"v{a}", f"v{b}"], [f"v{F(i,u)+jj}"]))
        return fm, cv
    def rdF(f, addr):
        w, off = divmod(addr, 65536)
        a = fr(f)
        return Op("DS", f"ds_read_b128 {rg('a',a,4)}, v{V_R+w} offset:{off}", rd=[f"v{V_R+w}"], wr=rl("a", a, 4), lds=("r", addr, addr + 2048, False), tag=("F", f))
    def mfma(dp, d, f, fb, first):
        dd = rg(dp, d, 4)
        return Op("M", f"v_mfma_f32_16x16x32_bf16 {dd}, {rg('a',fr(f),4)}, {rg('v',fb,4)}, {'0' if first else dd}",
                  rd=rl("a", fr(f), 4) + rl("v", fb, 4) + ([] if first else rl(dp, d, 4)), wr=rl(dp, d, 4))

    P = []
    if stamps: P += [S(stamp_text(True)), S(stamp_text())]
    P += txt([
        "s_cmp_ge_u32 s2, 252",
        "s_cbranch_scc1 L_end",
        "s_load_dwordx8 s[4:11], s[0:1], 0",
        "s_load_dwordx2 s[12:13], s[0:1], 32"])
    if stamps: P += txt(["s_load_dwordx2 s[16:17], s[0:1], 48"])
    P += txt([
        "v_lshrrev_b32 v16, 6, v0",
        "v_and_b32 v1, 63, v0",
        "v_readfirstlane_b32 s3, v16",
        "s_and_b32 s14, s2, 7",
        "s_lshr_b32 s15, s2, 3",
        "s_lshl_b32 s18, s14, 2",
        "s_and_b32 s19, s15, 3",
        "s_add_u32 s18, s18, s19",
        "s_lshr_b32 s19, s15, 2",
        "s_and_b32 s40, s14, 3",
        "s_add_u32 s40, s40, 32",
        "s_and_b32 s41, s14, 4",
        "s_add_u32 s41, s41, s15",
        "s_sub_u32 s41, s41, 28",
        "s_cmp_ge_u32 s15, 28",
        "s_cselect_b32 s18, s40, s18",
        "s_cselect_b32 s15, s41, s19",
        f"s_mul_i32 s40, s15, {rotA}",
        f"s_mul_i32 s41, s18, {rotB}",
        "s_add_u32 s40, s40, s41",
        "s_mul_i32 s41, s40, 57",
        "s_lshr_b32 s41, s41, 9",
        "s_mul_i32 s41, s41, 9",
        "s_sub_u32 s19, s40, s41",
        "s_lshr_b32 s64, s3, 1",
        "s_and_b32 s65, s3, 1",
        "s_lshl_b32 s18, s18, 7",
        "s_lshl_b32 s40, s65, 6",
        "s_add_u32 s18, s18, s40",
        "v_and_b32 v16, 15, v1",
        "v_lshrrev_b32 v17, 4, v1",
        f"s_mov_b32 s{S_WOFS+1}, 18432",
        "s_mul_i32 s40, s64, 9216",
        "s_lshl1_add_u32 s40, s18, s40",
        "v_lshl_add_u32 v18, v16, 3, s40",
        "v_add_u32 v19, s19, v17",
        "v_add_u32 v20, -9, v19",
        "v_min_u32 v20, v19, v20",
        f"v_mad_u32_u24 v{V_S}, v20, s{S_WOFS+1}, v18",
        "s_mul_i32 s42, s19, 1179648",
        "s_mul_i32 s43, s64, 589824",
        "s_lshl2_add_u32 s43, s18, s43",
        "s_add_u32 s42, s42, s43",
        f"v_mul_u32_u24 v{V_W}, 147456, v17",
        f"v_lshl_add_u32 v{V_W}, v16, 4, v{V_W}",
        f"v_add_u32 v{V_W}, s42, v{V_W}",
        f"s_mov_b32 s{S_W+2}, {576*4608*4}",
        f"s_mov_b32 s{S_S+2}, {18*4608*2}",
        f"s_mov_b32 s{S_Z+2}, {18*4608*2}",
        f"s_mov_b32 s{S_W+3}, 0x20000",
        f"s_mov_b32 s{S_S+3}, 0x20000",
        f"s_mov_b32 s{S_Z+3}, 0x20000"])
    P += txt([f"s_mov_b32 s{S_WOFS+k}, {k*18432}" for k in range(2, 8)])
    P += txt([
        "s_mul_i32 s14, s15, 18",
        "s_min_u32 s40, s15, 2",
        "s_add_u32 s14, s14, s40",
        "s_cmp_lt_u32 s15, 2",
        f"s_cselect_b32 s{S_NTL}, 19, 18",
        "v_lshrrev_b32 v21, 3, v1",
        "v_lshrrev_b32 v22, 4, v1",
        "v_and_b32 v22, 2, v22",
        "v_lshrrev_b32 v23, 2, v1",
        "v_and_b32 v23, 4, v23",
        "v_and_b32 v24, 7, v1",
        "v_or3_b32 v22, v22, v23, 0",
        "v_xor_b32 v22, v22, v24",
        "v_mul_u32_u24 v21, 1152, v21",
        "v_lshl_add_u32 v21, v22, 4, v21",
        f"s_mul_i32 s40, s3, {(R//2)*9216}",
        "s_lshl_b32 s15, s19, 7",
        "s_add_u32 s40, s40, s15",
        f"v_add_u32 v{V_X}, s40, v21",
        f"s_mul_i32 s{S_M0X}, s3, {(R//2)*1024}",
        f"s_mul_i32 s{S_X+2}, s{S_NTL}, 18432",
        f"s_mov_b32 s{S_X+3}, 0x20000",
        "s_mul_i32 s15, s14, 18432",
        f"s_cmp_eq_u32 s19, 8",
        f"s_cselect_b32 s{S_D1+1}, -8, 1",
        f"s_cselect_b32 s{S_D9+1}, -72, 9"])
    P += txt([f"s_mov_b32 s{S_XOFS+e}, {e*9216-(e&3)*1024}" for e in range(1, R // 2)])
    P += txt([
        "s_waitcnt lgkmcnt(0)",
        f"s_mov_b32 s{S_S}, s8", f"s_and_b32 s{S_S+1}, s9, 0xffff",
        f"s_mov_b32 s{S_Z}, s10", f"s_and_b32 s{S_Z+1}, s11, 0xffff",
        f"s_mov_b32 s{S_W}, s6", f"s_and_b32 s{S_W+1}, s7, 0xffff"])
    P += ldSZ(0)
    P += [ldW(0, j) for j in range(8)]
    P += txt([f"s_add_u32 s{S_X}, s4, s15", f"s_addc_u32 s{S_X+1}, s5, 0", f"s_and_b32 s{S_X+1}, s{S_X+1}, 0xffff"])
    P += [ldX(0, e) for e in range(R // 2)]
    P += [advW(1), advX(1)]
    P += [ldW(1, j) for j in range(8)]
    P += [ldX(1, e) for e in range(R // 2)]
    for m in (1, 2):
        P += txt([f"v_add_u32 v19, 4, v19", "v_add_u32 v20, -9, v19", "v_min_u32 v20, v19, v20",
                  f"v_mad_u32_u24 v{V_S+m}, v20, s{S_WOFS+1}, v18"])
        P += ldSZ(m)
    if stamps: P += [S(stamp_text())]
    P += txt([
        "s_mul_i32 s15, s14, 147456",
        f"s_add_u32 s{S_O}, s12, s15", f"s_addc_u32 s{S_O+1}, s13, 0", f"s_and_b32 s{S_O+1}, s{S_O+1}, 0xffff",
        f"s_mul_i32 s{S_O+2}, s{S_NTL}, 147456",
        f"s_mov_b32 s{S_O+3}, 0x20000",
        f"s_mov_b32 s{S_C24}, 0x4b800000", f"s_mov_b32 s{S_MSK}, 0xffff0000",
        f"s_lshl_b32 s{S_M0W}, s3, 10",
        "s_mul_i32 s40, s3, 6144",
        f"v_lshl_add_u32 v{V_TR}, v16, 4, s40",
        f"v_lshl_add_u32 v{V_TW}, v17, 9, v{V_TR}",
        "s_mul_i32 s40, s65, 9216",
        f"s_add_u32 s40, s40, {R*18432}",
        f"v_add_u32 v{V_X2}, s40, v21",
        "s_mul_i32 s40, s64, 18432",
        "s_lshl1_add_u32 s40, s18, s40",
        f"v_mul_u32_u24 v{V_O0}, 36864, v17",
        f"v_lshl_add_u32 v{V_O0}, v16, 3, v{V_O0}",
        f"v_add_u32 v{V_O0}, s40, v{V_O0}",
        f"v_add_u32 v{V_O1}, 9216, v{V_O0}",
        f"s_xor_b32 s40, s{S_M0W}, 2048",
        f"v_lshl_add_u32 v{V_E}, v1, 2, s40",
        f"v_xor_b32 v{V_EW}, 0x800, v{V_E}",
        "s_lshl_b32 s40, s64, 1",
        "v_xor_b32 v22, s40, v16",
        "v_lshrrev_b32 v23, 1, v22",
        "v_and_b32 v23, 2, v23",
        "v_lshlrev_b32 v24, 1, v22",
        "v_and_b32 v24, 4, v24",
        "s_lshl_b32 s40, s64, 2",
        "v_add_u32 v25, s40, v17",
        "v_xor_b32 v23, v23, v24",
        "v_xor_b32 v23, v23, v25",
        "v_lshlrev_b32 v23, 4, v23",
        f"v_lshl_add_u32 v{V_R}, v22, 7, v23",
        f"v_add_u32 v{V_R+1}, 0x10000, v{V_R}",
        f"v_add_u32 v{V_R+2}, 0x20000, v{V_R}"])
    for i in range(2, NST):
        P += txt([f"s_cmp_eq_u32 s19, {9-i}", f"s_cselect_b32 s{S_D1+i}, -8, 1", f"s_cselect_b32 s{S_D9+i}, -72, 9"])
    P += txt(["s_add_u32 s14, s19, s64"])
    for e in range(9):
        r = S_P2 + e
        if e == 4:
            P += txt(["s_add_u32 s15, s19, 8", "s_sub_u32 s40, s19, 1", "s_min_u32 s15, s15, s40", "s_lshl_b32 s15, s15, 7",
                      "s_lshl_b32 s40, s19, 7", "s_add_u32 s40, s40, 18432", "s_cmp_eq_u32 s64, 0", f"s_cselect_b32 s{S_OS}, s15, s40"])
            continue
        c = 2 * e if e < 4 else 2 * e - 9
        P += txt([f"s_add_u32 s15, s14, {c}", f"s_sub_u32 s40, s15, 9", "s_min_u32 s15, s15, s40"])
        if e < 4: P += txt([f"s_lshl_b32 s{r}, s15, 7"])
        else: P += txt(["s_lshl_b32 s15, s15, 7", f"s_add_u32 s{r}, s15, 18432"])
    P += txt([f"s_mov_b32 s{S_P2+4}, s{S_OS}"])
    P += prep(0, F(8, 0))
    P += rdSZ(0) + rdSZ(1)
    P.append(advW(2))
    first = True
    lastW = None
    for jj in range(4):
        fm, cv = deq(0, jj)
        P += fm
        if first and stamps: P += [S(stamp_text())]
        first = False
        P += cv + [ldW(2, 2 * jj), ldW(2, 2 * jj + 1)]
        lastW = P[-1]
    lastX = [o for o in P if o.tag == ("X", 1, R // 2 - 1)][0]
    fixed(P, "prologue")

    ops = []
    gB1 = {}; start = {}; flex = {}
    g = Gap(free="open", bar=True, name="B0"); gB1[0] = len(G); G.append(g)
    if stamps: g.stamp = True
    firstuse = {}; lastuse = {}; lastM = {}
    for s in range(NST):
        start[s] = len(G)
        for t in range(R):
            f = s * R + t
            for u in range(4):
                gp = Gap(mfma("a", acc1(t, u), f, F(s, u), s == 0), name=f"s{s}t{t}u{u}")
                gp.fragwait = (u == 3)
                if u == 0: firstuse[f] = len(G)
                lastuse[f] = len(G)
                lastM[("a", t, u)] = len(G)
                G.append(gp)
        if stamps and s in (4, 8): G[start[s]].stamp = True
        if s < NST - 1:
            flex[s] = len(G); G.append(Gap(free="flex", name=f"flex{s}"))
            gB1[s + 1] = flex[s] - b1
            G[gB1[s + 1]].bar = True
    st2 = {}; gB2 = {}
    for n in range(NS):
        st2[n] = len(G)
        for k in range(9):
            f = 9 * R + 9 * n + k
            for u in range(4):
                gp = Gap(mfma("v", acc2(n, u), f, F(k, u), k == 0), name=f"n{n}k{k}u{u}")
                gp.fragwait = (u == 3)
                if u == 0: firstuse[f] = len(G)
                lastuse[f] = len(G)
                lastM[("v", n, u)] = len(G)
                G.append(gp)
        gB2[n] = st2[n] + bpos
        G[gB2[n]].bar = True
    if stamps:
        G[st2[0]].stamp = True; G[st2[NS // 2]].stamp = True
    tail0 = len(G); G.append(Gap(free="open", name="tail0"))
    if stamps: G[tail0].stamp = True
    gB2[NS] = len(G); G.append(Gap(free="open", bar=True, name="tail1"))
    END = len(G) - 1

    NF = 9 * R + 9 * NS
    prevF = None
    for f in range(NF):
        if f < 9 * R:
            s, t = divmod(f, R); addr = ringbuf(s) + t * 2048; gb = gB1[s]
            nextb = gB1.get(s + 1, INF)
        else:
            n, k = divmod(f - 9 * R, 9); addr = slot(n) + k * 2048
            gb = gB1[8] if n == 0 else gB2[n - 1]
            nextb = INF
        o = rdF(f, addr)
        e = max(gb, firstuse[f] - 4 * D)
        if f >= NA: e = max(e, lastuse[f - NA])
        o.dl = min(firstuse[f] - 1, nextb - 3)
        if f < D: e = gb
        o.e = min(e, o.dl)
        assert f < NA or o.e >= lastuse[f - NA], (f, o.e, lastuse[f - NA])
        o.prio = -1000 + f
        if prevF: o.after.append((prevF, 0))
        prevF = o
        ops.append(o)
    tabw = []
    for m, tmp in ((1, F(7, 0)), (2, F(6, 0))):
        pp = prep(m, tmp)
        for k, o in enumerate(pp):
            o.e = start[m - 1] + (4 * R - 24); o.dl = flex[m - 1]; o.prio = o.dl + 0.5
            if k: o.after.append((pp[k - 1], 0))
        tabw.append(pp[-1]); ops += pp
    lastfm = {}
    szr = {}
    for i in range(1, NST):
        chain = []
        if i + 2 < NST:
            a = advW(i + 2); a.after.append((lastW, 0)); chain.append(a)
        for jj in range(4):
            fm, cv = deq(i, jj)
            chain += fm + cv
            lastfm[i] = fm[-1]
            if i + 2 < NST:
                chain += [ldW(i + 2, 2 * jj), ldW(i + 2, 2 * jj + 1)]
                lastW = chain[-1]
        prev = None
        for k, o in enumerate(chain):
            o.e = start[i - 1]; o.dl = flex[i - 1]; o.prio = o.dl
            if o.kind == "VM":
                o.after.append((prev, 0)); o.prio = o.dl - 0.5
                if chain[k - 1].kind == "VM": o.after.append((chain[k - 1], 0))
            else:
                if prev: o.after.append((prev, 0))
                prev = o
            if i in szr and o.kind == "V":
                for z in szr[i]: o.after.append((z, 4))
        ops += chain
        if i + 1 < NST:
            z = rdSZ(i + 1)
            for o in z:
                o.e = start[i - 1] + 4; o.dl = flex[i - 1]; o.prio = start[i - 1] + 2 * R
                if i - 1 in lastfm: o.after.append((lastfm[i - 1], 0))
                if i + 1 >= 4: o.after.append((tabw[(i + 1) // 4 - 1], 0))
            szr[i + 1] = z; ops += z
    for s in range(2, NST):
        a = advX(s); a.e = gB1[s - 2] - 2; a.after.append((lastX, 0)); a.prio = -500; a.dl = gB1[s - 1]
        ops.append(a); prev = a
        for e in range(R // 2):
            o = ldX(s, e); o.e = gB1[s - 2]; o.dl = gB1[s - 1] - 1; o.prio = -500; o.after.append((prev, 0)); prev = o
            ops.append(o)
        lastX = prev
    NPAIR = (NS + 1) // 2
    prev = lastX
    for p in range(NPAIR):
        if p:
            a = V(f"v_add_u32 v{V_X2}, 36864, v{V_X2}", [f"v{V_X2}"], [f"v{V_X2}"]); a.after.append((prev, 0)); a.prio = -400
            ops.append(a); prev = a
        ne = 9 if 2 * p + 1 < NS else 5
        for e in range(ne):
            o = ldP(p, e)
            if p == 0: o.e = start[6]
            elif p == 1: o.e = start[7]
            else: o.e = gB2[max(0, 2 * p - 5 if e < 4 else 2 * p - 4)]
            need = 2 * p if e <= 4 else 2 * p + 1
            o.dl = (gB1[8] if need == 0 else gB2[need - 1]) - 1
            o.prio = o.e - 300
            o.after.append((prev, 0)); prev = o
            if e == 0 and p: ops[-1].e = o.e - 2
            ops.append(o)
    units = []
    t1 = 0
    for j in range(NS + 1):
        if j >= 1: units.append(("v", j - 1, j))
        k = nb1 if j == 0 else p1per
        for _ in range(k):
            if t1 < R: units.append(("a", t1, j)); t1 += 1
    assert t1 == R
    rdone = {}; lastcv = {}; lastadd = {}; lastst = {}
    na = 0
    for q, (kp, idx, j) in enumerate(units):
        EB = (q % 6) * 8192
        base = acc1(idx, 0) if kp == "a" else acc2(idx, 0)
        tile = idx if kp == "a" else R + idx
        snd = []
        w2 = (kp == "a") or w2all
        for k in range(0, 8, 2 if w2 else 1):
            u, r = k >> 1, 2 + (k & 1)
            off = EB + (k >> 2) * 4096 + (k & 3) * 256
            ld = ("w", EB + (k >> 2) * 4096, EB + (k >> 2) * 4096 + 4096, False)
            x = base + 4 * u + r
            if w2:
                o = Op("DS", f"ds_write2st64_b32 v{V_EW}, {kp}{x}, {kp}{x+1} offset0:{off//256} offset1:{off//256+1}", rd=[f"v{V_EW}"] + rl(kp, x, 2),
                       lds=ld, cls="AT", grp=("E", q))
            else:
                o = Op("DS", f"ds_write_addtid_b32 {kp}{x} offset:{off}", rd=[f"{kp}{x}"], pre=("m0", f"s_mov_b32 m0, s{S_M0W}"),
                       lds=ld, cls="AT", grp=("E", q))
            o.e = max(lastM[(kp, idx, u)] + 4, gB1[8] if j == 0 else gB2[j - 1])
            o.e = min(o.e, tail0)
            o.dl = gB2[j] - (1 if j == NS else 2); o.prio = o.dl - 100 + (0 if kp == "v" else 1)
            if snd: o.after.append((snd[-1], w2sp if w2 else 0))
            snd.append(o)
        ops += snd
        rv = V_RECV + (q & 1) * 8
        dlf = st2.get(idx + nacc, END + 1) - 1 if kp == "v" else END
        dlf = min(dlf, gB2.get(j + 2, END))
        rcv = []
        for k in range(0, 8, 2):
            o0 = (EB + (k >> 2) * 4096 + (k & 3) * 256) // 256
            o = Op("DS", f"ds_read2st64_b32 {rg('v',rv+k,2)}, v{V_E} offset0:{o0} offset1:{o0+1}", rd=[f"v{V_E}"], wr=rl("v", rv + k, 2),
                   lds=("r", EB + (k >> 2) * 4096, EB + (k >> 2) * 4096 + 4096, False))
            o.e = gB2[j]; o.dl = min(dlf, gB2.get(j + 1, END + 3) - 3); o.prio = gB2[j] + q * 0.01
            if q - 2 in lastcv: o.after.append((lastcv[q - 2], 0))
            rcv.append(o)
        ops += rcv
        kept = []
        if kp == "a":
            kb = V_SZ + (na & 1) * 8
            for u in range(4):
                for r in range(2):
                    o = V(f"v_accvgpr_read_b32 v{kb+2*u+r}, a{base+4*u+r}", [f"a{base+4*u+r}"], [f"v{kb+2*u+r}"])
                    o.e = max(lastM[(kp, idx, u)] + 4, gB2[j] - 12); o.dl = dlf; o.prio = gB2[j] + 2 + q * 0.01
                    if ("a", na - 2) in lastadd: o.after.append((lastadd[("a", na - 2)], 0))
                    kept.append(o)
            ops += kept
        adds = []
        for u in range(4):
            src = V_SZ + (na & 1) * 8 + 2 * u if kp == "a" else base + 4 * u
            o = V(f"v_pk_add_f32 {rg('v',rv+2*u,2)}, {rg('v',src,2)}, {rg('v',rv+2*u,2)}", rl("v", src, 2) + rl("v", rv + 2 * u, 2), rl("v", rv + 2 * u, 2))
            o.e = gB2[j]; o.dl = dlf; o.prio = gB2[j] + 4 + q * 0.01
            o.after.append((rcv[u], recvd))
            if kp == "a": o.after += [(kept[2 * u], 0), (kept[2 * u + 1], 0)]
            adds.append(o)
        if kp == "a":
            lastadd[("a", na)] = adds[-1]; na += 1
        for k in range(1, 4): adds[k].after.append((adds[k - 1], 0))
        ops += adds
        ob = V_T + (q & 3) * 4
        prev = None
        for rho in range(2):
            cvs = []
            for h in range(2):
                a, b = rv + 4 * h + rho, rv + 4 * h + 2 + rho
                o = V(f"v_cvt_pk_bf16_f32 v{ob+2*rho+h}, v{a}, v{b}", [f"v{a}", f"v{b}"], [f"v{ob+2*rho+h}"])
                o.e = gB2[j]; o.dl = END; o.prio = gB2[j] + 6 + q * 0.01
                o.after += [(adds[2 * h], 0), (adds[2 * h + 1], 0)]
                if q - 4 in lastst: o.after.append((lastst[q - 4], 1))
                if prev: o.after.append((prev, 0))
                prev = o
                cvs.append(o)
            lastcv[q] = cvs[-1]
            vo = V_O1 if rho else V_O0
            o = Op("VM", f"buffer_store_dwordx2 {rg('v',ob+2*rho,2)}, v{vo}, s[{S_O}:{S_O+3}], s{S_OS} offen {st}".rstrip(),
                   rd=rl("v", ob + 2 * rho, 2) + [f"v{vo}"], pre=(f"s{S_OS}", f"s_mov_b32 s{S_OS}, {tile*147456}"), cls="ST", tag=("O", tile))
            o.e = gB2[j]; o.dl = END; o.prio = gB2[j] + 7 + q * 0.01
            o.after += [(c, 0) for c in cvs]
            if rho: o.after.append((lastst[q], 0))
            elif q - 1 in lastst: o.after.append((lastst[q - 1], 0))
            lastst[q] = o
            ops += cvs + [o]

    pend = sorted(ops, key=lambda o: (o.prio, o.id))
    cur = {}
    for o in G[0].ops:
        if o.pre: cur[o.pre[0]] = o.pre[1]
    lastvm = -99; lastdma = -99
    for gi, g in enumerate(G):
        if g.free == "fixed": continue
        room = 2
        sc_used = g.fragwait or g.bar
        if g.bar and not g.free: room -= 1
        m0user = None; nat = 0; osuser = None
        while True:
            pick = None
            for o in pend:
                if o.e > gi: continue
                if g.free:
                    if g.free == "flex" and o.dl > gi: continue
                    if any(a.gap is None for a, d in o.after): continue
                    if g.name == "B0" and not (o.tag and o.tag[0] == "F" and o.tag[1] < D) and o.prio > -400: continue
                    pick = o; break
                if any(a.gap is None or a.gap + d > gi for a, d in o.after): continue
                cost = 1
                chg = o.pre and cur.get(o.pre[0]) != o.pre[1]
                if chg and sc_used: cost = 2
                if cost > room: continue
                if o.pre and o.pre[0] == "m0" and m0user is not None and (chg or True) and m0user != o.pre[1]: continue
                if o.pre and o.pre[0] != "m0" and osuser is not None and osuser != o.pre[1]: continue
                urgent = o.dl - gi <= 2
                if o.cls == "AT" and nat >= 1 and not urgent: continue
                if o.kind == "VM" and gi - lastvm < vmsp and not urgent: continue
                if o.cls == "DMA" and gi >= st2[0] and gi - lastdma < dmasp and not urgent: continue
                pick = o; break
            if pick is None: break
            o = pick
            pend.remove(o); o.gap = gi; g.ops.append(o)
            chg = o.pre and cur.get(o.pre[0]) != o.pre[1]
            if o.pre:
                cur[o.pre[0]] = o.pre[1]
                if o.pre[0] == "m0": m0user = o.pre[1]
                else: osuser = o.pre[1]
            if not g.free:
                room -= 1
                if chg:
                    if sc_used: room -= 1
                    sc_used = True
            if o.cls == "AT": nat += 1
            if o.kind == "VM": lastvm = gi
            if o.cls == "DMA": lastdma = gi
            if room <= 0 and not g.free: break
    assert not pend, [(o.text, o.e, o.dl) for o in pend[:10]]
    late = [o for o in ops if o.gap > o.dl]
    assert not late, [(o.text, o.gap, o.dl, G[o.gap].name) for o in late[:10]]

    def dropped(o):
        if "s" in drop and o.cls == "ST": return True
        if "d" in drop and o.tag and o.tag[0] == "P" and o.tag[1] >= 2: return True
        if "x" in drop and (o.cls == "AT" or o.text.startswith("ds_read2st64")): return True
        if "v" in drop and o.kind == "V" and o.gap >= st2[0]: return True
        if "f" in drop and o.tag and o.tag[0] == "F" and o.gap >= st2[0]: return True
        if "W" in drop and o.tag and o.tag[0] == "W" and o.tag[1] >= 3: return True
        if "X" in drop and o.tag and o.tag[0] == "X" and o.tag[1] >= 3: return True
        if "q" in drop and o.kind == "V" and start[0] <= o.gap < st2[0]: return True
        return False
    for gi, g in enumerate(G):
        g.ops = [o for o in g.ops if not dropped(o)]
        if "b" in drop and gi >= st2[0] and g.mfma: g.bar = False
        if "B" in drop and gi < st2[0] and g.mfma: g.bar = False
    Lz = []
    cur = {}
    for gi, g in enumerate(G):
        if g.label: Lz.append(Op("L", g.label))
        if g.mfma: Lz.append(g.mfma)
        if g.stamp: Lz.append(S(stamp_text()))
        if g.free:
            if g.bar: Lz.append(Op("B", "s_barrier"))
            for o in g.ops:
                if o.pre and cur.get(o.pre[0]) != o.pre[1]:
                    cur[o.pre[0]] = o.pre[1]; Lz.append(Op("S", o.pre[1], wr=[o.pre[0]]))
                Lz.append(o)
        else:
            lst = g.ops
            if len(lst) == 2 and lst[0].pre and lst[0].pre[0] == "m0" and not lst[1].pre and not any(a is lst[0] for a, d in lst[1].after) \
               and not (lst[0].kind == lst[1].kind) and not (set(lst[0].rd) & set(lst[1].wr)):
                lst = [lst[1], lst[0]]
            for o in lst:
                if o.pre and cur.get(o.pre[0]) != o.pre[1]:
                    cur[o.pre[0]] = o.pre[1]; Lz.append(Op("S", o.pre[1], wr=[o.pre[0]]))
            wm = Op("WM", ""); wm.look = list(lst) + ([G[gi + 1].mfma] if gi + 1 < len(G) and G[gi + 1].mfma else [])
            Lz.append(wm)
            if g.bar:
                b = Op("B", "s_barrier"); Lz.append(b); wm.look.append(b)
            Lz += lst
    acc = [(k, o) for k, o in enumerate(Lz) if o.lds]
    bars = [k for k, o in enumerate(Lz) if o.kind == "B"]
    import bisect
    for y in range(len(acc)):
        ky, oy = acc[y]
        bi = bisect.bisect_left(bars, ky) - 1
        for x in range(y):
            kx, ox = acc[x]
            if ox.lds[0] == "r" and oy.lds[0] == "r": continue
            if ox.lds[0] == "w" and oy.lds[0] == "w": continue
            if ox.lds[3] and oy.lds[3]: continue
            if ox.lds[2] <= oy.lds[1] or oy.lds[2] <= ox.lds[1]: continue
            if drop and not (bi >= 0 and bars[bi] > kx): continue
            assert bi >= 0 and bars[bi] > kx, ("LDS race", ox.text, G[ox.gap].name, oy.text, G[oy.gap].name)
            Lz[bars[bi]].needs.append(ox)
    issued = {"VM": 0, "DS": 0}; done = {"VM": -1, "DS": -1}; CAP = {"VM": 63, "DS": 15}
    pendreg = {}
    out = []
    inl = 0
    def needs_of(o):
        n = {"VM": -1, "DS": -1}
        for r in o.rd + o.wr:
            if r in pendreg:
                q, i = pendreg[r]; n[q] = max(n[q], i)
        for x in o.needs:
            if hasattr(x, "qi"): n[x.kind] = max(n[x.kind], x.qi)
        return n
    def dowait(n):
        w = []
        for q, nm in (("VM", "vmcnt"), ("DS", "lgkmcnt")):
            if n[q] > done[q]:
                c = min(issued[q] - 1 - n[q], CAP[q])
                done[q] = issued[q] - 1 - c
                w.append(f"{nm}({c})")
        if w: out.append(Op("S", "s_waitcnt " + " ".join(w)))
        return bool(w)
    for o in Lz:
        if o.kind == "WM":
            n = {"VM": -1, "DS": -1}
            for x in o.look:
                m = needs_of(x)
                for q in n: n[q] = max(n[q], m[q])
            dowait(n); continue
        if dowait(needs_of(o)): inl += 1
        if o.kind in ("VM", "DS"):
            o.qi = issued[o.kind]; issued[o.kind] += 1
            for r in o.wr: pendreg[r] = (o.kind, o.qi)
        out.append(o)
    fin = []
    t = 0
    wV = {}; wM = {}; wS = {}
    nops = 0
    for o in out:
        need = 0
        if o.kind == "M":
            for r in o.rd: need = max(need, wV.get(r, -99) + 3 - t)
        elif o.kind in ("V", "DS", "VM"):
            for r in o.rd + o.wr: need = max(need, wM.get(r, -99) + 10 - t)
            if o.pre and o.pre[0] == "m0": need = max(need, wS.get("m0", -99) + 2 - t)
        if need > 0:
            fin.append(Op("S", f"s_nop {need-1}")); t += need; nops += 1
        if o.kind == "V":
            for r in o.wr: wV[r] = t
        elif o.kind == "M":
            for r in o.wr: wM[r] = t
        elif o.kind == "S":
            for r in o.wr: wS[r] = t
        fin.append(o)
        t += 2 if o.kind == "M" else 1
    if verbose:
        print("inline waits", inl, "nops", nops, "instr", len(fin), file=sys.stderr)
        for gi, g in enumerate(G):
            if g.free: print(gi, g.name, len(g.ops), file=sys.stderr)

    L = []
    A = L.append
    A("; @launch grid=(252,1,1) block=(256,1,1) lds=163840")
    A('.amdgcn_target "amdgcn-amd-amdhsa--gfx950"')
    A(".text"); A(f".globl {NAME}"); A(".p2align 8"); A(f".type {NAME},@function"); A(f"{NAME}:")
    for o in fin: A(o.text if o.kind == "L" else "  " + o.text)
    if stamps:
        A("  " + stamp_text()); A("  s_waitcnt vmcnt(0)"); A("  " + stamp_text()); A("  " + stamp_text(True))
        n = nst[0]
        for x in ["s_waitcnt lgkmcnt(0)", "s_cmp_lg_u32 s3, 0", "s_cbranch_scc1 L_end",
                  "s_mov_b32 s20, s16", "s_and_b32 s21, s17, 0xffff", "s_mov_b32 s22, 0x100000", "s_mov_b32 s23, 0x20000",
                  f"s_mul_i32 s18, s2, {n*8}", "v_mov_b32 v2, s18", "s_mov_b64 exec, 1"]: A("  " + x)
        for k in range(n):
            for x in [f"v_mov_b32 v4, s{STREGS[k]}", f"v_mov_b32 v5, s{STREGS[k]+1}",
                      f"buffer_store_dwordx2 v[4:5], v2, s[20:23], 0 offen offset:{8*k}", "s_nop 1"]: A("  " + x)
        A("  s_waitcnt vmcnt(0)")
    A("L_end:"); A("  s_endpgm")
    A('.section .rodata,"a"'); A(".p2align 6"); A(f".amdhsa_kernel {NAME}")
    A(f"  .amdhsa_next_free_vgpr {256 + A_FR + NA*4}")
    A("  .amdhsa_next_free_sgpr 102")
    A("  .amdhsa_accum_offset 256")
    A("  .amdhsa_group_segment_fixed_size 0")
    A("  .amdhsa_kernarg_size 56")
    A("  .amdhsa_user_sgpr_count 2")
    A("  .amdhsa_user_sgpr_kernarg_segment_ptr 1")
    A("  .amdhsa_system_sgpr_workgroup_id_x 1")
    A("  .amdhsa_float_denorm_mode_32 3")
    A(".end_amdhsa_kernel")
    return "\n".join(L) + "\n", nst[0]

if __name__ == "__main__":
    ap = argparse.ArgumentParser()
    ap.add_argument("-o", default="k2.s")
    for k, d in dict(R=8, rotA=4, rotB=2, D=3, NA=5, b1=8, bpos=20, nb1=2, vmsp=2, dmasp=4, nacc=3, recvd=5, p1per=1, w2all=0, w2sp=2).items():
        ap.add_argument("--" + k, type=int, default=d)
    ap.add_argument("--stamps", action="store_true")
    ap.add_argument("-v", dest="verbose", action="store_true")
    for k in ("st", "lw", "lx", "lx2", "drop"): ap.add_argument("--" + k, default="")
    a = vars(ap.parse_args())
    o = a.pop("o")
    s, n = gen(**a)
    open(o, "w").write(s)
    print(o, "lines", s.count("\n"), "stamps", n)
```

```python
import sys, argparse
NAME = "standalone__w4a16_gemm_dequant__prompt_kernel"
INF = 10 ** 9

def rl(p, b, n): return [f"{p}{b+i}" for i in range(n)]
def rg(p, b, n): return f"{p}[{b}:{b+n-1}]" if n > 1 else f"{p}{b}"

class Op:
    cnt = 0
    def __init__(s, kind, text, rd=(), wr=(), pre=None, lds=None, cls=None, e=0, dl=INF, prio=None, after=(), tag=None, grp=None):
        s.kind = kind; s.text = text; s.rd = list(rd); s.wr = list(wr); s.pre = pre; s.lds = lds; s.cls = cls
        s.e = e; s.dl = dl; s.prio = dl if prio is None else prio; s.after = list(after); s.tag = tag; s.grp = grp
        s.gap = None; s.needs = []; s.id = Op.cnt; Op.cnt += 1

class Gap:
    def __init__(s, mfma=None, free=None, bar=False, name=""):
        s.mfma = mfma; s.free = free; s.bar = bar; s.ops = []; s.name = name; s.stamp = False; s.label = None
        s.fragwait = False

def gen(R=8, rotA=4, rotB=2, D=3, NA=5, b1=8, bpos=20, nb1=2, vmsp=2, dmasp=4, stamps=False, st="", lw="", lx="", lx2="",
        nacc=3, skip18=True, verbose=False, recvd=5, p1per=1, w2all=0, w2sp=2, drop='', pk=0):
    NT, NST = 19, 9
    NS = NT - R
    assert R % 2 == 0 and 4 <= R <= 10
    RING = 24576
    SLOT0 = 53248
    def ringbuf(s): return RING + (s % 3) * R * 2048
    def slot(n): return SLOT0 + ((n + 2) % 6) * 18432
    assert RING + 3 * R * 2048 <= slot(0)
    S_X, S_W, S_S, S_Z, S_O = 20, 24, 28, 32, 36
    S_WOFS, S_XOFS, S_P2, S_D1, S_D9 = 40, 48, 56, 66, 75
    S_M0X, S_M0W, S_C24, S_MSK, S_OS, S_NTL = 84, 85, 86, 87, 88, 89
    STREGS = [90, 92, 94, 96, 98, 100, 4, 6, 8, 10, 12, 14, 66, 68]
    V_W, V_X, V_X2, V_R, V_O0, V_O1, V_TR, V_TW, V_E, V_S = 2, 3, 4, 5, 8, 9, 10, 11, 12, 13
    V_SZ, V_RAW, V_F, V_T = 16, 32, 96, 240
    V_EW = 0
    def raw(p, j): return V_RAW + p * 32 + j * 4
    def F(i, u): return V_F + (i * 4 + u) * 4
    def acc1(t, u): return (t * 4 + u) * 4
    A_FR = 16 * R
    def fr(f): return A_FR + (f % NA) * 4
    def acc2(n, u): return V_RAW + (n % nacc) * 16 + u * 4
    V_RECV = V_RAW + 48
    nst = [0]
    def stamp_text(real=False):
        r = STREGS[nst[0]]; nst[0] += 1
        return f"s_memrealtime s[{r}:{r+1}]" if real else f"s_memtime s[{r}:{r+1}]"

    G = []
    def S(t): return Op("S", t)
    def V(t, rd=(), wr=(), **k): return Op("V", t, rd, wr, **k)
    def fixed(ops, name="", bar=False):
        g = Gap(free="fixed", name=name, bar=bar); g.ops = list(ops)
        for o in g.ops: o.gap = len(G)
        G.append(g); return g
    def txt(lines):
        out = []
        for x in lines:
            out.append(Op("V" if x.startswith("v_") else "S", x))
        return out

    def ldW(i, j):
        r = raw(i & 1, j)
        so = "0" if j == 0 else f"s{S_WOFS+j}"
        return Op("VM", f"buffer_load_dwordx4 {rg('v',r,4)}, v{V_W}, s[{S_W}:{S_W+3}], {so} offen {lw}".rstrip(),
                  rd=[f"v{V_W}"], wr=rl("v", r, 4), cls="VM", tag=("W", i, j))
    def ldSZ(m):
        r = V_T + 4 * m
        return [Op("VM", f"buffer_load_dwordx2 {rg('v',r,2)}, v{V_S+m}, s[{S_S}:{S_S+3}], 0 offen", rd=[f"v{V_S+m}"], wr=rl("v", r, 2), cls="VM"),
                Op("VM", f"buffer_load_dwordx2 {rg('v',r+2,2)}, v{V_S+m}, s[{S_Z}:{S_Z+3}], 0 offen", rd=[f"v{V_S+m}"], wr=rl("v", r + 2, 2), cls="VM")]
    def ldX(s, e):
        so = f"s{S_XOFS+e}" if e else "0"
        b = ringbuf(s)
        return Op("VM", f"buffer_load_dwordx4 v{V_X}, s[{S_X}:{S_X+3}], {so} offen offset:{(e&3)*1024} {lx} lds".rstrip(),
                  rd=[f"v{V_X}"], pre=("m0", f"s_add_u32 m0, s{S_M0X}, {b + (e>>2)*4096}"), lds=("w", b, b + R * 2048, False),
                  cls="DMA", tag=("X", s, e), grp=("X", s))
    def ldP(p, e):
        b = slot(2 * p) + e * 4096
        return Op("VM", f"buffer_load_dwordx4 v{V_X2}, s[{S_X}:{S_X+3}], s{S_P2+e} offen {lx2} lds".rstrip(),
                  rd=[f"v{V_X2}"], pre=("m0", f"s_add_u32 m0, s{S_M0W}, {b}"), lds=("w", b, b + 4096, False),
                  cls="DMA", tag=("P", p, e), grp=("P", p))
    def advW(i): return V(f"v_lshl_add_u32 v{V_W}, s{S_D9+i}, 17, v{V_W}", [f"v{V_W}"], [f"v{V_W}"])
    def advX(i): return V(f"v_lshl_add_u32 v{V_X}, s{S_D1+i}, 7, v{V_X}", [f"v{V_X}"], [f"v{V_X}"])
    def prep(m, t):
        r = V_T + 4 * m
        o = []
        for h in range(2):
            o.append(V(f"v_lshlrev_b32 v{t+2*h}, 16, v{r+h}", [f"v{r+h}"], [f"v{t+2*h}"]))
            o.append(V(f"v_and_b32 v{t+2*h+1}, s{S_MSK}, v{r+h}", [f"v{r+h}"], [f"v{t+2*h+1}"]))
        for h in range(2):
            o.append(V(f"v_lshlrev_b32 v{t+4+2*h}, 16, v{r+2+h}", [f"v{r+2+h}"], [f"v{t+4+2*h}"]))
            o.append(V(f"v_and_b32 v{t+4+2*h+1}, s{S_MSK}, v{r+2+h}", [f"v{r+2+h}"], [f"v{t+4+2*h+1}"]))
        for u in range(4):
            o.append(V(f"v_mul_f32_e64 v{t+4+u}, -v{t+4+u}, v{t+u}", [f"v{t+4+u}", f"v{t+u}"], [f"v{t+4+u}"]))
        for u in range(4):
            o.append(V(f"v_mul_f32 v{t+u}, s{S_C24}, v{t+u}", [f"v{t+u}"], [f"v{t+u}"]))
        o.append(Op("DS", f"ds_write_b128 v{V_TW}, {rg('v',t,4)} offset:{m*2048}", rd=[f"v{V_TW}"] + rl("v", t, 4), lds=("w", 0, 24576, True)))
        o.append(Op("DS", f"ds_write_b128 v{V_TW}, {rg('v',t+4,4)} offset:{m*2048+256}", rd=[f"v{V_TW}"] + rl("v", t + 4, 4), lds=("w", 0, 24576, True)))
        return o
    def rdSZ(i):
        z = V_SZ + (i & 1) * 8
        return [Op("DS", f"ds_read_b128 {rg('v',z,4)}, v{V_TR} offset:{i*512}", rd=[f"v{V_TR}"], wr=rl("v", z, 4), lds=("r", 0, 24576, True)),
                Op("DS", f"ds_read_b128 {rg('v',z+4,4)}, v{V_TR} offset:{i*512+256}", rd=[f"v{V_TR}"], wr=rl("v", z + 4, 4), lds=("r", 0, 24576, True))]
    def deq(i, jj):
        p = i & 1; z = V_SZ + p * 8
        fm = []; cv = []
        for j in (2 * jj, 2 * jj + 1):
            for u in range(4):
                r = raw(p, j) + u
                fm.append(V(f"v_fma_mix_f32 v{r}, v{r}, v{z+u}, v{z+4+u} op_sel_hi:[1,0,0]", [f"v{r}", f"v{z+u}", f"v{z+4+u}"], [f"v{r}"]))
        for u in range(4):
            a, b = raw(p, 2 * jj) + u, raw(p, 2 * jj + 1) + u
            cv.append(V(f"v_cvt_pk_bf16_f32 v{F(i,u)+jj}, v{a}, v{b}", [f"v{a}", f"v{b}"], [f"v{F(i,u)+jj}"]))
        return fm, cv
    def rdF(f, addr):
        w, off = divmod(addr, 65536)
        a = fr(f)
        return Op("DS", f"ds_read_b128 {rg('a',a,4)}, v{V_R+w} offset:{off}", rd=[f"v{V_R+w}"], wr=rl("a", a, 4), lds=("r", addr, addr + 2048, False), tag=("F", f))
    def mfma(dp, d, f, fb, first):
        dd = rg(dp, d, 4)
        return Op("M", f"v_mfma_f32_16x16x32_bf16 {dd}, {rg('a',fr(f),4)}, {rg('v',fb,4)}, {'0' if first else dd}",
                  rd=rl("a", fr(f), 4) + rl("v", fb, 4) + ([] if first else rl(dp, d, 4)), wr=rl(dp, d, 4))

    P = []
    if stamps: P += [S(stamp_text(True)), S(stamp_text())]
    P += txt([
        "s_cmp_ge_u32 s2, 252",
        "s_cbranch_scc1 L_end",
        "s_load_dwordx8 s[4:11], s[0:1], 0",
        "s_load_dwordx2 s[12:13], s[0:1], 32"])
    if stamps: P += txt(["s_load_dwordx2 s[16:17], s[0:1], 48"])
    P += txt([
        "v_lshrrev_b32 v16, 6, v0",
        "v_and_b32 v1, 63, v0",
        "v_readfirstlane_b32 s3, v16",
        "s_and_b32 s14, s2, 7",
        "s_lshr_b32 s15, s2, 3",
        "s_lshl_b32 s18, s14, 2",
        "s_and_b32 s19, s15, 3",
        "s_add_u32 s18, s18, s19",
        "s_lshr_b32 s19, s15, 2",
        "s_and_b32 s40, s14, 3",
        "s_add_u32 s40, s40, 32",
        "s_and_b32 s41, s14, 4",
        "s_add_u32 s41, s41, s15",
        "s_sub_u32 s41, s41, 28",
        "s_cmp_ge_u32 s15, 28",
        "s_cselect_b32 s18, s40, s18",
        "s_cselect_b32 s15, s41, s19",
        f"s_mul_i32 s40, s15, {rotA}",
        f"s_mul_i32 s41, s18, {rotB}",
        "s_add_u32 s40, s40, s41",
        "s_mul_i32 s41, s40, 57",
        "s_lshr_b32 s41, s41, 9",
        "s_mul_i32 s41, s41, 9",
        "s_sub_u32 s19, s40, s41",
        "s_lshr_b32 s64, s3, 1",
        "s_and_b32 s65, s3, 1",
        "s_lshl_b32 s18, s18, 7",
        "s_lshl_b32 s40, s65, 6",
        "s_add_u32 s18, s18, s40",
        "v_and_b32 v16, 15, v1",
        "v_lshrrev_b32 v17, 4, v1",
        f"s_mov_b32 s{S_WOFS+1}, 18432",
        "s_mul_i32 s40, s64, 9216",
        "s_lshl1_add_u32 s40, s18, s40",
        "v_lshl_add_u32 v18, v16, 3, s40",
        "v_add_u32 v19, s19, v17",
        "v_add_u32 v20, -9, v19",
        "v_min_u32 v20, v19, v20",
        f"v_mad_u32_u24 v{V_S}, v20, s{S_WOFS+1}, v18",
        "s_mul_i32 s42, s19, 1179648",
        "s_mul_i32 s43, s64, 589824",
        "s_lshl2_add_u32 s43, s18, s43",
        "s_add_u32 s42, s42, s43",
        f"v_mul_u32_u24 v{V_W}, 147456, v17",
        f"v_lshl_add_u32 v{V_W}, v16, 4, v{V_W}",
        f"v_add_u32 v{V_W}, s42, v{V_W}",
        f"s_mov_b32 s{S_W+2}, {576*4608*4}",
        f"s_mov_b32 s{S_S+2}, {18*4608*2}",
        f"s_mov_b32 s{S_Z+2}, {18*4608*2}",
        f"s_mov_b32 s{S_W+3}, 0x20000",
        f"s_mov_b32 s{S_S+3}, 0x20000",
        f"s_mov_b32 s{S_Z+3}, 0x20000"])
    P += txt([f"s_mov_b32 s{S_WOFS+k}, {k*18432}" for k in range(2, 8)])
    P += txt([
        "s_mul_i32 s14, s15, 18",
        "s_min_u32 s40, s15, 2",
        "s_add_u32 s14, s14, s40",
        "s_cmp_lt_u32 s15, 2",
        f"s_cselect_b32 s{S_NTL}, 19, 18",
        "v_lshrrev_b32 v21, 3, v1",
        "v_lshrrev_b32 v22, 4, v1",
        "v_and_b32 v22, 2, v22",
        "v_lshrrev_b32 v23, 2, v1",
        "v_and_b32 v23, 4, v23",
        "v_and_b32 v24, 7, v1",
        "v_or3_b32 v22, v22, v23, 0",
        "v_xor_b32 v22, v22, v24",
        "v_mul_u32_u24 v21, 1152, v21",
        "v_lshl_add_u32 v21, v22, 4, v21",
        f"s_mul_i32 s40, s3, {(R//2)*9216}",
        "s_lshl_b32 s15, s19, 7",
        "s_add_u32 s40, s40, s15",
        f"v_add_u32 v{V_X}, s40, v21",
        f"s_mul_i32 s{S_M0X}, s3, {(R//2)*1024}",
        f"s_mul_i32 s{S_X+2}, s{S_NTL}, 18432",
        f"s_mov_b32 s{S_X+3}, 0x20000",
        "s_mul_i32 s15, s14, 18432",
        f"s_cmp_eq_u32 s19, 8",
        f"s_cselect_b32 s{S_D1+1}, -8, 1",
        f"s_cselect_b32 s{S_D9+1}, -72, 9"])
    P += txt([f"s_mov_b32 s{S_XOFS+e}, {e*9216-(e&3)*1024}" for e in range(1, R // 2)])
    P += txt([
        "s_waitcnt lgkmcnt(0)",
        f"s_mov_b32 s{S_S}, s8", f"s_and_b32 s{S_S+1}, s9, 0xffff",
        f"s_mov_b32 s{S_Z}, s10", f"s_and_b32 s{S_Z+1}, s11, 0xffff",
        f"s_mov_b32 s{S_W}, s6", f"s_and_b32 s{S_W+1}, s7, 0xffff"])
    P += ldSZ(0)
    P += [ldW(0, j) for j in range(8)]
    P += txt([f"s_add_u32 s{S_X}, s4, s15", f"s_addc_u32 s{S_X+1}, s5, 0", f"s_and_b32 s{S_X+1}, s{S_X+1}, 0xffff"])
    P += [ldX(0, e) for e in range(R // 2)]
    P += [advW(1), advX(1)]
    P += [ldW(1, j) for j in range(8)]
    P += [ldX(1, e) for e in range(R // 2)]
    for m in (1, 2):
        P += txt([f"v_add_u32 v19, 4, v19", "v_add_u32 v20, -9, v19", "v_min_u32 v20, v19, v20",
                  f"v_mad_u32_u24 v{V_S+m}, v20, s{S_WOFS+1}, v18"])
        P += ldSZ(m)
    if stamps: P += [S(stamp_text())]
    P += txt([
        "s_mul_i32 s15, s14, 147456",
        f"s_add_u32 s{S_O}, s12, s15", f"s_addc_u32 s{S_O+1}, s13, 0", f"s_and_b32 s{S_O+1}, s{S_O+1}, 0xffff",
        f"s_mul_i32 s{S_O+2}, s{S_NTL}, 147456",
        f"s_mov_b32 s{S_O+3}, 0x20000",
        f"s_mov_b32 s{S_C24}, 0x4b800000", f"s_mov_b32 s{S_MSK}, 0xffff0000",
        f"s_lshl_b32 s{S_M0W}, s3, 10",
        "s_mul_i32 s40, s3, 6144",
        f"v_lshl_add_u32 v{V_TR}, v16, 4, s40",
        f"v_lshl_add_u32 v{V_TW}, v17, 9, v{V_TR}",
        "s_mul_i32 s40, s65, 9216",
        f"s_add_u32 s40, s40, {R*18432}",
        f"v_add_u32 v{V_X2}, s40, v21",
        "s_mul_i32 s40, s64, 18432",
        "s_lshl1_add_u32 s40, s18, s40",
        f"v_mul_u32_u24 v{V_O0}, 36864, v17",
        f"v_lshl_add_u32 v{V_O0}, v16, 3, v{V_O0}",
        f"v_add_u32 v{V_O0}, s40, v{V_O0}",
        f"v_add_u32 v{V_O1}, 9216, v{V_O0}",
        f"s_xor_b32 s40, s{S_M0W}, 2048",
        f"v_lshl_add_u32 v{V_E}, v1, 2, s40",
        f"v_xor_b32 v{V_EW}, 0x800, v{V_E}",
        "s_lshl_b32 s40, s64, 1",
        "v_xor_b32 v22, s40, v16",
        "v_lshrrev_b32 v23, 1, v22",
        "v_and_b32 v23, 2, v23",
        "v_lshlrev_b32 v24, 1, v22",
        "v_and_b32 v24, 4, v24",
        "s_lshl_b32 s40, s64, 2",
        "v_add_u32 v25, s40, v17",
        "v_xor_b32 v23, v23, v24",
        "v_xor_b32 v23, v23, v25",
        "v_lshlrev_b32 v23, 4, v23",
        f"v_lshl_add_u32 v{V_R}, v22, 7, v23",
        f"v_add_u32 v{V_R+1}, 0x10000, v{V_R}",
        f"v_add_u32 v{V_R+2}, 0x20000, v{V_R}"])
    for i in range(2, NST):
        P += txt([f"s_cmp_eq_u32 s19, {9-i}", f"s_cselect_b32 s{S_D1+i}, -8, 1", f"s_cselect_b32 s{S_D9+i}, -72, 9"])
    P += txt(["s_add_u32 s14, s19, s64"])
    for e in range(9):
        r = S_P2 + e
        if e == 4:
            P += txt(["s_add_u32 s15, s19, 8", "s_sub_u32 s40, s19, 1", "s_min_u32 s15, s15, s40", "s_lshl_b32 s15, s15, 7",
                      "s_lshl_b32 s40, s19, 7", "s_add_u32 s40, s40, 18432", "s_cmp_eq_u32 s64, 0", f"s_cselect_b32 s{S_OS}, s15, s40"])
            continue
        c = 2 * e if e < 4 else 2 * e - 9
        P += txt([f"s_add_u32 s15, s14, {c}", f"s_sub_u32 s40, s15, 9", "s_min_u32 s15, s15, s40"])
        if e < 4: P += txt([f"s_lshl_b32 s{r}, s15, 7"])
        else: P += txt(["s_lshl_b32 s15, s15, 7", f"s_add_u32 s{r}, s15, 18432"])
    P += txt([f"s_mov_b32 s{S_P2+4}, s{S_OS}"])
    P += prep(0, F(8, 0))
    P += rdSZ(0) + rdSZ(1)
    P.append(advW(2))
    first = True
    lastW = None
    for jj in range(4):
        fm, cv = deq(0, jj)
        P += fm
        if first and stamps: P += [S(stamp_text())]
        first = False
        P += cv + [ldW(2, 2 * jj), ldW(2, 2 * jj + 1)]
        lastW = P[-1]
    lastX = [o for o in P if o.tag == ("X", 1, R // 2 - 1)][0]
    fixed(P, "prologue")

    ops = []
    gB1 = {}; start = {}; flex = {}
    g = Gap(free="open", bar=True, name="B0"); gB1[0] = len(G); G.append(g)
    if stamps: g.stamp = True
    firstuse = {}; lastuse = {}; lastM = {}
    for s in range(NST):
        start[s] = len(G)
        for t in range(R):
            f = s * R + t
            for u in range(4):
                gp = Gap(mfma("a", acc1(t, u), f, F(s, u), s == 0), name=f"s{s}t{t}u{u}")
                gp.fragwait = (u == 3)
                if u == 0: firstuse[f] = len(G)
                lastuse[f] = len(G)
                lastM[("a", t, u)] = len(G)
                G.append(gp)
        if stamps and s in (4, 8): G[start[s]].stamp = True
        if s < NST - 1:
            flex[s] = len(G); G.append(Gap(free="flex", name=f"flex{s}"))
            gB1[s + 1] = flex[s] - b1
            G[gB1[s + 1]].bar = True
    st2 = {}; gB2 = {}
    for n in range(NS):
        st2[n] = len(G)
        for k in range(9):
            f = 9 * R + 9 * n + k
            for u in range(4):
                gp = Gap(mfma("v", acc2(n, u), f, F(k, u), k == 0), name=f"n{n}k{k}u{u}")
                gp.fragwait = (u == 3)
                if u == 0: firstuse[f] = len(G)
                lastuse[f] = len(G)
                lastM[("v", n, u)] = len(G)
                G.append(gp)
        gB2[n] = st2[n] + bpos
        G[gB2[n]].bar = True
    if stamps:
        G[st2[0]].stamp = True; G[st2[NS // 2]].stamp = True
    tail0 = len(G); G.append(Gap(free="open", name="tail0"))
    if stamps: G[tail0].stamp = True
    gB2[NS] = len(G); G.append(Gap(free="open", bar=True, name="tail1"))
    END = len(G) - 1

    NF = 9 * R + 9 * NS
    prevF = None
    for f in range(NF):
        if f < 9 * R:
            s, t = divmod(f, R); addr = ringbuf(s) + t * 2048; gb = gB1[s]
            nextb = gB1.get(s + 1, INF)
        else:
            n, k = divmod(f - 9 * R, 9); addr = slot(n) + k * 2048
            gb = gB1[8] if n == 0 else gB2[n - 1]
            nextb = INF
        o = rdF(f, addr)
        e = max(gb, firstuse[f] - 4 * D)
        if f >= NA: e = max(e, lastuse[f - NA])
        o.dl = min(firstuse[f] - 1, nextb - 3)
        if f < D: e = gb
        o.e = min(e, o.dl)
        assert f < NA or o.e >= lastuse[f - NA], (f, o.e, lastuse[f - NA])
        o.prio = -1000 + f
        if prevF: o.after.append((prevF, 0))
        prevF = o
        ops.append(o)
    tabw = []
    for m, tmp in ((1, F(7, 0)), (2, F(6, 0))):
        pp = prep(m, tmp)
        for k, o in enumerate(pp):
            o.e = start[m - 1] + (4 * R - 24); o.dl = flex[m - 1]; o.prio = o.dl + 0.5
            if k: o.after.append((pp[k - 1], 0))
        tabw.append(pp[-1]); ops += pp
    lastfm = {}
    szr = {}
    for i in range(1, NST):
        chain = []
        if i + 2 < NST:
            a = advW(i + 2); a.after.append((lastW, 0)); chain.append(a)
        for jj in range(4):
            fm, cv = deq(i, jj)
            chain += fm + cv
            lastfm[i] = fm[-1]
            if i + 2 < NST:
                chain += [ldW(i + 2, 2 * jj), ldW(i + 2, 2 * jj + 1)]
                lastW = chain[-1]
        prev = None
        for k, o in enumerate(chain):
            o.e = start[i - 1]; o.dl = flex[i - 1]; o.prio = o.dl
            if o.kind == "VM":
                o.after.append((prev, 0)); o.prio = o.dl - 0.5
                if chain[k - 1].kind == "VM": o.after.append((chain[k - 1], 0))
            else:
                if prev: o.after.append((prev, 0))
                prev = o
            if i in szr and o.kind == "V":
                for z in szr[i]: o.after.append((z, 4))
        ops += chain
        if i + 1 < NST:
            z = rdSZ(i + 1)
            for o in z:
                o.e = start[i - 1] + 4; o.dl = flex[i - 1]; o.prio = start[i - 1] + 2 * R
                if i - 1 in lastfm: o.after.append((lastfm[i - 1], 0))
                if i + 1 >= 4: o.after.append((tabw[(i + 1) // 4 - 1], 0))
            szr[i + 1] = z; ops += z
    for s in range(2, NST):
        a = advX(s); a.e = gB1[s - 2] - 2; a.after.append((lastX, 0)); a.prio = -500; a.dl = gB1[s - 1]
        ops.append(a); prev = a
        for e in range(R // 2):
            o = ldX(s, e); o.e = gB1[s - 2]; o.dl = gB1[s - 1] - 1; o.prio = -500; o.after.append((prev, 0)); prev = o
            ops.append(o)
        lastX = prev
    NPAIR = (NS + 1) // 2
    prev = lastX
    for p in range(NPAIR):
        if p:
            a = V(f"v_add_u32 v{V_X2}, 36864, v{V_X2}", [f"v{V_X2}"], [f"v{V_X2}"]); a.after.append((prev, 0)); a.prio = -400
            ops.append(a); prev = a
        ne = 9 if 2 * p + 1 < NS else 5
        for e in range(ne):
            o = ldP(p, e)
            if p == 0: o.e = start[6]
            elif p == 1: o.e = start[7]
            else: o.e = gB2[max(0, 2 * p - 5 if e < 4 else 2 * p - 4)]
            need = 2 * p if e <= 4 else 2 * p + 1
            o.dl = (gB1[8] if need == 0 else gB2[need - 1]) - 1
            o.prio = o.e - 300
            o.after.append((prev, 0)); prev = o
            if e == 0 and p: ops[-1].e = o.e - 2
            ops.append(o)
    units = []
    t1 = 0
    for j in range(NS + 1):
        if j >= 1: units.append(("v", j - 1, j))
        k = nb1 if j == 0 else p1per
        for _ in range(k):
            if t1 < R: units.append(("a", t1, j)); t1 += 1
    assert t1 == R
    rdone = {}; lastcv = {}; lastadd = {}; lastst = {}
    na = 0
    for q, (kp, idx, j) in enumerate(units):
        EB = (q % 6) * 8192
        base = acc1(idx, 0) if kp == "a" else acc2(idx, 0)
        tile = idx if kp == "a" else R + idx
        snd = []
        w2 = (kp == "a") or w2all
        for k in range(0, 8, 2 if w2 else 1):
            u, r = k >> 1, 2 + (k & 1)
            off = EB + (k >> 2) * 4096 + (k & 3) * 256
            ld = ("w", EB + (k >> 2) * 4096, EB + (k >> 2) * 4096 + 4096, False)
            x = base + 4 * u + r
            if w2:
                o = Op("DS", f"ds_write2st64_b32 v{V_EW}, {kp}{x}, {kp}{x+1} offset0:{off//256} offset1:{off//256+1}", rd=[f"v{V_EW}"] + rl(kp, x, 2),
                       lds=ld, cls="AT", grp=("E", q))
            else:
                o = Op("DS", f"ds_write_addtid_b32 {kp}{x} offset:{off}", rd=[f"{kp}{x}"], pre=("m0", f"s_mov_b32 m0, s{S_M0W}"),
                       lds=ld, cls="AT", grp=("E", q))
            o.e = max(lastM[(kp, idx, u)] + 4, gB1[8] if j == 0 else gB2[j - 1])
            o.e = min(o.e, tail0)
            o.dl = gB2[j] - (1 if j == NS else 2); o.prio = o.dl - 100 + (0 if kp == "v" else 1)
            if snd: o.after.append((snd[-1], w2sp if w2 else 0))
            snd.append(o)
        ops += snd
        rv = V_RECV + (q & 1) * 8
        dlf = st2.get(idx + nacc, END + 1) - 1 if kp == "v" else END
        dlf = min(dlf, gB2.get(j + 2, END))
        rcv = []
        for k in range(0, 8, 2):
            o0 = (EB + (k >> 2) * 4096 + (k & 3) * 256) // 256
            o = Op("DS", f"ds_read2st64_b32 {rg('v',rv+k,2)}, v{V_E} offset0:{o0} offset1:{o0+1}", rd=[f"v{V_E}"], wr=rl("v", rv + k, 2),
                   lds=("r", EB + (k >> 2) * 4096, EB + (k >> 2) * 4096 + 4096, False))
            o.e = gB2[j]; o.dl = min(dlf, gB2.get(j + 1, END + 3) - 3); o.prio = gB2[j] + q * 0.01
            if q - 2 in lastcv: o.after.append((lastcv[q - 2], 0))
            rcv.append(o)
        ops += rcv
        kept = []
        if kp == "a":
            kb = V_SZ + (na & 1) * 8
            for u in range(4):
                for r in range(2):
                    o = V(f"v_accvgpr_read_b32 v{kb+2*u+r}, a{base+4*u+r}", [f"a{base+4*u+r}"], [f"v{kb+2*u+r}"])
                    o.e = max(lastM[(kp, idx, u)] + 4, gB2[j] - 12); o.dl = dlf; o.prio = gB2[j] + 2 + q * 0.01
                    if ("a", na - 2) in lastadd: o.after.append((lastadd[("a", na - 2)], 0))
                    kept.append(o)
            ops += kept
        adds = []
        for u in range(4):
            src = V_SZ + (na & 1) * 8 + 2 * u if kp == "a" else base + 4 * u
            if pk:
                lst = [V(f"v_pk_add_f32 {rg('v',rv+2*u,2)}, {rg('v',src,2)}, {rg('v',rv+2*u,2)}", rl("v", src, 2) + rl("v", rv + 2 * u, 2), rl("v", rv + 2 * u, 2))]
            else:
                lst = [V(f"v_add_f32 v{rv+2*u+r}, v{src+r}, v{rv+2*u+r}", [f"v{src+r}", f"v{rv+2*u+r}"], [f"v{rv+2*u+r}"]) for r in range(2)]
            for o in lst:
                o.e = gB2[j]; o.dl = dlf; o.prio = gB2[j] + 4 + q * 0.01
                o.after.append((rcv[u], recvd))
                if kp == "a": o.after += [(kept[2 * u], 0), (kept[2 * u + 1], 0)]
                if adds: o.after.append((adds[-1], 0))
                adds.append(o)
        ops += adds
        if not pk: adds = adds[1::2]
        if kp == "a":
            lastadd[("a", na)] = adds[-1]; na += 1
        ob = V_T + (q & 3) * 4
        prev = None
        for rho in range(2):
            cvs = []
            for h in range(2):
                a, b = rv + 4 * h + rho, rv + 4 * h + 2 + rho
                o = V(f"v_cvt_pk_bf16_f32 v{ob+2*rho+h}, v{a}, v{b}", [f"v{a}", f"v{b}"], [f"v{ob+2*rho+h}"])
                o.e = gB2[j]; o.dl = END; o.prio = gB2[j] + 6 + q * 0.01
                o.after += [(adds[2 * h], 0), (adds[2 * h + 1], 0)]
                if q - 4 in lastst: o.after.append((lastst[q - 4], 1))
                if prev: o.after.append((prev, 0))
                prev = o
                cvs.append(o)
            lastcv[q] = cvs[-1]
            vo = V_O1 if rho else V_O0
            o = Op("VM", f"buffer_store_dwordx2 {rg('v',ob+2*rho,2)}, v{vo}, s[{S_O}:{S_O+3}], s{S_OS} offen {st}".rstrip(),
                   rd=rl("v", ob + 2 * rho, 2) + [f"v{vo}"], pre=(f"s{S_OS}", f"s_mov_b32 s{S_OS}, {tile*147456}"), cls="ST", tag=("O", tile))
            o.e = gB2[j]; o.dl = END; o.prio = gB2[j] + 7 + q * 0.01
            o.after += [(c, 0) for c in cvs]
            if rho: o.after.append((lastst[q], 0))
            elif q - 1 in lastst: o.after.append((lastst[q - 1], 0))
            lastst[q] = o
            ops += cvs + [o]

    pend = sorted(ops, key=lambda o: (o.prio, o.id))
    cur = {}
    for o in G[0].ops:
        if o.pre: cur[o.pre[0]] = o.pre[1]
    lastvm = -99; lastdma = -99
    for gi, g in enumerate(G):
        if g.free == "fixed": continue
        room = 2
        sc_used = g.fragwait or g.bar
        if g.bar and not g.free: room -= 1
        m0user = None; nat = 0; osuser = None
        while True:
            pick = None
            for o in pend:
                if o.e > gi: continue
                if g.free:
                    if g.free == "flex" and o.dl > gi: continue
                    if any(a.gap is None for a, d in o.after): continue
                    if g.name == "B0" and not (o.tag and o.tag[0] == "F" and o.tag[1] < D) and o.prio > -400: continue
                    pick = o; break
                if any(a.gap is None or a.gap + d > gi for a, d in o.after): continue
                cost = 1
                chg = o.pre and cur.get(o.pre[0]) != o.pre[1]
                if chg and sc_used: cost = 2
                if cost > room: continue
                if o.pre and o.pre[0] == "m0" and m0user is not None and (chg or True) and m0user != o.pre[1]: continue
                if o.pre and o.pre[0] != "m0" and osuser is not None and osuser != o.pre[1]: continue
                urgent = o.dl - gi <= 2
                if o.cls == "AT" and nat >= 1 and not urgent: continue
                if o.kind == "VM" and gi - lastvm < vmsp and not urgent: continue
                if o.cls == "DMA" and gi >= st2[0] and gi - lastdma < dmasp and not urgent: continue
                pick = o; break
            if pick is None: break
            o = pick
            pend.remove(o); o.gap = gi; g.ops.append(o)
            chg = o.pre and cur.get(o.pre[0]) != o.pre[1]
            if o.pre:
                cur[o.pre[0]] = o.pre[1]
                if o.pre[0] == "m0": m0user = o.pre[1]
                else: osuser = o.pre[1]
            if not g.free:
                room -= 1
                if chg:
                    if sc_used: room -= 1
                    sc_used = True
            if o.cls == "AT": nat += 1
            if o.kind == "VM": lastvm = gi
            if o.cls == "DMA": lastdma = gi
            if room <= 0 and not g.free: break
    assert not pend, [(o.text, o.e, o.dl) for o in pend[:10]]
    late = [o for o in ops if o.gap > o.dl]
    assert not late, [(o.text, o.gap, o.dl, G[o.gap].name) for o in late[:10]]

    def dropped(o):
        if "s" in drop and o.cls == "ST": return True
        if "d" in drop and o.tag and o.tag[0] == "P" and o.tag[1] >= 2: return True
        if "x" in drop and (o.cls == "AT" or o.text.startswith("ds_read2st64")): return True
        if "v" in drop and o.kind == "V" and o.gap >= st2[0]: return True
        if "f" in drop and o.tag and o.tag[0] == "F" and o.gap >= st2[0]: return True
        if "W" in drop and o.tag and o.tag[0] == "W" and o.tag[1] >= 3: return True
        if "X" in drop and o.tag and o.tag[0] == "X" and o.tag[1] >= 3: return True
        if "q" in drop and o.kind == "V" and start[0] <= o.gap < st2[0]: return True
        return False
    for gi, g in enumerate(G):
        g.ops = [o for o in g.ops if not dropped(o)]
        if "b" in drop and gi >= st2[0] and g.mfma: g.bar = False
        if "B" in drop and gi < st2[0] and g.mfma: g.bar = False
    Lz = []
    cur = {}
    for gi, g in enumerate(G):
        if g.label: Lz.append(Op("L", g.label))
        if g.mfma: Lz.append(g.mfma)
        if g.stamp: Lz.append(S(stamp_text()))
        if g.free:
            if g.bar: Lz.append(Op("B", "s_barrier"))
            for o in g.ops:
                if o.pre and cur.get(o.pre[0]) != o.pre[1]:
                    cur[o.pre[0]] = o.pre[1]; Lz.append(Op("S", o.pre[1], wr=[o.pre[0]]))
                Lz.append(o)
        else:
            lst = g.ops
            if len(lst) == 2 and lst[0].pre and lst[0].pre[0] == "m0" and not lst[1].pre and not any(a is lst[0] for a, d in lst[1].after) \
               and not (lst[0].kind == lst[1].kind) and not (set(lst[0].rd) & set(lst[1].wr)):
                lst = [lst[1], lst[0]]
            for o in lst:
                if o.pre and cur.get(o.pre[0]) != o.pre[1]:
                    cur[o.pre[0]] = o.pre[1]; Lz.append(Op("S", o.pre[1], wr=[o.pre[0]]))
            wm = Op("WM", ""); wm.look = list(lst) + ([G[gi + 1].mfma] if gi + 1 < len(G) and G[gi + 1].mfma else [])
            Lz.append(wm)
            if g.bar:
                b = Op("B", "s_barrier"); Lz.append(b); wm.look.append(b)
            Lz += lst
    acc = [(k, o) for k, o in enumerate(Lz) if o.lds]
    bars = [k for k, o in enumerate(Lz) if o.kind == "B"]
    import bisect
    for y in range(len(acc)):
        ky, oy = acc[y]
        bi = bisect.bisect_left(bars, ky) - 1
        for x in range(y):
            kx, ox = acc[x]
            if ox.lds[0] == "r" and oy.lds[0] == "r": continue
            if ox.lds[0] == "w" and oy.lds[0] == "w": continue
            if ox.lds[3] and oy.lds[3]: continue
            if ox.lds[2] <= oy.lds[1] or oy.lds[2] <= ox.lds[1]: continue
            if drop and not (bi >= 0 and bars[bi] > kx): continue
            assert bi >= 0 and bars[bi] > kx, ("LDS race", ox.text, G[ox.gap].name, oy.text, G[oy.gap].name)
            Lz[bars[bi]].needs.append(ox)
    issued = {"VM": 0, "DS": 0}; done = {"VM": -1, "DS": -1}; CAP = {"VM": 63, "DS": 15}
    pendreg = {}
    out = []
    inl = 0
    def needs_of(o):
        n = {"VM": -1, "DS": -1}
        for r in o.rd + o.wr:
            if r in pendreg:
                q, i = pendreg[r]; n[q] = max(n[q], i)
        for x in o.needs:
            if hasattr(x, "qi"): n[x.kind] = max(n[x.kind], x.qi)
        return n
    def dowait(n):
        w = []
        for q, nm in (("VM", "vmcnt"), ("DS", "lgkmcnt")):
            if n[q] > done[q]:
                c = min(issued[q] - 1 - n[q], CAP[q])
                done[q] = issued[q] - 1 - c
                w.append(f"{nm}({c})")
        if w: out.append(Op("S", "s_waitcnt " + " ".join(w)))
        return bool(w)
    for o in Lz:
        if o.kind == "WM":
            n = {"VM": -1, "DS": -1}
            for x in o.look:
                m = needs_of(x)
                for q in n: n[q] = max(n[q], m[q])
            dowait(n); continue
        if dowait(needs_of(o)): inl += 1
        if o.kind in ("VM", "DS"):
            o.qi = issued[o.kind]; issued[o.kind] += 1
            for r in o.wr: pendreg[r] = (o.kind, o.qi)
        out.append(o)
    fin = []
    t = 0
    wV = {}; wM = {}; wS = {}
    nops = 0
    for o in out:
        need = 0
        if o.kind == "M":
            for r in o.rd: need = max(need, wV.get(r, -99) + 3 - t)
        elif o.kind in ("V", "DS", "VM"):
            for r in o.rd + o.wr: need = max(need, wM.get(r, -99) + 10 - t)
            if o.pre and o.pre[0] == "m0": need = max(need, wS.get("m0", -99) + 2 - t)
        if need > 0:
            fin.append(Op("S", f"s_nop {need-1}")); t += need; nops += 1
        if o.kind == "V":
            for r in o.wr: wV[r] = t
        elif o.kind == "M":
            for r in o.wr: wM[r] = t
        elif o.kind == "S":
            for r in o.wr: wS[r] = t
        fin.append(o)
        t += 2 if o.kind == "M" else 1
    if verbose:
        print("inline waits", inl, "nops", nops, "instr", len(fin), file=sys.stderr)
        for gi, g in enumerate(G):
            if g.free: print(gi, g.name, len(g.ops), file=sys.stderr)

    L = []
    A = L.append
    A("; @launch grid=(252,1,1) block=(256,1,1) lds=163840")
    A('.amdgcn_target "amdgcn-amd-amdhsa--gfx950"')
    A(".text"); A(f".globl {NAME}"); A(".p2align 8"); A(f".type {NAME},@function"); A(f"{NAME}:")
    for o in fin: A(o.text if o.kind == "L" else "  " + o.text)
    if stamps:
        A("  " + stamp_text()); A("  s_waitcnt vmcnt(0)"); A("  " + stamp_text()); A("  " + stamp_text(True))
        n = nst[0]
        for x in ["s_waitcnt lgkmcnt(0)", "s_cmp_lg_u32 s3, 0", "s_cbranch_scc1 L_end",
                  "s_mov_b32 s20, s16", "s_and_b32 s21, s17, 0xffff", "s_mov_b32 s22, 0x100000", "s_mov_b32 s23, 0x20000",
                  f"s_mul_i32 s18, s2, {n*8}", "v_mov_b32 v2, s18", "s_mov_b64 exec, 1"]: A("  " + x)
        for k in range(n):
            for x in [f"v_mov_b32 v4, s{STREGS[k]}", f"v_mov_b32 v5, s{STREGS[k]+1}",
                      f"buffer_store_dwordx2 v[4:5], v2, s[20:23], 0 offen offset:{8*k}", "s_nop 1"]: A("  " + x)
        A("  s_waitcnt vmcnt(0)")
    A("L_end:"); A("  s_endpgm")
    A('.section .rodata,"a"'); A(".p2align 6"); A(f".amdhsa_kernel {NAME}")
    A(f"  .amdhsa_next_free_vgpr {256 + A_FR + NA*4}")
    A("  .amdhsa_next_free_sgpr 102")
    A("  .amdhsa_accum_offset 256")
    A("  .amdhsa_group_segment_fixed_size 0")
    A("  .amdhsa_kernarg_size 56")
    A("  .amdhsa_user_sgpr_count 2")
    A("  .amdhsa_user_sgpr_kernarg_segment_ptr 1")
    A("  .amdhsa_system_sgpr_workgroup_id_x 1")
    A("  .amdhsa_float_denorm_mode_32 3")
    A(".end_amdhsa_kernel")
    return "\n".join(L) + "\n", nst[0]

if __name__ == "__main__":
    ap = argparse.ArgumentParser()
    ap.add_argument("-o", default="k2.s")
    for k, d in dict(R=8, rotA=4, rotB=2, D=3, NA=5, b1=8, bpos=20, nb1=2, vmsp=2, dmasp=4, nacc=3, recvd=5, p1per=1, w2all=0, w2sp=2, pk=0).items():
        ap.add_argument("--" + k, type=int, default=d)
    ap.add_argument("--stamps", action="store_true")
    ap.add_argument("-v", dest="verbose", action="store_true")
    for k in ("st", "lw", "lx", "lx2", "drop"): ap.add_argument("--" + k, default="")
    a = vars(ap.parse_args())
    o = a.pop("o")
    s, n = gen(**a)
    open(o, "w").write(s)
    print(o, "lines", s.count("\n"), "stamps", n)
```

```python
import sys, argparse
NAME = "standalone__w4a16_gemm_dequant__prompt_kernel"
INF = 10 ** 9

def rl(p, b, n): return [f"{p}{b+i}" for i in range(n)]
def rg(p, b, n): return f"{p}[{b}:{b+n-1}]" if n > 1 else f"{p}{b}"

class Op:
    cnt = 0
    def __init__(s, kind, text, rd=(), wr=(), pre=None, lds=None, cls=None, e=0, dl=INF, prio=None, after=(), tag=None, grp=None):
        s.kind = kind; s.text = text; s.rd = list(rd); s.wr = list(wr); s.pre = pre; s.lds = lds; s.cls = cls
        s.e = e; s.dl = dl; s.prio = dl if prio is None else prio; s.after = list(after); s.tag = tag; s.grp = grp
        s.gap = None; s.needs = []; s.id = Op.cnt; Op.cnt += 1

class Gap:
    def __init__(s, mfma=None, free=None, bar=False, name=""):
        s.mfma = mfma; s.free = free; s.bar = bar; s.ops = []; s.name = name; s.stamp = False; s.label = None
        s.fragwait = False

def gen(R=8, rotA=4, rotB=2, D=3, NA=5, b1=8, bpos=20, nb1=2, vmsp=2, dmasp=4, stamps=False, st="", lw="", lx="", lx2="",
        nacc=3, skip18=True, verbose=False, recvd=5, p1per=1, w2all=0, w2sp=2, drop='', pk=0, ta='', tb='0000', mix='1', wb='', cpf=0):
    NT, NST = 19, 9
    NS = NT - R
    assert R % 2 == 0 and 4 <= R <= 10
    RING = 24576
    SLOT0 = 53248
    def ringbuf(s): return RING + (s % 3) * R * 2048
    def slot(n): return SLOT0 + ((n + 2) % 6) * 18432
    assert RING + 3 * R * 2048 <= slot(0)
    S_X, S_W, S_S, S_Z, S_O = 20, 24, 28, 32, 36
    S_WOFS, S_XOFS, S_P2, S_D1, S_D9 = 40, 48, 56, 66, 75
    S_M0X, S_M0W, S_C24, S_MSK, S_OS, S_NTL = 84, 85, 86, 87, 88, 89
    STREGS = [90, 92, 94, 96, 98, 100, 4, 6, 8, 10, 12, 14, 66, 68]
    V_W, V_X, V_X2, V_R, V_O0, V_O1, V_TR, V_TW, V_E, V_S = 2, 3, 4, 5, 8, 9, 10, 11, 12, 13
    V_SZ, V_RAW, V_F, V_T = 16, 32, 96, 240
    V_EW = 0
    def raw(p, j): return V_RAW + p * 32 + j * 4
    def F(i, u): return V_F + (i * 4 + u) * 4
    def acc1(t, u): return (t * 4 + u) * 4
    A_FR = 16 * R
    def fr(f): return A_FR + (f % NA) * 4
    def acc2(n, u): return V_RAW + (n % nacc) * 16 + u * 4
    V_RECV = V_RAW + 48
    nst = [0]
    def stamp_text(real=False):
        r = STREGS[nst[0]]; nst[0] += 1
        return f"s_memrealtime s[{r}:{r+1}]" if real else f"s_memtime s[{r}:{r+1}]"

    G = []
    def S(t): return Op("S", t)
    def V(t, rd=(), wr=(), **k): return Op("V", t, rd, wr, **k)
    def fixed(ops, name="", bar=False):
        g = Gap(free="fixed", name=name, bar=bar); g.ops = list(ops)
        for o in g.ops: o.gap = len(G)
        G.append(g); return g
    def txt(lines):
        out = []
        for x in lines:
            out.append(Op("V" if x.startswith("v_") else "S", x))
        return out

    def ldW(i, j):
        r = raw(i & 1, j)
        so = "0" if j == 0 else f"s{S_WOFS+j}"
        return Op("VM", f"buffer_load_dwordx4 {rg('v',r,4)}, v{V_W}, s[{S_W}:{S_W+3}], {so} offen {lw}".rstrip(),
                  rd=[f"v{V_W}"], wr=rl("v", r, 4), cls="VM", tag=("W", i, j))
    def ldSZ(m):
        r = V_T + 4 * m
        return [Op("VM", f"buffer_load_dwordx2 {rg('v',r,2)}, v{V_S+m}, s[{S_S}:{S_S+3}], 0 offen", rd=[f"v{V_S+m}"], wr=rl("v", r, 2), cls="VM"),
                Op("VM", f"buffer_load_dwordx2 {rg('v',r+2,2)}, v{V_S+m}, s[{S_Z}:{S_Z+3}], 0 offen", rd=[f"v{V_S+m}"], wr=rl("v", r + 2, 2), cls="VM")]
    def ldX(s, e):
        so = f"s{S_XOFS+e}" if e else "0"
        b = ringbuf(s)
        return Op("VM", f"buffer_load_dwordx4 v{V_X}, s[{S_X}:{S_X+3}], {so} offen offset:{(e&3)*1024} {lx} lds".rstrip(),
                  rd=[f"v{V_X}"], pre=("m0", f"s_add_u32 m0, s{S_M0X}, {b + (e>>2)*4096}"), lds=("w", b, b + R * 2048, False),
                  cls="DMA", tag=("X", s, e), grp=("X", s))
    def ldP(p, e):
        b = slot(2 * p) + e * 4096
        return Op("VM", f"buffer_load_dwordx4 v{V_X2}, s[{S_X}:{S_X+3}], s{S_P2+e} offen {lx2} lds".rstrip(),
                  rd=[f"v{V_X2}"], pre=("m0", f"s_add_u32 m0, s{S_M0W}, {b}"), lds=("w", b, b + 4096, False),
                  cls="DMA", tag=("P", p, e), grp=("P", p))
    def advW(i): return V(f"v_lshl_add_u32 v{V_W}, s{S_D9+i}, 17, v{V_W}", [f"v{V_W}"], [f"v{V_W}"])
    def advX(i): return V(f"v_lshl_add_u32 v{V_X}, s{S_D1+i}, 7, v{V_X}", [f"v{V_X}"], [f"v{V_X}"])
    def prep(m, t):
        r = V_T + 4 * m
        o = []
        for h in range(2):
            o.append(V(f"v_lshlrev_b32 v{t+2*h}, 16, v{r+h}", [f"v{r+h}"], [f"v{t+2*h}"]))
            o.append(V(f"v_and_b32 v{t+2*h+1}, s{S_MSK}, v{r+h}", [f"v{r+h}"], [f"v{t+2*h+1}"]))
        for h in range(2):
            o.append(V(f"v_lshlrev_b32 v{t+4+2*h}, 16, v{r+2+h}", [f"v{r+2+h}"], [f"v{t+4+2*h}"]))
            o.append(V(f"v_and_b32 v{t+4+2*h+1}, s{S_MSK}, v{r+2+h}", [f"v{r+2+h}"], [f"v{t+4+2*h+1}"]))
        for u in range(4):
            o.append(V(f"v_mul_f32_e64 v{t+4+u}, -v{t+4+u}, v{t+u}", [f"v{t+4+u}", f"v{t+u}"], [f"v{t+4+u}"]))
        for u in range(4):
            o.append(V(f"v_mul_f32 v{t+u}, s{S_C24}, v{t+u}", [f"v{t+u}"], [f"v{t+u}"]))
        o.append(Op("DS", f"ds_write_b128 v{V_TW}, {rg('v',t,4)} offset:{m*2048}", rd=[f"v{V_TW}"] + rl("v", t, 4), lds=("w", 0, 24576, True)))
        o.append(Op("DS", f"ds_write_b128 v{V_TW}, {rg('v',t+4,4)} offset:{m*2048+256}", rd=[f"v{V_TW}"] + rl("v", t + 4, 4), lds=("w", 0, 24576, True)))
        return o
    def rdSZ(i):
        z = V_SZ + (i & 1) * 8
        return [Op("DS", f"ds_read_b128 {rg('v',z,4)}, v{V_TR} offset:{i*512}", rd=[f"v{V_TR}"], wr=rl("v", z, 4), lds=("r", 0, 24576, True)),
                Op("DS", f"ds_read_b128 {rg('v',z+4,4)}, v{V_TR} offset:{i*512+256}", rd=[f"v{V_TR}"], wr=rl("v", z + 4, 4), lds=("r", 0, 24576, True))]
    def deq(i, jj):
        p = i & 1; z = V_SZ + p * 8
        fm = []; cv = []
        for j in (2 * jj, 2 * jj + 1):
            for u in range(4):
                r = raw(p, j) + u
                fm.append(V(f"v_fma_mix_f32 v{r}, v{r}, v{z+u}, v{z+4+u} op_sel_hi:[1,0,0]", [f"v{r}", f"v{z+u}", f"v{z+4+u}"], [f"v{r}"]))
        for u in range(4):
            a, b = raw(p, 2 * jj) + u, raw(p, 2 * jj + 1) + u
            cv.append(V(f"v_cvt_pk_bf16_f32 v{F(i,u)+jj}, v{a}, v{b}", [f"v{a}", f"v{b}"], [f"v{F(i,u)+jj}"]))
        return fm, cv
    def rdF(f, addr):
        w, off = divmod(addr, 65536)
        a = fr(f)
        return Op("DS", f"ds_read_b128 {rg('a',a,4)}, v{V_R+w} offset:{off}", rd=[f"v{V_R+w}"], wr=rl("a", a, 4), lds=("r", addr, addr + 2048, False), tag=("F", f))
    def mfma(dp, d, f, fb, first):
        dd = rg(dp, d, 4)
        return Op("M", f"v_mfma_f32_16x16x32_bf16 {dd}, {rg('a',fr(f),4)}, {rg('v',fb,4)}, {'0' if first else dd}",
                  rd=rl("a", fr(f), 4) + rl("v", fb, 4) + ([] if first else rl(dp, d, 4)), wr=rl(dp, d, 4))

    if ta:
        A_ = sum(int(c) << (4 * i) for i, c in enumerate(ta)); B_ = sum(int(c) << (4 * i) for i, c in enumerate(tb))
        rot = ["s_lshl_b32 s40, s15, 2", f"s_lshr_b32 s40, {A_}, s40", "s_and_b32 s40, s40, 15",
               "s_and_b32 s41, s18, 3", "s_lshl_b32 s41, s41, 2", f"s_lshr_b32 s41, {B_}, s41", "s_and_b32 s41, s41, 15",
               "s_add_u32 s40, s40, s41", "s_sub_u32 s41, s40, 9", "s_min_u32 s19, s40, s41"]
    else:
        rot = [f"s_mul_i32 s40, s15, {rotA}", f"s_mul_i32 s41, s18, {rotB}", "s_add_u32 s40, s40, s41", "s_mul_i32 s41, s40, 57",
               "s_lshr_b32 s41, s41, 9", "s_mul_i32 s41, s41, 9", "s_sub_u32 s19, s40, s41"]
    P = []
    if stamps: P += [S(stamp_text(True)), S(stamp_text())]
    P += txt([
        "s_cmp_ge_u32 s2, 252",
        "s_cbranch_scc1 L_end",
        "s_load_dwordx8 s[4:11], s[0:1], 0",
        "s_load_dwordx2 s[12:13], s[0:1], 32"])
    if stamps: P += txt(["s_load_dwordx2 s[16:17], s[0:1], 48"])
    if cpf:
        P += txt(["s_getpc_b64 s[40:41]"]) + [Op("L", "L_pc:")] + txt(["s_and_b32 s41, s41, 0xffff", "s_mov_b32 s42, L_end-L_pc", "s_mov_b32 s43, 0x20000",
                  f"v_lshlrev_b32 v15, {cpf}, v0"])
        P += [Op("VM", "buffer_load_dword v255, v15, s[40:43], 0 offen", rd=["v15"], wr=["v14x"])]
        P += txt(["s_nop 4"])
    P += txt([
        "v_lshrrev_b32 v16, 6, v0",
        "v_and_b32 v1, 63, v0",
        "v_readfirstlane_b32 s3, v16",
        "s_and_b32 s14, s2, 7",
        "s_lshr_b32 s15, s2, 3",
        "s_lshl_b32 s18, s14, 2",
        "s_and_b32 s19, s15, 3",
        "s_add_u32 s18, s18, s19",
        "s_lshr_b32 s19, s15, 2",
        "s_and_b32 s40, s14, 3",
        "s_add_u32 s40, s40, 32",
        "s_and_b32 s41, s14, 4",
        "s_add_u32 s41, s41, s15",
        "s_sub_u32 s41, s41, 28",
        "s_cmp_ge_u32 s15, 28",
        "s_cselect_b32 s18, s40, s18",
        "s_cselect_b32 s15, s41, s19",
        *rot,
        "s_lshr_b32 s64, s3, 1",
        "s_and_b32 s65, s3, 1",
        "s_lshl_b32 s18, s18, 7",
        "s_lshl_b32 s40, s65, 6",
        "s_add_u32 s18, s18, s40",
        "v_and_b32 v16, 15, v1",
        "v_lshrrev_b32 v17, 4, v1",
        f"s_mov_b32 s{S_WOFS+1}, 18432",
        "s_mul_i32 s40, s64, 9216",
        "s_lshl1_add_u32 s40, s18, s40",
        "v_lshl_add_u32 v18, v16, 3, s40",
        "v_add_u32 v19, s19, v17",
        "v_add_u32 v20, -9, v19",
        "v_min_u32 v20, v19, v20",
        f"v_mad_u32_u24 v{V_S}, v20, s{S_WOFS+1}, v18",
        "s_mul_i32 s42, s19, 1179648",
        "s_mul_i32 s43, s64, 589824",
        "s_lshl2_add_u32 s43, s18, s43",
        "s_add_u32 s42, s42, s43",
        f"v_mul_u32_u24 v{V_W}, 147456, v17",
        f"v_lshl_add_u32 v{V_W}, v16, 4, v{V_W}",
        f"v_add_u32 v{V_W}, s42, v{V_W}",
        f"s_mov_b32 s{S_W+2}, {576*4608*4}",
        f"s_mov_b32 s{S_S+2}, {18*4608*2}",
        f"s_mov_b32 s{S_Z+2}, {18*4608*2}",
        f"s_mov_b32 s{S_W+3}, 0x20000",
        f"s_mov_b32 s{S_S+3}, 0x20000",
        f"s_mov_b32 s{S_Z+3}, 0x20000"])
    P += txt([f"s_mov_b32 s{S_WOFS+k}, {k*18432}" for k in range(2, 8)])
    P += txt([
        "s_mul_i32 s14, s15, 18",
        "s_min_u32 s40, s15, 2",
        "s_add_u32 s14, s14, s40",
        "s_cmp_lt_u32 s15, 2",
        f"s_cselect_b32 s{S_NTL}, 19, 18",
        "v_lshrrev_b32 v21, 3, v1",
        "v_lshrrev_b32 v22, 4, v1",
        "v_and_b32 v22, 2, v22",
        "v_lshrrev_b32 v23, 2, v1",
        "v_and_b32 v23, 4, v23",
        "v_and_b32 v24, 7, v1",
        "v_or3_b32 v22, v22, v23, 0",
        "v_xor_b32 v22, v22, v24",
        "v_mul_u32_u24 v21, 1152, v21",
        "v_lshl_add_u32 v21, v22, 4, v21",
        f"s_mul_i32 s40, s3, {(R//2)*9216}",
        "s_lshl_b32 s15, s19, 7",
        "s_add_u32 s40, s40, s15",
        f"v_add_u32 v{V_X}, s40, v21",
        f"s_mul_i32 s{S_M0X}, s3, {(R//2)*1024}",
        f"s_mul_i32 s{S_X+2}, s{S_NTL}, 18432",
        f"s_mov_b32 s{S_X+3}, 0x20000",
        "s_mul_i32 s15, s14, 18432",
        f"s_cmp_eq_u32 s19, 8",
        f"s_cselect_b32 s{S_D1+1}, -8, 1",
        f"s_cselect_b32 s{S_D9+1}, -72, 9"])
    P += txt([f"s_mov_b32 s{S_XOFS+e}, {e*9216-(e&3)*1024}" for e in range(1, R // 2)])
    P += txt([
        "s_waitcnt lgkmcnt(0)",
        f"s_mov_b32 s{S_S}, s8", f"s_and_b32 s{S_S+1}, s9, 0xffff",
        f"s_mov_b32 s{S_Z}, s10", f"s_and_b32 s{S_Z+1}, s11, 0xffff",
        f"s_mov_b32 s{S_W}, s6", f"s_and_b32 s{S_W+1}, s7, 0xffff"])
    P += ldSZ(0)
    P += [ldW(0, j) for j in range(8)]
    P += txt([f"s_add_u32 s{S_X}, s4, s15", f"s_addc_u32 s{S_X+1}, s5, 0", f"s_and_b32 s{S_X+1}, s{S_X+1}, 0xffff"])
    P += [ldX(0, e) for e in range(R // 2)]
    P += [advW(1), advX(1)]
    P += [ldW(1, j) for j in range(8)]
    P += [ldX(1, e) for e in range(R // 2)]
    for m in (1, 2):
        P += txt([f"v_add_u32 v19, 4, v19", "v_add_u32 v20, -9, v19", "v_min_u32 v20, v19, v20",
                  f"v_mad_u32_u24 v{V_S+m}, v20, s{S_WOFS+1}, v18"])
        P += ldSZ(m)
    if stamps: P += [S(stamp_text())]
    P += txt([
        "s_mul_i32 s15, s14, 147456",
        f"s_add_u32 s{S_O}, s12, s15", f"s_addc_u32 s{S_O+1}, s13, 0", f"s_and_b32 s{S_O+1}, s{S_O+1}, 0xffff",
        f"s_mul_i32 s{S_O+2}, s{S_NTL}, 147456",
        f"s_mov_b32 s{S_O+3}, 0x20000",
        f"s_mov_b32 s{S_C24}, 0x4b800000", f"s_mov_b32 s{S_MSK}, 0xffff0000",
        f"s_lshl_b32 s{S_M0W}, s3, 10",
        "s_mul_i32 s40, s3, 6144",
        f"v_lshl_add_u32 v{V_TR}, v16, 4, s40",
        f"v_lshl_add_u32 v{V_TW}, v17, 9, v{V_TR}",
        "s_mul_i32 s40, s65, 9216",
        f"s_add_u32 s40, s40, {R*18432}",
        f"v_add_u32 v{V_X2}, s40, v21",
        "s_mul_i32 s40, s64, 18432",
        "s_lshl1_add_u32 s40, s18, s40",
        f"v_mul_u32_u24 v{V_O0}, 36864, v17",
        f"v_lshl_add_u32 v{V_O0}, v16, 3, v{V_O0}",
        f"v_add_u32 v{V_O0}, s40, v{V_O0}",
        f"v_add_u32 v{V_O1}, 9216, v{V_O0}",
        f"s_xor_b32 s40, s{S_M0W}, 2048",
        f"v_lshl_add_u32 v{V_E}, v1, 2, s40",
        f"v_xor_b32 v{V_EW}, 0x800, v{V_E}",
        "s_lshl_b32 s40, s64, 1",
        "v_xor_b32 v22, s40, v16",
        "v_lshrrev_b32 v23, 1, v22",
        "v_and_b32 v23, 2, v23",
        "v_lshlrev_b32 v24, 1, v22",
        "v_and_b32 v24, 4, v24",
        "s_lshl_b32 s40, s64, 2",
        "v_add_u32 v25, s40, v17",
        "v_xor_b32 v23, v23, v24",
        "v_xor_b32 v23, v23, v25",
        "v_lshlrev_b32 v23, 4, v23",
        f"v_lshl_add_u32 v{V_R}, v22, 7, v23",
        f"v_add_u32 v{V_R+1}, 0x10000, v{V_R}",
        f"v_add_u32 v{V_R+2}, 0x20000, v{V_R}"])
    for i in range(2, NST):
        P += txt([f"s_cmp_eq_u32 s19, {9-i}", f"s_cselect_b32 s{S_D1+i}, -8, 1", f"s_cselect_b32 s{S_D9+i}, -72, 9"])
    P += txt(["s_add_u32 s14, s19, s64"])
    for e in range(9):
        r = S_P2 + e
        if e == 4:
            P += txt(["s_add_u32 s15, s19, 8", "s_sub_u32 s40, s19, 1", "s_min_u32 s15, s15, s40", "s_lshl_b32 s15, s15, 7",
                      "s_lshl_b32 s40, s19, 7", "s_add_u32 s40, s40, 18432", "s_cmp_eq_u32 s64, 0", f"s_cselect_b32 s{S_OS}, s15, s40"])
            continue
        c = 2 * e if e < 4 else 2 * e - 9
        P += txt([f"s_add_u32 s15, s14, {c}", f"s_sub_u32 s40, s15, 9", "s_min_u32 s15, s15, s40"])
        if e < 4: P += txt([f"s_lshl_b32 s{r}, s15, 7"])
        else: P += txt(["s_lshl_b32 s15, s15, 7", f"s_add_u32 s{r}, s15, 18432"])
    P += txt([f"s_mov_b32 s{S_P2+4}, s{S_OS}"])
    P += prep(0, F(8, 0))
    P += rdSZ(0) + rdSZ(1)
    P.append(advW(2))
    first = True
    lastW = None
    for jj in range(4):
        fm, cv = deq(0, jj)
        P += fm
        if first and stamps: P += [S(stamp_text())]
        first = False
        P += cv + [ldW(2, 2 * jj), ldW(2, 2 * jj + 1)]
        lastW = P[-1]
    lastX = [o for o in P if o.tag == ("X", 1, R // 2 - 1)][0]
    fixed(P, "prologue")

    ops = []
    gB1 = {}; start = {}; flex = {}
    g = Gap(free="open", bar=True, name="B0"); gB1[0] = len(G); G.append(g)
    if stamps: g.stamp = True
    firstuse = {}; lastuse = {}; lastM = {}
    for s in range(NST):
        start[s] = len(G)
        for t in range(R):
            f = s * R + t
            for u in range(4):
                gp = Gap(mfma("a", acc1(t, u), f, F(s, u), s == 0), name=f"s{s}t{t}u{u}")
                gp.fragwait = (u == 3)
                if u == 0: firstuse[f] = len(G)
                lastuse[f] = len(G)
                lastM[("a", t, u)] = len(G)
                G.append(gp)
        if stamps and s in (4, 8): G[start[s]].stamp = True
        if s < NST - 1:
            flex[s] = len(G); G.append(Gap(free="flex", name=f"flex{s}"))
            gB1[s + 1] = flex[s] - b1
            G[gB1[s + 1]].bar = True
    st2 = {}; gB2 = {}
    for n in range(NS):
        st2[n] = len(G)
        for k in range(9):
            f = 9 * R + 9 * n + k
            for u in range(4):
                gp = Gap(mfma("v", acc2(n, u), f, F(k, u), k == 0), name=f"n{n}k{k}u{u}")
                gp.fragwait = (u == 3)
                if u == 0: firstuse[f] = len(G)
                lastuse[f] = len(G)
                lastM[("v", n, u)] = len(G)
                G.append(gp)
        gB2[n] = st2[n] + bpos
        G[gB2[n]].bar = True
    if stamps:
        G[st2[0]].stamp = True; G[st2[NS // 2]].stamp = True
    tail0 = len(G); G.append(Gap(free="open", name="tail0"))
    if stamps: G[tail0].stamp = True
    gB2[NS] = len(G); G.append(Gap(free="open", bar=True, name="tail1"))
    END = len(G) - 1

    NF = 9 * R + 9 * NS
    prevF = None
    for f in range(NF):
        if f < 9 * R:
            s, t = divmod(f, R); addr = ringbuf(s) + t * 2048; gb = gB1[s]
            nextb = gB1.get(s + 1, INF)
        else:
            n, k = divmod(f - 9 * R, 9); addr = slot(n) + k * 2048
            gb = gB1[8] if n == 0 else gB2[n - 1]
            nextb = INF
        o = rdF(f, addr)
        e = max(gb, firstuse[f] - 4 * D)
        if f >= NA: e = max(e, lastuse[f - NA])
        o.dl = min(firstuse[f] - 1, nextb - 3)
        if f < D: e = gb
        o.e = min(e, o.dl)
        assert f < NA or o.e >= lastuse[f - NA], (f, o.e, lastuse[f - NA])
        o.prio = -1000 + f
        if prevF: o.after.append((prevF, 0))
        prevF = o
        ops.append(o)
    tabw = []
    for m, tmp in ((1, F(7, 0)), (2, F(6, 0))):
        pp = prep(m, tmp)
        for k, o in enumerate(pp):
            o.e = start[m - 1] + (4 * R - 24); o.dl = flex[m - 1]; o.prio = o.dl + 0.5
            if k: o.after.append((pp[k - 1], 0))
        tabw.append(pp[-1]); ops += pp
    lastfm = {}
    szr = {}
    for i in range(1, NST):
        chain = []
        if i + 2 < NST:
            a = advW(i + 2); a.after.append((lastW, 0)); chain.append(a)
        for jj in range(4):
            fm, cv = deq(i, jj)
            chain += fm + cv
            lastfm[i] = fm[-1]
            if i + 2 < NST:
                chain += [ldW(i + 2, 2 * jj), ldW(i + 2, 2 * jj + 1)]
                lastW = chain[-1]
        prev = None
        for k, o in enumerate(chain):
            o.e = start[i - 1]; o.dl = flex[i - 1]; o.prio = o.dl
            if o.kind == "VM":
                o.after.append((prev, 0)); o.prio = o.dl - 0.5
                if chain[k - 1].kind == "VM": o.after.append((chain[k - 1], 0))
            else:
                if prev: o.after.append((prev, 0))
                prev = o
            if i in szr and o.kind == "V":
                for z in szr[i]: o.after.append((z, 4))
        ops += chain
        if i + 1 < NST:
            z = rdSZ(i + 1)
            for o in z:
                o.e = start[i - 1] + 4; o.dl = flex[i - 1]; o.prio = start[i - 1] + 2 * R
                if i - 1 in lastfm: o.after.append((lastfm[i - 1], 0))
                if i + 1 >= 4: o.after.append((tabw[(i + 1) // 4 - 1], 0))
            szr[i + 1] = z; ops += z
    for s in range(2, NST):
        a = advX(s); a.e = gB1[s - 2] - 2; a.after.append((lastX, 0)); a.prio = -500; a.dl = gB1[s - 1]
        ops.append(a); prev = a
        for e in range(R // 2):
            o = ldX(s, e); o.e = gB1[s - 2]; o.dl = gB1[s - 1] - 1; o.prio = -500; o.after.append((prev, 0)); prev = o
            ops.append(o)
        lastX = prev
    NPAIR = (NS + 1) // 2
    prev = lastX
    for p in range(NPAIR):
        if p:
            a = V(f"v_add_u32 v{V_X2}, 36864, v{V_X2}", [f"v{V_X2}"], [f"v{V_X2}"]); a.after.append((prev, 0)); a.prio = -400
            ops.append(a); prev = a
        ne = 9 if 2 * p + 1 < NS else 5
        for e in range(ne):
            o = ldP(p, e)
            if p == 0: o.e = start[6]
            elif p == 1: o.e = start[7]
            else: o.e = gB2[max(0, 2 * p - 5 if e < 4 else 2 * p - 4)]
            need = 2 * p if e <= 4 else 2 * p + 1
            o.dl = (gB1[8] if need == 0 else gB2[need - 1]) - 1
            o.prio = o.e - 300
            o.after.append((prev, 0)); prev = o
            if e == 0 and p: ops[-1].e = o.e - 2
            ops.append(o)
    units = []
    t1 = 0
    for j in range(NS + 1):
        if j >= 1: units.append(("v", j - 1, j))
        k = nb1 if j == 0 else p1per
        for _ in range(k):
            if t1 < R: units.append(("a", t1, j)); t1 += 1
    assert t1 == R
    rdone = {}; lastcv = {}; lastadd = {}; lastst = {}
    na = 0
    for q, (kp, idx, j) in enumerate(units):
        EB = (q % 6) * 8192
        base = acc1(idx, 0) if kp == "a" else acc2(idx, 0)
        tile = idx if kp == "a" else R + idx
        snd = []
        w2 = (kp == "a") or w2all
        for k in range(0, 8, 2 if w2 else 1):
            u, r = k >> 1, 2 + (k & 1)
            off = EB + (k >> 2) * 4096 + (k & 3) * 256
            ld = ("w", EB + (k >> 2) * 4096, EB + (k >> 2) * 4096 + 4096, False)
            x = base + 4 * u + r
            if w2:
                o = Op("DS", f"ds_write2st64_b32 v{V_EW}, {kp}{x}, {kp}{x+1} offset0:{off//256} offset1:{off//256+1}", rd=[f"v{V_EW}"] + rl(kp, x, 2),
                       lds=ld, cls="AT", grp=("E", q))
            else:
                o = Op("DS", f"ds_write_addtid_b32 {kp}{x} offset:{off}", rd=[f"{kp}{x}"], pre=("m0", f"s_mov_b32 m0, s{S_M0W}"),
                       lds=ld, cls="AT", grp=("E", q))
            o.e = max(lastM[(kp, idx, u)] + 4, gB1[8] if j == 0 else gB2[j - 1])
            o.e = min(o.e, tail0)
            o.dl = gB2[j] - (1 if j == NS else 2); o.prio = o.dl - 100 + (0 if kp == "v" else 1)
            if snd: o.after.append((snd[-1], w2sp if w2 else 0))
            snd.append(o)
        ops += snd
        rv = V_RECV + (q & 1) * 8
        dlf = st2.get(idx + nacc, END + 1) - 1 if kp == "v" else END
        dlf = min(dlf, gB2.get(j + 2, END))
        rcv = []
        for k in range(0, 8, 2):
            o0 = (EB + (k >> 2) * 4096 + (k & 3) * 256) // 256
            o = Op("DS", f"ds_read2st64_b32 {rg('v',rv+k,2)}, v{V_E} offset0:{o0} offset1:{o0+1}", rd=[f"v{V_E}"], wr=rl("v", rv + k, 2),
                   lds=("r", EB + (k >> 2) * 4096, EB + (k >> 2) * 4096 + 4096, False))
            o.e = gB2[j]; o.dl = min(dlf, gB2.get(j + 1, END + 3) - 3); o.prio = gB2[j] + q * 0.01
            if q - 2 in lastcv: o.after.append((lastcv[q - 2], 0))
            rcv.append(o)
        ops += rcv
        kept = []
        if kp == "a":
            kb = V_SZ + (na & 1) * 8
            for u in range(4):
                for r in range(2):
                    o = V(f"v_accvgpr_read_b32 v{kb+2*u+r}, a{base+4*u+r}", [f"a{base+4*u+r}"], [f"v{kb+2*u+r}"])
                    o.e = max(lastM[(kp, idx, u)] + 4, gB2[j] - 12); o.dl = dlf; o.prio = gB2[j] + 2 + q * 0.01
                    if ("a", na - 2) in lastadd: o.after.append((lastadd[("a", na - 2)], 0))
                    kept.append(o)
            ops += kept
        adds = []
        for u in range(4):
            src = V_SZ + (na & 1) * 8 + 2 * u if kp == "a" else base + 4 * u
            if pk:
                lst = [V(f"v_pk_add_f32 {rg('v',rv+2*u,2)}, {rg('v',src,2)}, {rg('v',rv+2*u,2)}", rl("v", src, 2) + rl("v", rv + 2 * u, 2), rl("v", rv + 2 * u, 2))]
            else:
                lst = [V(f"v_add_f32 v{rv+2*u+r}, v{src+r}, v{rv+2*u+r}", [f"v{src+r}", f"v{rv+2*u+r}"], [f"v{rv+2*u+r}"]) for r in range(2)]
            for o in lst:
                o.e = gB2[j]; o.dl = dlf; o.prio = gB2[j] + 4 + q * 0.01
                o.after.append((rcv[u], recvd))
                if kp == "a": o.after += [(kept[2 * u], 0), (kept[2 * u + 1], 0)]
                if adds: o.after.append((adds[-1], 0))
                adds.append(o)
        ops += adds
        if not pk: adds = adds[1::2]
        if kp == "a":
            lastadd[("a", na)] = adds[-1]; na += 1
        ob = V_T + (q & 3) * 4
        prev = None
        for rho in range(2):
            cvs = []
            for h in range(2):
                a, b = rv + 4 * h + rho, rv + 4 * h + 2 + rho
                o = V(f"v_cvt_pk_bf16_f32 v{ob+2*rho+h}, v{a}, v{b}", [f"v{a}", f"v{b}"], [f"v{ob+2*rho+h}"])
                o.e = gB2[j]; o.dl = END; o.prio = gB2[j] + 6 + q * 0.01
                o.after += [(adds[2 * h], 0), (adds[2 * h + 1], 0)]
                if q - 4 in lastst: o.after.append((lastst[q - 4], 1))
                if prev: o.after.append((prev, 0))
                prev = o
                cvs.append(o)
            lastcv[q] = cvs[-1]
            vo = V_O1 if rho else V_O0
            o = Op("VM", f"buffer_store_dwordx2 {rg('v',ob+2*rho,2)}, v{vo}, s[{S_O}:{S_O+3}], s{S_OS} offen {st if mix[q % len(mix)] == '1' else ''}".rstrip(),
                   rd=rl("v", ob + 2 * rho, 2) + [f"v{vo}"], pre=(f"s{S_OS}", f"s_mov_b32 s{S_OS}, {tile*147456}"), cls="ST", tag=("O", tile))
            o.e = gB2[j]; o.dl = END; o.prio = gB2[j] + 7 + q * 0.01
            o.after += [(c, 0) for c in cvs]
            if rho: o.after.append((lastst[q], 0))
            elif q - 1 in lastst: o.after.append((lastst[q - 1], 0))
            lastst[q] = o
            ops += cvs + [o]

    pend = sorted(ops, key=lambda o: (o.prio, o.id))
    cur = {}
    for o in G[0].ops:
        if o.pre: cur[o.pre[0]] = o.pre[1]
    lastvm = -99; lastdma = -99
    for gi, g in enumerate(G):
        if g.free == "fixed": continue
        room = 2
        sc_used = g.fragwait or g.bar
        if g.bar and not g.free: room -= 1
        m0user = None; nat = 0; osuser = None
        while True:
            pick = None
            for o in pend:
                if o.e > gi: continue
                if g.free:
                    if g.free == "flex" and o.dl > gi: continue
                    if any(a.gap is None for a, d in o.after): continue
                    if g.name == "B0" and not (o.tag and o.tag[0] == "F" and o.tag[1] < D) and o.prio > -400: continue
                    pick = o; break
                if any(a.gap is None or a.gap + d > gi for a, d in o.after): continue
                cost = 1
                chg = o.pre and cur.get(o.pre[0]) != o.pre[1]
                if chg and sc_used: cost = 2
                if cost > room: continue
                if o.pre and o.pre[0] == "m0" and m0user is not None and (chg or True) and m0user != o.pre[1]: continue
                if o.pre and o.pre[0] != "m0" and osuser is not None and osuser != o.pre[1]: continue
                urgent = o.dl - gi <= 2
                if o.cls == "AT" and nat >= 1 and not urgent: continue
                if o.kind == "VM" and gi - lastvm < vmsp and not urgent: continue
                if o.cls == "DMA" and gi >= st2[0] and gi - lastdma < dmasp and not urgent: continue
                pick = o; break
            if pick is None: break
            o = pick
            pend.remove(o); o.gap = gi; g.ops.append(o)
            chg = o.pre and cur.get(o.pre[0]) != o.pre[1]
            if o.pre:
                cur[o.pre[0]] = o.pre[1]
                if o.pre[0] == "m0": m0user = o.pre[1]
                else: osuser = o.pre[1]
            if not g.free:
                room -= 1
                if chg:
                    if sc_used: room -= 1
                    sc_used = True
            if o.cls == "AT": nat += 1
            if o.kind == "VM": lastvm = gi
            if o.cls == "DMA": lastdma = gi
            if room <= 0 and not g.free: break
    assert not pend, [(o.text, o.e, o.dl) for o in pend[:10]]
    late = [o for o in ops if o.gap > o.dl]
    assert not late, [(o.text, o.gap, o.dl, G[o.gap].name) for o in late[:10]]

    def dropped(o):
        if "s" in drop and o.cls == "ST": return True
        if "d" in drop and o.tag and o.tag[0] == "P" and o.tag[1] >= 2: return True
        if "x" in drop and (o.cls == "AT" or o.text.startswith("ds_read2st64")): return True
        if "v" in drop and o.kind == "V" and o.gap >= st2[0]: return True
        if "f" in drop and o.tag and o.tag[0] == "F" and o.gap >= st2[0]: return True
        if "W" in drop and o.tag and o.tag[0] == "W" and o.tag[1] >= 3: return True
        if "X" in drop and o.tag and o.tag[0] == "X" and o.tag[1] >= 3: return True
        if "q" in drop and o.kind == "V" and start[0] <= o.gap < st2[0]: return True
        return False
    for gi, g in enumerate(G):
        g.ops = [o for o in g.ops if not dropped(o)]
        if "b" in drop and gi >= st2[0] and g.mfma: g.bar = False
        if "B" in drop and gi < st2[0] and g.mfma: g.bar = False
    Lz = []
    cur = {}
    for gi, g in enumerate(G):
        if g.label: Lz.append(Op("L", g.label))
        if g.mfma: Lz.append(g.mfma)
        if g.stamp: Lz.append(S(stamp_text()))
        if g.free:
            if g.bar: Lz.append(Op("B", "s_barrier"))
            for o in g.ops:
                if o.pre and cur.get(o.pre[0]) != o.pre[1]:
                    cur[o.pre[0]] = o.pre[1]; Lz.append(Op("S", o.pre[1], wr=[o.pre[0]]))
                Lz.append(o)
        else:
            lst = g.ops
            if len(lst) == 2 and lst[0].pre and lst[0].pre[0] == "m0" and not lst[1].pre and not any(a is lst[0] for a, d in lst[1].after) \
               and not (lst[0].kind == lst[1].kind) and not (set(lst[0].rd) & set(lst[1].wr)):
                lst = [lst[1], lst[0]]
            for o in lst:
                if o.pre and cur.get(o.pre[0]) != o.pre[1]:
                    cur[o.pre[0]] = o.pre[1]; Lz.append(Op("S", o.pre[1], wr=[o.pre[0]]))
            wm = Op("WM", ""); wm.look = list(lst) + ([G[gi + 1].mfma] if gi + 1 < len(G) and G[gi + 1].mfma else [])
            Lz.append(wm)
            if g.bar:
                b = Op("B", "s_barrier"); Lz.append(b); wm.look.append(b)
            for spec in (wb.split(",") if wb else []):
                stp, who = spec.split(":")
                if gi == gB2.get(int(stp)) + 1:
                    lab = f"L_wb{stp}"
                    if who == "8":
                        Lz.append(S("s_lshl_b32 s15, s3, 8")); Lz.append(S("s_add_u32 s15, s15, s2")); Lz.append(S("s_cmp_lt_u32 s15, 8"))
                    elif who == "a":
                        Lz.append(S("s_cmp_eq_u32 s3, 0"))
                    Lz.append(S(f"s_cbranch_scc0 {lab}"))
                    Lz.append(S("buffer_wbl2 sc1"))
                    Lz.append(Op("L", lab + ":"))
            Lz += lst
    acc = [(k, o) for k, o in enumerate(Lz) if o.lds]
    bars = [k for k, o in enumerate(Lz) if o.kind == "B"]
    import bisect
    for y in range(len(acc)):
        ky, oy = acc[y]
        bi = bisect.bisect_left(bars, ky) - 1
        for x in range(y):
            kx, ox = acc[x]
            if ox.lds[0] == "r" and oy.lds[0] == "r": continue
            if ox.lds[0] == "w" and oy.lds[0] == "w": continue
            if ox.lds[3] and oy.lds[3]: continue
            if ox.lds[2] <= oy.lds[1] or oy.lds[2] <= ox.lds[1]: continue
            if drop and not (bi >= 0 and bars[bi] > kx): continue
            assert bi >= 0 and bars[bi] > kx, ("LDS race", ox.text, G[ox.gap].name, oy.text, G[oy.gap].name)
            Lz[bars[bi]].needs.append(ox)
    issued = {"VM": 0, "DS": 0}; done = {"VM": -1, "DS": -1}; CAP = {"VM": 63, "DS": 15}
    pendreg = {}
    out = []
    inl = 0
    def needs_of(o):
        n = {"VM": -1, "DS": -1}
        for r in o.rd + o.wr:
            if r in pendreg:
                q, i = pendreg[r]; n[q] = max(n[q], i)
        for x in o.needs:
            if hasattr(x, "qi"): n[x.kind] = max(n[x.kind], x.qi)
        return n
    def dowait(n):
        w = []
        for q, nm in (("VM", "vmcnt"), ("DS", "lgkmcnt")):
            if n[q] > done[q]:
                c = min(issued[q] - 1 - n[q], CAP[q])
                done[q] = issued[q] - 1 - c
                w.append(f"{nm}({c})")
        if w: out.append(Op("S", "s_waitcnt " + " ".join(w)))
        return bool(w)
    for o in Lz:
        if o.kind == "WM":
            n = {"VM": -1, "DS": -1}
            for x in o.look:
                m = needs_of(x)
                for q in n: n[q] = max(n[q], m[q])
            dowait(n); continue
        if dowait(needs_of(o)): inl += 1
        if o.kind in ("VM", "DS"):
            o.qi = issued[o.kind]; issued[o.kind] += 1
            for r in o.wr: pendreg[r] = (o.kind, o.qi)
        out.append(o)
    fin = []
    t = 0
    wV = {}; wM = {}; wS = {}
    nops = 0
    for o in out:
        need = 0
        if o.kind == "M":
            for r in o.rd: need = max(need, wV.get(r, -99) + 3 - t)
        elif o.kind in ("V", "DS", "VM"):
            for r in o.rd + o.wr: need = max(need, wM.get(r, -99) + 10 - t)
            if o.pre and o.pre[0] == "m0": need = max(need, wS.get("m0", -99) + 2 - t)
        if need > 0:
            fin.append(Op("S", f"s_nop {need-1}")); t += need; nops += 1
        if o.kind == "V":
            for r in o.wr: wV[r] = t
        elif o.kind == "M":
            for r in o.wr: wM[r] = t
        elif o.kind == "S":
            for r in o.wr: wS[r] = t
        fin.append(o)
        t += 2 if o.kind == "M" else 1
    if verbose:
        print("inline waits", inl, "nops", nops, "instr", len(fin), file=sys.stderr)
        for gi, g in enumerate(G):
            if g.free: print(gi, g.name, len(g.ops), file=sys.stderr)

    L = []
    A = L.append
    A("; @launch grid=(252,1,1) block=(256,1,1) lds=163840")
    A('.amdgcn_target "amdgcn-amd-amdhsa--gfx950"')
    A(".text"); A(f".globl {NAME}"); A(".p2align 8"); A(f".type {NAME},@function"); A(f"{NAME}:")
    for o in fin: A(o.text if o.kind == "L" else "  " + o.text)
    if stamps:
        A("  " + stamp_text()); A("  s_waitcnt vmcnt(0)"); A("  " + stamp_text()); A("  " + stamp_text(True))
        n = nst[0]
        for x in ["s_waitcnt lgkmcnt(0)", "s_cmp_lg_u32 s3, 0", "s_cbranch_scc1 L_end",
                  "s_mov_b32 s20, s16", "s_and_b32 s21, s17, 0xffff", "s_mov_b32 s22, 0x100000", "s_mov_b32 s23, 0x20000",
                  f"s_mul_i32 s18, s2, {n*8}", "v_mov_b32 v2, s18", "s_mov_b64 exec, 1"]: A("  " + x)
        for k in range(n):
            for x in [f"v_mov_b32 v4, s{STREGS[k]}", f"v_mov_b32 v5, s{STREGS[k]+1}",
                      f"buffer_store_dwordx2 v[4:5], v2, s[20:23], 0 offen offset:{8*k}", "s_nop 1"]: A("  " + x)
        A("  s_waitcnt vmcnt(0)")
    A("L_end:"); A("  s_endpgm")
    A('.section .rodata,"a"'); A(".p2align 6"); A(f".amdhsa_kernel {NAME}")
    A(f"  .amdhsa_next_free_vgpr {256 + A_FR + NA*4}")
    A("  .amdhsa_next_free_sgpr 102")
    A("  .amdhsa_accum_offset 256")
    A("  .amdhsa_group_segment_fixed_size 0")
    A("  .amdhsa_kernarg_size 56")
    A("  .amdhsa_user_sgpr_count 2")
    A("  .amdhsa_user_sgpr_kernarg_segment_ptr 1")
    A("  .amdhsa_system_sgpr_workgroup_id_x 1")
    A("  .amdhsa_float_denorm_mode_32 3")
    A(".end_amdhsa_kernel")
    return "\n".join(L) + "\n", nst[0]

if __name__ == "__main__":
    ap = argparse.ArgumentParser()
    ap.add_argument("-o", default="k2.s")
    for k, d in dict(R=8, rotA=4, rotB=2, D=3, NA=5, b1=8, bpos=20, nb1=2, vmsp=2, dmasp=4, nacc=3, recvd=5, p1per=1, w2all=0, w2sp=2, pk=0, cpf=0).items():
        ap.add_argument("--" + k, type=int, default=d)
    ap.add_argument("--stamps", action="store_true")
    ap.add_argument("-v", dest="verbose", action="store_true")
    for k in ("st", "lw", "lx", "lx2", "drop", "ta"): ap.add_argument("--" + k, default="")
    ap.add_argument("--tb", default="0000")
    ap.add_argument("--mix", default="1")
    ap.add_argument("--wb", default="")
    a = vars(ap.parse_args())
    o = a.pop("o")
    s, n = gen(**a)
    open(o, "w").write(s)
    print(o, "lines", s.count("\n"), "stamps", n)
```

```python
import sys, argparse
NAME = "standalone__w4a16_gemm_dequant__prompt_kernel"
INF = 10 ** 9

def rl(p, b, n): return [f"{p}{b+i}" for i in range(n)]
def rg(p, b, n): return f"{p}[{b}:{b+n-1}]" if n > 1 else f"{p}{b}"

class Op:
    cnt = 0
    def __init__(s, kind, text, rd=(), wr=(), pre=None, lds=None, cls=None, e=0, dl=INF, prio=None, after=(), tag=None, grp=None):
        s.kind = kind; s.text = text; s.rd = list(rd); s.wr = list(wr); s.pre = pre; s.lds = lds; s.cls = cls
        s.e = e; s.dl = dl; s.prio = dl if prio is None else prio; s.after = list(after); s.tag = tag; s.grp = grp
        s.gap = None; s.needs = []; s.id = Op.cnt; Op.cnt += 1

class Gap:
    def __init__(s, mfma=None, free=None, bar=False, name=""):
        s.mfma = mfma; s.free = free; s.bar = bar; s.ops = []; s.name = name; s.stamp = False; s.label = None
        s.fragwait = False

def gen(R=8, rotA=4, rotB=2, D=3, NA=5, b1=8, bpos=20, nb1=2, vmsp=2, dmasp=4, stamps=False, st="", lw="", lx="", lx2="",
        nacc=3, skip18=True, verbose=False, recvd=5, p1per=1, w2all=0, w2sp=2, drop='', pk=0, ta='', tb='0000', mix='1', wb='', cpf=0, dbg=0):
    NT, NST = 19, 9
    NS = NT - R
    assert R % 2 == 0 and 4 <= R <= 10
    RING = 24576
    SLOT0 = 53248
    def ringbuf(s): return RING + (s % 3) * R * 2048
    def slot(n): return SLOT0 + ((n + 2) % 6) * 18432
    assert RING + 3 * R * 2048 <= slot(0)
    S_X, S_W, S_S, S_Z, S_O = 20, 24, 28, 32, 36
    S_WOFS, S_XOFS, S_P2, S_D1, S_D9 = 40, 48, 56, 66, 75
    S_M0X, S_M0W, S_C24, S_MSK, S_OS, S_NTL = 84, 85, 86, 87, 88, 89
    STREGS = [90, 92, 94, 96, 98, 100, 4, 6, 8, 10, 12, 14, 66, 68]
    V_W, V_X, V_X2, V_R, V_O0, V_O1, V_TR, V_TW, V_E, V_S = 2, 3, 4, 5, 8, 9, 10, 11, 12, 13
    V_SZ, V_RAW, V_F, V_T = 16, 32, 96, 240
    V_EW = 0
    def raw(p, j): return V_RAW + p * 32 + j * 4
    def F(i, u): return V_F + (i * 4 + u) * 4
    def acc1(t, u): return (t * 4 + u) * 4
    A_FR = 16 * R
    def fr(f): return A_FR + (f % NA) * 4
    def acc2(n, u): return V_RAW + (n % nacc) * 16 + u * 4
    V_RECV = V_RAW + 48
    nst = [0]
    def stamp_text(real=False):
        r = STREGS[nst[0]]; nst[0] += 1
        return f"s_memrealtime s[{r}:{r+1}]" if real else f"s_memtime s[{r}:{r+1}]"

    G = []
    def S(t): return Op("S", t)
    def V(t, rd=(), wr=(), **k): return Op("V", t, rd, wr, **k)
    def fixed(ops, name="", bar=False):
        g = Gap(free="fixed", name=name, bar=bar); g.ops = list(ops)
        for o in g.ops: o.gap = len(G)
        G.append(g); return g
    def txt(lines):
        out = []
        for x in lines:
            out.append(Op("V" if x.startswith("v_") else "S", x))
        return out

    def ldW(i, j):
        r = raw(i & 1, j)
        so = "0" if j == 0 else f"s{S_WOFS+j}"
        return Op("VM", f"buffer_load_dwordx4 {rg('v',r,4)}, v{V_W}, s[{S_W}:{S_W+3}], {so} offen {lw}".rstrip(),
                  rd=[f"v{V_W}"], wr=rl("v", r, 4), cls="VM", tag=("W", i, j))
    def ldSZ(m):
        r = V_T + 4 * m
        return [Op("VM", f"buffer_load_dwordx2 {rg('v',r,2)}, v{V_S+m}, s[{S_S}:{S_S+3}], 0 offen", rd=[f"v{V_S+m}"], wr=rl("v", r, 2), cls="VM"),
                Op("VM", f"buffer_load_dwordx2 {rg('v',r+2,2)}, v{V_S+m}, s[{S_Z}:{S_Z+3}], 0 offen", rd=[f"v{V_S+m}"], wr=rl("v", r + 2, 2), cls="VM")]
    def ldX(s, e):
        so = f"s{S_XOFS+e}" if e else "0"
        b = ringbuf(s)
        return Op("VM", f"buffer_load_dwordx4 v{V_X}, s[{S_X}:{S_X+3}], {so} offen offset:{(e&3)*1024} {lx} lds".rstrip(),
                  rd=[f"v{V_X}"], pre=("m0", f"s_add_u32 m0, s{S_M0X}, {b + (e>>2)*4096}"), lds=("w", b, b + R * 2048, False),
                  cls="DMA", tag=("X", s, e), grp=("X", s))
    def ldP(p, e):
        b = slot(2 * p) + e * 4096
        return Op("VM", f"buffer_load_dwordx4 v{V_X2}, s[{S_X}:{S_X+3}], s{S_P2+e} offen {lx2} lds".rstrip(),
                  rd=[f"v{V_X2}"], pre=("m0", f"s_add_u32 m0, s{S_M0W}, {b}"), lds=("w", b, b + 4096, False),
                  cls="DMA", tag=("P", p, e), grp=("P", p))
    def advW(i): return V(f"v_lshl_add_u32 v{V_W}, s{S_D9+i}, 17, v{V_W}", [f"v{V_W}"], [f"v{V_W}"])
    def advX(i): return V(f"v_lshl_add_u32 v{V_X}, s{S_D1+i}, 7, v{V_X}", [f"v{V_X}"], [f"v{V_X}"])
    def prep(m, t):
        r = V_T + 4 * m
        o = []
        for h in range(2):
            o.append(V(f"v_lshlrev_b32 v{t+2*h}, 16, v{r+h}", [f"v{r+h}"], [f"v{t+2*h}"]))
            o.append(V(f"v_and_b32 v{t+2*h+1}, s{S_MSK}, v{r+h}", [f"v{r+h}"], [f"v{t+2*h+1}"]))
        for h in range(2):
            o.append(V(f"v_lshlrev_b32 v{t+4+2*h}, 16, v{r+2+h}", [f"v{r+2+h}"], [f"v{t+4+2*h}"]))
            o.append(V(f"v_and_b32 v{t+4+2*h+1}, s{S_MSK}, v{r+2+h}", [f"v{r+2+h}"], [f"v{t+4+2*h+1}"]))
        for u in range(4):
            o.append(V(f"v_mul_f32_e64 v{t+4+u}, -v{t+4+u}, v{t+u}", [f"v{t+4+u}", f"v{t+u}"], [f"v{t+4+u}"]))
        for u in range(4):
            o.append(V(f"v_mul_f32 v{t+u}, s{S_C24}, v{t+u}", [f"v{t+u}"], [f"v{t+u}"]))
        o.append(Op("DS", f"ds_write_b128 v{V_TW}, {rg('v',t,4)} offset:{m*2048}", rd=[f"v{V_TW}"] + rl("v", t, 4), lds=("w", 0, 24576, True)))
        o.append(Op("DS", f"ds_write_b128 v{V_TW}, {rg('v',t+4,4)} offset:{m*2048+256}", rd=[f"v{V_TW}"] + rl("v", t + 4, 4), lds=("w", 0, 24576, True)))
        return o
    def rdSZ(i):
        z = V_SZ + (i & 1) * 8
        return [Op("DS", f"ds_read_b128 {rg('v',z,4)}, v{V_TR} offset:{i*512}", rd=[f"v{V_TR}"], wr=rl("v", z, 4), lds=("r", 0, 24576, True)),
                Op("DS", f"ds_read_b128 {rg('v',z+4,4)}, v{V_TR} offset:{i*512+256}", rd=[f"v{V_TR}"], wr=rl("v", z + 4, 4), lds=("r", 0, 24576, True))]
    def deq(i, jj):
        p = i & 1; z = V_SZ + p * 8
        fm = []; cv = []
        for j in (2 * jj, 2 * jj + 1):
            for u in range(4):
                r = raw(p, j) + u
                fm.append(V(f"v_fma_mix_f32 v{r}, v{r}, v{z+u}, v{z+4+u} op_sel_hi:[1,0,0]", [f"v{r}", f"v{z+u}", f"v{z+4+u}"], [f"v{r}"]))
        for u in range(4):
            a, b = raw(p, 2 * jj) + u, raw(p, 2 * jj + 1) + u
            cv.append(V(f"v_cvt_pk_bf16_f32 v{F(i,u)+jj}, v{a}, v{b}", [f"v{a}", f"v{b}"], [f"v{F(i,u)+jj}"]))
        return fm, cv
    def rdF(f, addr):
        w, off = divmod(addr, 65536)
        a = fr(f)
        return Op("DS", f"ds_read_b128 {rg('a',a,4)}, v{V_R+w} offset:{off}", rd=[f"v{V_R+w}"], wr=rl("a", a, 4), lds=("r", addr, addr + 2048, False), tag=("F", f))
    def mfma(dp, d, f, fb, first):
        dd = rg(dp, d, 4)
        return Op("M", f"v_mfma_f32_16x16x32_bf16 {dd}, {rg('a',fr(f),4)}, {rg('v',fb,4)}, {'0' if first else dd}",
                  rd=rl("a", fr(f), 4) + rl("v", fb, 4) + ([] if first else rl(dp, d, 4)), wr=rl(dp, d, 4))

    if ta:
        A_ = sum(int(c) << (4 * i) for i, c in enumerate(ta)); B_ = sum(int(c) << (4 * i) for i, c in enumerate(tb))
        rot = ["s_lshl_b32 s40, s15, 2", f"s_lshr_b32 s40, {A_}, s40", "s_and_b32 s40, s40, 15",
               "s_and_b32 s41, s18, 3", "s_lshl_b32 s41, s41, 2", f"s_lshr_b32 s41, {B_}, s41", "s_and_b32 s41, s41, 15",
               "s_add_u32 s40, s40, s41", "s_sub_u32 s41, s40, 9", "s_min_u32 s19, s40, s41"]
    else:
        rot = [f"s_mul_i32 s40, s15, {rotA}", f"s_mul_i32 s41, s18, {rotB}", "s_add_u32 s40, s40, s41", "s_mul_i32 s41, s40, 57",
               "s_lshr_b32 s41, s41, 9", "s_mul_i32 s41, s41, 9", "s_sub_u32 s19, s40, s41"]
    P = []
    if stamps: P += [S(stamp_text(True)), S(stamp_text())]
    P += txt([
        "s_cmp_ge_u32 s2, 252",
        "s_cbranch_scc1 L_end",
        "s_load_dwordx8 s[4:11], s[0:1], 0",
        "s_load_dwordx2 s[12:13], s[0:1], 32"])
    if stamps: P += txt([f"s_load_dwordx2 s[16:17], s[0:1], {40 if dbg else 48}"])
    if cpf:
        P += txt(["s_getpc_b64 s[40:41]"]) + [Op("L", "L_pc:")] + txt(["s_and_b32 s41, s41, 0xffff", "s_mov_b32 s42, L_end-L_pc", "s_mov_b32 s43, 0x20000",
                  f"v_lshlrev_b32 v15, {cpf}, v0"])
        P += [Op("VM", "buffer_load_dword v255, v15, s[40:43], 0 offen", rd=["v15"], wr=["v14x"])]
        P += txt(["s_nop 4"])
    P += txt([
        "v_lshrrev_b32 v16, 6, v0",
        "v_and_b32 v1, 63, v0",
        "v_readfirstlane_b32 s3, v16",
        "s_and_b32 s14, s2, 7",
        "s_lshr_b32 s15, s2, 3",
        "s_lshl_b32 s18, s14, 2",
        "s_and_b32 s19, s15, 3",
        "s_add_u32 s18, s18, s19",
        "s_lshr_b32 s19, s15, 2",
        "s_and_b32 s40, s14, 3",
        "s_add_u32 s40, s40, 32",
        "s_and_b32 s41, s14, 4",
        "s_add_u32 s41, s41, s15",
        "s_sub_u32 s41, s41, 28",
        "s_cmp_ge_u32 s15, 28",
        "s_cselect_b32 s18, s40, s18",
        "s_cselect_b32 s15, s41, s19",
        *rot,
        "s_lshr_b32 s64, s3, 1",
        "s_and_b32 s65, s3, 1",
        "s_lshl_b32 s18, s18, 7",
        "s_lshl_b32 s40, s65, 6",
        "s_add_u32 s18, s18, s40",
        "v_and_b32 v16, 15, v1",
        "v_lshrrev_b32 v17, 4, v1",
        f"s_mov_b32 s{S_WOFS+1}, 18432",
        "s_mul_i32 s40, s64, 9216",
        "s_lshl1_add_u32 s40, s18, s40",
        "v_lshl_add_u32 v18, v16, 3, s40",
        "v_add_u32 v19, s19, v17",
        "v_add_u32 v20, -9, v19",
        "v_min_u32 v20, v19, v20",
        f"v_mad_u32_u24 v{V_S}, v20, s{S_WOFS+1}, v18",
        "s_mul_i32 s42, s19, 1179648",
        "s_mul_i32 s43, s64, 589824",
        "s_lshl2_add_u32 s43, s18, s43",
        "s_add_u32 s42, s42, s43",
        f"v_mul_u32_u24 v{V_W}, 147456, v17",
        f"v_lshl_add_u32 v{V_W}, v16, 4, v{V_W}",
        f"v_add_u32 v{V_W}, s42, v{V_W}",
        f"s_mov_b32 s{S_W+2}, {576*4608*4}",
        f"s_mov_b32 s{S_S+2}, {18*4608*2}",
        f"s_mov_b32 s{S_Z+2}, {18*4608*2}",
        f"s_mov_b32 s{S_W+3}, 0x20000",
        f"s_mov_b32 s{S_S+3}, 0x20000",
        f"s_mov_b32 s{S_Z+3}, 0x20000"])
    P += txt([f"s_mov_b32 s{S_WOFS+k}, {k*18432}" for k in range(2, 8)])
    P += txt([
        "s_mul_i32 s14, s15, 18",
        "s_min_u32 s40, s15, 2",
        "s_add_u32 s14, s14, s40",
        "s_cmp_lt_u32 s15, 2",
        f"s_cselect_b32 s{S_NTL}, 19, 18",
        "v_lshrrev_b32 v21, 3, v1",
        "v_lshrrev_b32 v22, 4, v1",
        "v_and_b32 v22, 2, v22",
        "v_lshrrev_b32 v23, 2, v1",
        "v_and_b32 v23, 4, v23",
        "v_and_b32 v24, 7, v1",
        "v_or3_b32 v22, v22, v23, 0",
        "v_xor_b32 v22, v22, v24",
        "v_mul_u32_u24 v21, 1152, v21",
        "v_lshl_add_u32 v21, v22, 4, v21",
        f"s_mul_i32 s40, s3, {(R//2)*9216}",
        "s_lshl_b32 s15, s19, 7",
        "s_add_u32 s40, s40, s15",
        f"v_add_u32 v{V_X}, s40, v21",
        f"s_mul_i32 s{S_M0X}, s3, {(R//2)*1024}",
        f"s_mul_i32 s{S_X+2}, s{S_NTL}, 18432",
        f"s_mov_b32 s{S_X+3}, 0x20000",
        "s_mul_i32 s15, s14, 18432",
        f"s_cmp_eq_u32 s19, 8",
        f"s_cselect_b32 s{S_D1+1}, -8, 1",
        f"s_cselect_b32 s{S_D9+1}, -72, 9"])
    P += txt([f"s_mov_b32 s{S_XOFS+e}, {e*9216-(e&3)*1024}" for e in range(1, R // 2)])
    P += txt([
        "s_waitcnt lgkmcnt(0)",
        f"s_mov_b32 s{S_S}, s8", f"s_and_b32 s{S_S+1}, s9, 0xffff",
        f"s_mov_b32 s{S_Z}, s10", f"s_and_b32 s{S_Z+1}, s11, 0xffff",
        f"s_mov_b32 s{S_W}, s6", f"s_and_b32 s{S_W+1}, s7, 0xffff"])
    P += ldSZ(0)
    P += [ldW(0, j) for j in range(8)]
    P += txt([f"s_add_u32 s{S_X}, s4, s15", f"s_addc_u32 s{S_X+1}, s5, 0", f"s_and_b32 s{S_X+1}, s{S_X+1}, 0xffff"])
    P += [ldX(0, e) for e in range(R // 2)]
    P += [advW(1), advX(1)]
    P += [ldW(1, j) for j in range(8)]
    P += [ldX(1, e) for e in range(R // 2)]
    for m in (1, 2):
        P += txt([f"v_add_u32 v19, 4, v19", "v_add_u32 v20, -9, v19", "v_min_u32 v20, v19, v20",
                  f"v_mad_u32_u24 v{V_S+m}, v20, s{S_WOFS+1}, v18"])
        P += ldSZ(m)
    if stamps: P += [S(stamp_text())]
    P += txt([
        "s_mul_i32 s15, s14, 147456",
        f"s_add_u32 s{S_O}, s12, s15", f"s_addc_u32 s{S_O+1}, s13, 0", f"s_and_b32 s{S_O+1}, s{S_O+1}, 0xffff",
        f"s_mul_i32 s{S_O+2}, s{S_NTL}, 147456",
        f"s_mov_b32 s{S_O+3}, 0x20000",
        f"s_mov_b32 s{S_C24}, 0x4b800000", f"s_mov_b32 s{S_MSK}, 0xffff0000",
        f"s_lshl_b32 s{S_M0W}, s3, 10",
        "s_mul_i32 s40, s3, 6144",
        f"v_lshl_add_u32 v{V_TR}, v16, 4, s40",
        f"v_lshl_add_u32 v{V_TW}, v17, 9, v{V_TR}",
        "s_mul_i32 s40, s65, 9216",
        f"s_add_u32 s40, s40, {R*18432}",
        f"v_add_u32 v{V_X2}, s40, v21",
        "s_mul_i32 s40, s64, 18432",
        "s_lshl1_add_u32 s40, s18, s40",
        f"v_mul_u32_u24 v{V_O0}, 36864, v17",
        f"v_lshl_add_u32 v{V_O0}, v16, 3, v{V_O0}",
        f"v_add_u32 v{V_O0}, s40, v{V_O0}",
        f"v_add_u32 v{V_O1}, 9216, v{V_O0}",
        f"s_xor_b32 s40, s{S_M0W}, 2048",
        f"v_lshl_add_u32 v{V_E}, v1, 2, s40",
        f"v_xor_b32 v{V_EW}, 0x800, v{V_E}",
        "s_lshl_b32 s40, s64, 1",
        "v_xor_b32 v22, s40, v16",
        "v_lshrrev_b32 v23, 1, v22",
        "v_and_b32 v23, 2, v23",
        "v_lshlrev_b32 v24, 1, v22",
        "v_and_b32 v24, 4, v24",
        "s_lshl_b32 s40, s64, 2",
        "v_add_u32 v25, s40, v17",
        "v_xor_b32 v23, v23, v24",
        "v_xor_b32 v23, v23, v25",
        "v_lshlrev_b32 v23, 4, v23",
        f"v_lshl_add_u32 v{V_R}, v22, 7, v23",
        f"v_add_u32 v{V_R+1}, 0x10000, v{V_R}",
        f"v_add_u32 v{V_R+2}, 0x20000, v{V_R}"])
    for i in range(2, NST):
        P += txt([f"s_cmp_eq_u32 s19, {9-i}", f"s_cselect_b32 s{S_D1+i}, -8, 1", f"s_cselect_b32 s{S_D9+i}, -72, 9"])
    P += txt(["s_add_u32 s14, s19, s64"])
    for e in range(9):
        r = S_P2 + e
        if e == 4:
            P += txt(["s_add_u32 s15, s19, 8", "s_sub_u32 s40, s19, 1", "s_min_u32 s15, s15, s40", "s_lshl_b32 s15, s15, 7",
                      "s_lshl_b32 s40, s19, 7", "s_add_u32 s40, s40, 18432", "s_cmp_eq_u32 s64, 0", f"s_cselect_b32 s{S_OS}, s15, s40"])
            continue
        c = 2 * e if e < 4 else 2 * e - 9
        P += txt([f"s_add_u32 s15, s14, {c}", f"s_sub_u32 s40, s15, 9", "s_min_u32 s15, s15, s40"])
        if e < 4: P += txt([f"s_lshl_b32 s{r}, s15, 7"])
        else: P += txt(["s_lshl_b32 s15, s15, 7", f"s_add_u32 s{r}, s15, 18432"])
    P += txt([f"s_mov_b32 s{S_P2+4}, s{S_OS}"])
    P += prep(0, F(8, 0))
    P += rdSZ(0) + rdSZ(1)
    P.append(advW(2))
    first = True
    lastW = None
    for jj in range(4):
        fm, cv = deq(0, jj)
        P += fm
        if first and stamps: P += [S(stamp_text())]
        first = False
        P += cv + [ldW(2, 2 * jj), ldW(2, 2 * jj + 1)]
        lastW = P[-1]
    lastX = [o for o in P if o.tag == ("X", 1, R // 2 - 1)][0]
    fixed(P, "prologue")

    ops = []
    gB1 = {}; start = {}; flex = {}
    g = Gap(free="open", bar=True, name="B0"); gB1[0] = len(G); G.append(g)
    if stamps: g.stamp = True
    firstuse = {}; lastuse = {}; lastM = {}
    for s in range(NST):
        start[s] = len(G)
        for t in range(R):
            f = s * R + t
            for u in range(4):
                gp = Gap(mfma("a", acc1(t, u), f, F(s, u), s == 0), name=f"s{s}t{t}u{u}")
                gp.fragwait = (u == 3)
                if u == 0: firstuse[f] = len(G)
                lastuse[f] = len(G)
                lastM[("a", t, u)] = len(G)
                G.append(gp)
        if stamps and s in (4, 8): G[start[s]].stamp = True
        if s < NST - 1:
            flex[s] = len(G); G.append(Gap(free="flex", name=f"flex{s}"))
            gB1[s + 1] = flex[s] - b1
            G[gB1[s + 1]].bar = True
    st2 = {}; gB2 = {}
    for n in range(NS):
        st2[n] = len(G)
        for k in range(9):
            f = 9 * R + 9 * n + k
            for u in range(4):
                gp = Gap(mfma("v", acc2(n, u), f, F(k, u), k == 0), name=f"n{n}k{k}u{u}")
                gp.fragwait = (u == 3)
                if u == 0: firstuse[f] = len(G)
                lastuse[f] = len(G)
                lastM[("v", n, u)] = len(G)
                G.append(gp)
        gB2[n] = st2[n] + bpos
        G[gB2[n]].bar = True
    if stamps:
        G[st2[0]].stamp = True; G[st2[NS // 2]].stamp = True
    tail0 = len(G); G.append(Gap(free="open", name="tail0"))
    if stamps: G[tail0].stamp = True
    gB2[NS] = len(G); G.append(Gap(free="open", bar=True, name="tail1"))
    END = len(G) - 1

    NF = 9 * R + 9 * NS
    prevF = None
    for f in range(NF):
        if f < 9 * R:
            s, t = divmod(f, R); addr = ringbuf(s) + t * 2048; gb = gB1[s]
            nextb = gB1.get(s + 1, INF)
        else:
            n, k = divmod(f - 9 * R, 9); addr = slot(n) + k * 2048
            gb = gB1[8] if n == 0 else gB2[n - 1]
            nextb = INF
        o = rdF(f, addr)
        e = max(gb, firstuse[f] - 4 * D)
        if f >= NA: e = max(e, lastuse[f - NA])
        o.dl = min(firstuse[f] - 1, nextb - 3)
        if f < D: e = gb
        o.e = min(e, o.dl)
        assert f < NA or o.e >= lastuse[f - NA], (f, o.e, lastuse[f - NA])
        o.prio = -1000 + f
        if prevF: o.after.append((prevF, 0))
        prevF = o
        ops.append(o)
    tabw = []
    for m, tmp in ((1, F(7, 0)), (2, F(6, 0))):
        pp = prep(m, tmp)
        for k, o in enumerate(pp):
            o.e = start[m - 1] + (4 * R - 24); o.dl = flex[m - 1]; o.prio = o.dl + 0.5
            if k: o.after.append((pp[k - 1], 0))
        tabw.append(pp[-1]); ops += pp
    lastfm = {}
    szr = {}
    for i in range(1, NST):
        chain = []
        if i + 2 < NST:
            a = advW(i + 2); a.after.append((lastW, 0)); chain.append(a)
        for jj in range(4):
            fm, cv = deq(i, jj)
            chain += fm + cv
            lastfm[i] = fm[-1]
            if i + 2 < NST:
                chain += [ldW(i + 2, 2 * jj), ldW(i + 2, 2 * jj + 1)]
                lastW = chain[-1]
        prev = None
        for k, o in enumerate(chain):
            o.e = start[i - 1]; o.dl = flex[i - 1]; o.prio = o.dl
            if o.kind == "VM":
                o.after.append((prev, 0)); o.prio = o.dl - 0.5
                if chain[k - 1].kind == "VM": o.after.append((chain[k - 1], 0))
            else:
                if prev: o.after.append((prev, 0))
                prev = o
            if i in szr and o.kind == "V":
                for z in szr[i]: o.after.append((z, 4))
        ops += chain
        if i + 1 < NST:
            z = rdSZ(i + 1)
            for o in z:
                o.e = start[i - 1] + 4; o.dl = flex[i - 1]; o.prio = start[i - 1] + 2 * R
                if i - 1 in lastfm: o.after.append((lastfm[i - 1], 0))
                if i + 1 >= 4: o.after.append((tabw[(i + 1) // 4 - 1], 0))
            szr[i + 1] = z; ops += z
    for s in range(2, NST):
        a = advX(s); a.e = gB1[s - 2] - 2; a.after.append((lastX, 0)); a.prio = -500; a.dl = gB1[s - 1]
        ops.append(a); prev = a
        for e in range(R // 2):
            o = ldX(s, e); o.e = gB1[s - 2]; o.dl = gB1[s - 1] - 1; o.prio = -500; o.after.append((prev, 0)); prev = o
            ops.append(o)
        lastX = prev
    NPAIR = (NS + 1) // 2
    prev = lastX
    for p in range(NPAIR):
        if p:
            a = V(f"v_add_u32 v{V_X2}, 36864, v{V_X2}", [f"v{V_X2}"], [f"v{V_X2}"]); a.after.append((prev, 0)); a.prio = -400
            ops.append(a); prev = a
        ne = 9 if 2 * p + 1 < NS else 5
        for e in range(ne):
            o = ldP(p, e)
            if p == 0: o.e = start[6]
            elif p == 1: o.e = start[7]
            else: o.e = gB2[max(0, 2 * p - 5 if e < 4 else 2 * p - 4)]
            need = 2 * p if e <= 4 else 2 * p + 1
            o.dl = (gB1[8] if need == 0 else gB2[need - 1]) - 1
            o.prio = o.e - 300
            o.after.append((prev, 0)); prev = o
            if e == 0 and p: ops[-1].e = o.e - 2
            ops.append(o)
    units = []
    t1 = 0
    for j in range(NS + 1):
        if j >= 1: units.append(("v", j - 1, j))
        k = nb1 if j == 0 else p1per
        for _ in range(k):
            if t1 < R: units.append(("a", t1, j)); t1 += 1
    assert t1 == R
    rdone = {}; lastcv = {}; lastadd = {}; lastst = {}
    na = 0
    for q, (kp, idx, j) in enumerate(units):
        EB = (q % 6) * 8192
        base = acc1(idx, 0) if kp == "a" else acc2(idx, 0)
        tile = idx if kp == "a" else R + idx
        snd = []
        w2 = (kp == "a") or w2all
        for k in range(0, 8, 2 if w2 else 1):
            u, r = k >> 1, 2 + (k & 1)
            off = EB + (k >> 2) * 4096 + (k & 3) * 256
            ld = ("w", EB + (k >> 2) * 4096, EB + (k >> 2) * 4096 + 4096, False)
            x = base + 4 * u + r
            if w2:
                o = Op("DS", f"ds_write2st64_b32 v{V_EW}, {kp}{x}, {kp}{x+1} offset0:{off//256} offset1:{off//256+1}", rd=[f"v{V_EW}"] + rl(kp, x, 2),
                       lds=ld, cls="AT", grp=("E", q))
            else:
                o = Op("DS", f"ds_write_addtid_b32 {kp}{x} offset:{off}", rd=[f"{kp}{x}"], pre=("m0", f"s_mov_b32 m0, s{S_M0W}"),
                       lds=ld, cls="AT", grp=("E", q))
            o.e = max(lastM[(kp, idx, u)] + 4, gB1[8] if j == 0 else gB2[j - 1])
            o.e = min(o.e, tail0)
            o.dl = gB2[j] - (1 if j == NS else 2); o.prio = o.dl - 100 + (0 if kp == "v" else 1)
            if snd: o.after.append((snd[-1], w2sp if w2 else 0))
            snd.append(o)
        ops += snd
        rv = V_RECV + (q & 1) * 8
        dlf = st2.get(idx + nacc, END + 1) - 1 if kp == "v" else END
        dlf = min(dlf, gB2.get(j + 2, END))
        rcv = []
        for k in range(0, 8, 2):
            o0 = (EB + (k >> 2) * 4096 + (k & 3) * 256) // 256
            o = Op("DS", f"ds_read2st64_b32 {rg('v',rv+k,2)}, v{V_E} offset0:{o0} offset1:{o0+1}", rd=[f"v{V_E}"], wr=rl("v", rv + k, 2),
                   lds=("r", EB + (k >> 2) * 4096, EB + (k >> 2) * 4096 + 4096, False))
            o.e = gB2[j]; o.dl = min(dlf, gB2.get(j + 1, END + 3) - 3); o.prio = gB2[j] + q * 0.01
            if q - 2 in lastcv: o.after.append((lastcv[q - 2], 0))
            rcv.append(o)
        ops += rcv
        kept = []
        if kp == "a":
            kb = V_SZ + (na & 1) * 8
            for u in range(4):
                for r in range(2):
                    o = V(f"v_accvgpr_read_b32 v{kb+2*u+r}, a{base+4*u+r}", [f"a{base+4*u+r}"], [f"v{kb+2*u+r}"])
                    o.e = max(lastM[(kp, idx, u)] + 4, gB2[j] - 12); o.dl = dlf; o.prio = gB2[j] + 2 + q * 0.01
                    if ("a", na - 2) in lastadd: o.after.append((lastadd[("a", na - 2)], 0))
                    kept.append(o)
            ops += kept
        adds = []
        for u in range(4):
            src = V_SZ + (na & 1) * 8 + 2 * u if kp == "a" else base + 4 * u
            if pk:
                lst = [V(f"v_pk_add_f32 {rg('v',rv+2*u,2)}, {rg('v',src,2)}, {rg('v',rv+2*u,2)}", rl("v", src, 2) + rl("v", rv + 2 * u, 2), rl("v", rv + 2 * u, 2))]
            else:
                lst = [V(f"v_add_f32 v{rv+2*u+r}, v{src+r}, v{rv+2*u+r}", [f"v{src+r}", f"v{rv+2*u+r}"], [f"v{rv+2*u+r}"]) for r in range(2)]
            for o in lst:
                o.e = gB2[j]; o.dl = dlf; o.prio = gB2[j] + 4 + q * 0.01
                o.after.append((rcv[u], recvd))
                if kp == "a": o.after += [(kept[2 * u], 0), (kept[2 * u + 1], 0)]
                if adds: o.after.append((adds[-1], 0))
                adds.append(o)
        ops += adds
        if not pk: adds = adds[1::2]
        if kp == "a":
            lastadd[("a", na)] = adds[-1]; na += 1
        ob = V_T + (q & 3) * 4
        prev = None
        for rho in range(2):
            cvs = []
            for h in range(2):
                a, b = rv + 4 * h + rho, rv + 4 * h + 2 + rho
                o = V(f"v_cvt_pk_bf16_f32 v{ob+2*rho+h}, v{a}, v{b}", [f"v{a}", f"v{b}"], [f"v{ob+2*rho+h}"])
                o.e = gB2[j]; o.dl = END; o.prio = gB2[j] + 6 + q * 0.01
                o.after += [(adds[2 * h], 0), (adds[2 * h + 1], 0)]
                if q - 4 in lastst: o.after.append((lastst[q - 4], 1))
                if prev: o.after.append((prev, 0))
                prev = o
                cvs.append(o)
            lastcv[q] = cvs[-1]
            vo = V_O1 if rho else V_O0
            o = Op("VM", f"buffer_store_dwordx2 {rg('v',ob+2*rho,2)}, v{vo}, s[{S_O}:{S_O+3}], s{S_OS} offen {st if mix[q % len(mix)] == '1' else ''}".rstrip(),
                   rd=rl("v", ob + 2 * rho, 2) + [f"v{vo}"], pre=(f"s{S_OS}", f"s_mov_b32 s{S_OS}, {tile*147456}"), cls="ST", tag=("O", tile))
            o.e = gB2[j]; o.dl = END; o.prio = gB2[j] + 7 + q * 0.01
            o.after += [(c, 0) for c in cvs]
            if rho: o.after.append((lastst[q], 0))
            elif q - 1 in lastst: o.after.append((lastst[q - 1], 0))
            lastst[q] = o
            ops += cvs + [o]

    pend = sorted(ops, key=lambda o: (o.prio, o.id))
    cur = {}
    for o in G[0].ops:
        if o.pre: cur[o.pre[0]] = o.pre[1]
    lastvm = -99; lastdma = -99
    for gi, g in enumerate(G):
        if g.free == "fixed": continue
        room = 2
        sc_used = g.fragwait or g.bar
        if g.bar and not g.free: room -= 1
        m0user = None; nat = 0; osuser = None
        while True:
            pick = None
            for o in pend:
                if o.e > gi: continue
                if g.free:
                    if g.free == "flex" and o.dl > gi: continue
                    if any(a.gap is None for a, d in o.after): continue
                    if g.name == "B0" and not (o.tag and o.tag[0] == "F" and o.tag[1] < D) and o.prio > -400: continue
                    pick = o; break
                if any(a.gap is None or a.gap + d > gi for a, d in o.after): continue
                cost = 1
                chg = o.pre and cur.get(o.pre[0]) != o.pre[1]
                if chg and sc_used: cost = 2
                if cost > room: continue
                if o.pre and o.pre[0] == "m0" and m0user is not None and (chg or True) and m0user != o.pre[1]: continue
                if o.pre and o.pre[0] != "m0" and osuser is not None and osuser != o.pre[1]: continue
                urgent = o.dl - gi <= 2
                if o.cls == "AT" and nat >= 1 and not urgent: continue
                if o.kind == "VM" and gi - lastvm < vmsp and not urgent: continue
                if o.cls == "DMA" and gi >= st2[0] and gi - lastdma < dmasp and not urgent: continue
                pick = o; break
            if pick is None: break
            o = pick
            pend.remove(o); o.gap = gi; g.ops.append(o)
            chg = o.pre and cur.get(o.pre[0]) != o.pre[1]
            if o.pre:
                cur[o.pre[0]] = o.pre[1]
                if o.pre[0] == "m0": m0user = o.pre[1]
                else: osuser = o.pre[1]
            if not g.free:
                room -= 1
                if chg:
                    if sc_used: room -= 1
                    sc_used = True
            if o.cls == "AT": nat += 1
            if o.kind == "VM": lastvm = gi
            if o.cls == "DMA": lastdma = gi
            if room <= 0 and not g.free: break
    assert not pend, [(o.text, o.e, o.dl) for o in pend[:10]]
    late = [o for o in ops if o.gap > o.dl]
    assert not late, [(o.text, o.gap, o.dl, G[o.gap].name) for o in late[:10]]

    def dropped(o):
        if "s" in drop and o.cls == "ST": return True
        if "d" in drop and o.tag and o.tag[0] == "P" and o.tag[1] >= 2: return True
        if "x" in drop and (o.cls == "AT" or o.text.startswith("ds_read2st64")): return True
        if "v" in drop and o.kind == "V" and o.gap >= st2[0]: return True
        if "f" in drop and o.tag and o.tag[0] == "F" and o.gap >= st2[0]: return True
        if "W" in drop and o.tag and o.tag[0] == "W" and o.tag[1] >= 3: return True
        if "X" in drop and o.tag and o.tag[0] == "X" and o.tag[1] >= 3: return True
        if "q" in drop and o.kind == "V" and start[0] <= o.gap < st2[0]: return True
        return False
    for gi, g in enumerate(G):
        g.ops = [o for o in g.ops if not dropped(o)]
        if "b" in drop and gi >= st2[0] and g.mfma: g.bar = False
        if "B" in drop and gi < st2[0] and g.mfma: g.bar = False
    Lz = []
    cur = {}
    for gi, g in enumerate(G):
        if g.label: Lz.append(Op("L", g.label))
        if g.mfma: Lz.append(g.mfma)
        if g.stamp: Lz.append(S(stamp_text()))
        if g.free:
            if g.bar: Lz.append(Op("B", "s_barrier"))
            for o in g.ops:
                if o.pre and cur.get(o.pre[0]) != o.pre[1]:
                    cur[o.pre[0]] = o.pre[1]; Lz.append(Op("S", o.pre[1], wr=[o.pre[0]]))
                Lz.append(o)
        else:
            lst = g.ops
            if len(lst) == 2 and lst[0].pre and lst[0].pre[0] == "m0" and not lst[1].pre and not any(a is lst[0] for a, d in lst[1].after) \
               and not (lst[0].kind == lst[1].kind) and not (set(lst[0].rd) & set(lst[1].wr)):
                lst = [lst[1], lst[0]]
            for o in lst:
                if o.pre and cur.get(o.pre[0]) != o.pre[1]:
                    cur[o.pre[0]] = o.pre[1]; Lz.append(Op("S", o.pre[1], wr=[o.pre[0]]))
            wm = Op("WM", ""); wm.look = list(lst) + ([G[gi + 1].mfma] if gi + 1 < len(G) and G[gi + 1].mfma else [])
            Lz.append(wm)
            if g.bar:
                b = Op("B", "s_barrier"); Lz.append(b); wm.look.append(b)
            for spec in (wb.split(",") if wb else []):
                stp, who = spec.split(":")
                if gi == gB2.get(int(stp)) + 1:
                    lab = f"L_wb{stp}"
                    if who == "8":
                        Lz.append(S("s_lshl_b32 s15, s3, 8")); Lz.append(S("s_add_u32 s15, s15, s2")); Lz.append(S("s_cmp_lt_u32 s15, 8"))
                    elif who == "a":
                        Lz.append(S("s_cmp_eq_u32 s3, 0"))
                    Lz.append(S(f"s_cbranch_scc0 {lab}"))
                    Lz.append(S("buffer_wbl2 sc1"))
                    Lz.append(Op("L", lab + ":"))
            Lz += lst
    acc = [(k, o) for k, o in enumerate(Lz) if o.lds]
    bars = [k for k, o in enumerate(Lz) if o.kind == "B"]
    import bisect
    for y in range(len(acc)):
        ky, oy = acc[y]
        bi = bisect.bisect_left(bars, ky) - 1
        for x in range(y):
            kx, ox = acc[x]
            if ox.lds[0] == "r" and oy.lds[0] == "r": continue
            if ox.lds[0] == "w" and oy.lds[0] == "w": continue
            if ox.lds[3] and oy.lds[3]: continue
            if ox.lds[2] <= oy.lds[1] or oy.lds[2] <= ox.lds[1]: continue
            if drop and not (bi >= 0 and bars[bi] > kx): continue
            assert bi >= 0 and bars[bi] > kx, ("LDS race", ox.text, G[ox.gap].name, oy.text, G[oy.gap].name)
            Lz[bars[bi]].needs.append(ox)
    issued = {"VM": 0, "DS": 0}; done = {"VM": -1, "DS": -1}; CAP = {"VM": 63, "DS": 15}
    pendreg = {}
    out = []
    inl = 0
    def needs_of(o):
        n = {"VM": -1, "DS": -1}
        for r in o.rd + o.wr:
            if r in pendreg:
                q, i = pendreg[r]; n[q] = max(n[q], i)
        for x in o.needs:
            if hasattr(x, "qi"): n[x.kind] = max(n[x.kind], x.qi)
        return n
    def dowait(n):
        w = []
        for q, nm in (("VM", "vmcnt"), ("DS", "lgkmcnt")):
            if n[q] > done[q]:
                c = min(issued[q] - 1 - n[q], CAP[q])
                done[q] = issued[q] - 1 - c
                w.append(f"{nm}({c})")
        if w: out.append(Op("S", "s_waitcnt " + " ".join(w)))
        return bool(w)
    for o in Lz:
        if o.kind == "WM":
            n = {"VM": -1, "DS": -1}
            for x in o.look:
                m = needs_of(x)
                for q in n: n[q] = max(n[q], m[q])
            dowait(n); continue
        if dowait(needs_of(o)): inl += 1
        if o.kind in ("VM", "DS"):
            o.qi = issued[o.kind]; issued[o.kind] += 1
            for r in o.wr: pendreg[r] = (o.kind, o.qi)
        out.append(o)
    fin = []
    t = 0
    wV = {}; wM = {}; wS = {}
    nops = 0
    for o in out:
        need = 0
        if o.kind == "M":
            for r in o.rd: need = max(need, wV.get(r, -99) + 3 - t)
        elif o.kind in ("V", "DS", "VM"):
            for r in o.rd + o.wr: need = max(need, wM.get(r, -99) + 10 - t)
            if o.pre and o.pre[0] == "m0": need = max(need, wS.get("m0", -99) + 2 - t)
        if need > 0:
            fin.append(Op("S", f"s_nop {need-1}")); t += need; nops += 1
        if o.kind == "V":
            for r in o.wr: wV[r] = t
        elif o.kind == "M":
            for r in o.wr: wM[r] = t
        elif o.kind == "S":
            for r in o.wr: wS[r] = t
        fin.append(o)
        t += 2 if o.kind == "M" else 1
    if verbose:
        print("inline waits", inl, "nops", nops, "instr", len(fin), file=sys.stderr)
        for gi, g in enumerate(G):
            if g.free: print(gi, g.name, len(g.ops), file=sys.stderr)

    L = []
    A = L.append
    A("; @launch grid=(252,1,1) block=(256,1,1) lds=163840")
    A('.amdgcn_target "amdgcn-amd-amdhsa--gfx950"')
    A(".text"); A(f".globl {NAME}"); A(".p2align 8"); A(f".type {NAME},@function"); A(f"{NAME}:")
    for o in fin: A(o.text if o.kind == "L" else "  " + o.text)
    if stamps:
        A("  " + stamp_text()); A("  s_waitcnt vmcnt(0)"); A("  " + stamp_text()); A("  " + stamp_text(True))
        n = nst[0]
        if dbg:
            for x in ["s_waitcnt lgkmcnt(0)", "s_cmp_lg_u32 s3, 0", "s_cbranch_scc1 L_end",
                      "s_lshr_b32 s18, s2, 6", "s_mul_i32 s19, s18, 65", "s_cmp_lg_u32 s19, s2", "s_cbranch_scc1 L_end",
                      "s_mov_b32 s20, s16", "s_and_b32 s21, s17, 0xffff", "s_mov_b32 s22, 256", "s_mov_b32 s23, 0x20000",
                      "s_lshl_b32 s18, s18, 4", "v_mov_b32 v2, s18", "s_mov_b64 exec, 1"]: A("  " + x)
            for j, k in enumerate((4, 5, 7, 11)):
                A(f"  s_sub_u32 s19, s{STREGS[k]}, s{STREGS[1]}"); A(f"  v_mov_b32 v{4+j}, s19")
            A("  buffer_store_dwordx4 v[4:7], v2, s[20:23], 0 offen"); A("  s_waitcnt vmcnt(0)"); A("  s_endpgm")
        for x in ["s_waitcnt lgkmcnt(0)", "s_cmp_lg_u32 s3, 0", "s_cbranch_scc1 L_end",
                  "s_mov_b32 s20, s16", "s_and_b32 s21, s17, 0xffff", "s_mov_b32 s22, 0x100000", "s_mov_b32 s23, 0x20000",
                  f"s_mul_i32 s18, s2, {n*8}", "v_mov_b32 v2, s18", "s_mov_b64 exec, 1"]: A("  " + x)
        for k in range(n):
            for x in [f"v_mov_b32 v4, s{STREGS[k]}", f"v_mov_b32 v5, s{STREGS[k]+1}",
                      f"buffer_store_dwordx2 v[4:5], v2, s[20:23], 0 offen offset:{8*k}", "s_nop 1"]: A("  " + x)
        A("  s_waitcnt vmcnt(0)")
    A("L_end:"); A("  s_endpgm")
    A('.section .rodata,"a"'); A(".p2align 6"); A(f".amdhsa_kernel {NAME}")
    A(f"  .amdhsa_next_free_vgpr {256 + A_FR + NA*4}")
    A("  .amdhsa_next_free_sgpr 102")
    A("  .amdhsa_accum_offset 256")
    A("  .amdhsa_group_segment_fixed_size 0")
    A("  .amdhsa_kernarg_size 56")
    A("  .amdhsa_user_sgpr_count 2")
    A("  .amdhsa_user_sgpr_kernarg_segment_ptr 1")
    A("  .amdhsa_system_sgpr_workgroup_id_x 1")
    A("  .amdhsa_float_denorm_mode_32 3")
    A(".end_amdhsa_kernel")
    return "\n".join(L) + "\n", nst[0]

if __name__ == "__main__":
    ap = argparse.ArgumentParser()
    ap.add_argument("-o", default="k2.s")
    for k, d in dict(R=8, rotA=4, rotB=2, D=3, NA=5, b1=8, bpos=20, nb1=2, vmsp=2, dmasp=4, nacc=3, recvd=5, p1per=1, w2all=0, w2sp=2, pk=0, cpf=0, dbg=0).items():
        ap.add_argument("--" + k, type=int, default=d)
    ap.add_argument("--stamps", action="store_true")
    ap.add_argument("-v", dest="verbose", action="store_true")
    for k in ("st", "lw", "lx", "lx2", "drop", "ta"): ap.add_argument("--" + k, default="")
    ap.add_argument("--tb", default="0000")
    ap.add_argument("--mix", default="1")
    ap.add_argument("--wb", default="")
    a = vars(ap.parse_args())
    o = a.pop("o")
    s, n = gen(**a)
    open(o, "w").write(s)
    print(o, "lines", s.count("\n"), "stamps", n)
```

```python
import sys, argparse
NAME = "standalone__w4a16_gemm_dequant__prompt_kernel"
INF = 10 ** 9

def rl(p, b, n): return [f"{p}{b+i}" for i in range(n)]
def rg(p, b, n): return f"{p}[{b}:{b+n-1}]" if n > 1 else f"{p}{b}"

class Op:
    cnt = 0
    def __init__(s, kind, text, rd=(), wr=(), pre=None, lds=None, cls=None, e=0, dl=INF, prio=None, after=(), tag=None, grp=None):
        s.kind = kind; s.text = text; s.rd = list(rd); s.wr = list(wr); s.pre = pre; s.lds = lds; s.cls = cls
        s.e = e; s.dl = dl; s.prio = dl if prio is None else prio; s.after = list(after); s.tag = tag; s.grp = grp
        s.gap = None; s.needs = []; s.id = Op.cnt; Op.cnt += 1

class Gap:
    def __init__(s, mfma=None, free=None, bar=False, name=""):
        s.mfma = mfma; s.free = free; s.bar = bar; s.ops = []; s.name = name; s.stamp = False; s.label = None
        s.fragwait = False

def gen(R=8, rotA=4, rotB=2, D=3, NA=5, b1=8, bpos=20, nb1=2, vmsp=2, dmasp=4, stamps=False, st="", lw="", lx="", lx2="",
        nacc=3, skip18=True, verbose=False, recvd=5, p1per=1, w2all=0, w2sp=2, drop='', pk=0, ta='', tb='0000', mix='1', wb='', cpf=0, dbg=0, lw0='nt', nt0=0):
    NT, NST = 19, 9
    NS = NT - R
    assert R % 2 == 0 and 4 <= R <= 10
    RING = 24576
    SLOT0 = 53248
    def ringbuf(s): return RING + (s % 3) * R * 2048
    def slot(n): return SLOT0 + ((n + 2) % 6) * 18432
    assert RING + 3 * R * 2048 <= slot(0)
    S_X, S_W, S_S, S_Z, S_O = 20, 24, 28, 32, 36
    S_WOFS, S_XOFS, S_P2, S_D1, S_D9 = 40, 48, 56, 66, 75
    S_M0X, S_M0W, S_C24, S_MSK, S_OS, S_NTL = 84, 85, 86, 87, 88, 89
    STREGS = [90, 92, 94, 96, 98, 100, 4, 6, 8, 10, 12, 14, 66, 68]
    V_W, V_X, V_X2, V_R, V_O0, V_O1, V_TR, V_TW, V_E, V_S = 2, 3, 4, 5, 8, 9, 10, 11, 12, 13
    V_SZ, V_RAW, V_F, V_T = 16, 32, 96, 240
    V_EW = 0
    def raw(p, j): return V_RAW + p * 32 + j * 4
    def F(i, u): return V_F + (i * 4 + u) * 4
    def acc1(t, u): return (t * 4 + u) * 4
    A_FR = 16 * R
    def fr(f): return A_FR + (f % NA) * 4
    def acc2(n, u): return V_RAW + (n % nacc) * 16 + u * 4
    V_RECV = V_RAW + 48
    nst = [0]
    def stamp_text(real=False):
        r = STREGS[nst[0]]; nst[0] += 1
        return f"s_memrealtime s[{r}:{r+1}]" if real else f"s_memtime s[{r}:{r+1}]"

    G = []
    def S(t): return Op("S", t)
    def V(t, rd=(), wr=(), **k): return Op("V", t, rd, wr, **k)
    def fixed(ops, name="", bar=False):
        g = Gap(free="fixed", name=name, bar=bar); g.ops = list(ops)
        for o in g.ops: o.gap = len(G)
        G.append(g); return g
    def txt(lines):
        out = []
        for x in lines:
            out.append(Op("V" if x.startswith("v_") else "S", x))
        return out

    def ldW(i, j):
        r = raw(i & 1, j)
        so = "0" if j == 0 else f"s{S_WOFS+j}"
        return Op("VM", f"buffer_load_dwordx4 {rg('v',r,4)}, v{V_W}, s[{S_W}:{S_W+3}], {so} offen {lw0 if i < nt0 else lw}".rstrip(),
                  rd=[f"v{V_W}"], wr=rl("v", r, 4), cls="VM", tag=("W", i, j))
    def ldSZ(m):
        r = V_T + 4 * m
        return [Op("VM", f"buffer_load_dwordx2 {rg('v',r,2)}, v{V_S+m}, s[{S_S}:{S_S+3}], 0 offen", rd=[f"v{V_S+m}"], wr=rl("v", r, 2), cls="VM"),
                Op("VM", f"buffer_load_dwordx2 {rg('v',r+2,2)}, v{V_S+m}, s[{S_Z}:{S_Z+3}], 0 offen", rd=[f"v{V_S+m}"], wr=rl("v", r + 2, 2), cls="VM")]
    def ldX(s, e):
        so = f"s{S_XOFS+e}" if e else "0"
        b = ringbuf(s)
        return Op("VM", f"buffer_load_dwordx4 v{V_X}, s[{S_X}:{S_X+3}], {so} offen offset:{(e&3)*1024} {lx} lds".rstrip(),
                  rd=[f"v{V_X}"], pre=("m0", f"s_add_u32 m0, s{S_M0X}, {b + (e>>2)*4096}"), lds=("w", b, b + R * 2048, False),
                  cls="DMA", tag=("X", s, e), grp=("X", s))
    def ldP(p, e):
        b = slot(2 * p) + e * 4096
        return Op("VM", f"buffer_load_dwordx4 v{V_X2}, s[{S_X}:{S_X+3}], s{S_P2+e} offen {lx2} lds".rstrip(),
                  rd=[f"v{V_X2}"], pre=("m0", f"s_add_u32 m0, s{S_M0W}, {b}"), lds=("w", b, b + 4096, False),
                  cls="DMA", tag=("P", p, e), grp=("P", p))
    def advW(i): return V(f"v_lshl_add_u32 v{V_W}, s{S_D9+i}, 17, v{V_W}", [f"v{V_W}"], [f"v{V_W}"])
    def advX(i): return V(f"v_lshl_add_u32 v{V_X}, s{S_D1+i}, 7, v{V_X}", [f"v{V_X}"], [f"v{V_X}"])
    def prep(m, t):
        r = V_T + 4 * m
        o = []
        for h in range(2):
            o.append(V(f"v_lshlrev_b32 v{t+2*h}, 16, v{r+h}", [f"v{r+h}"], [f"v{t+2*h}"]))
            o.append(V(f"v_and_b32 v{t+2*h+1}, s{S_MSK}, v{r+h}", [f"v{r+h}"], [f"v{t+2*h+1}"]))
        for h in range(2):
            o.append(V(f"v_lshlrev_b32 v{t+4+2*h}, 16, v{r+2+h}", [f"v{r+2+h}"], [f"v{t+4+2*h}"]))
            o.append(V(f"v_and_b32 v{t+4+2*h+1}, s{S_MSK}, v{r+2+h}", [f"v{r+2+h}"], [f"v{t+4+2*h+1}"]))
        for u in range(4):
            o.append(V(f"v_mul_f32_e64 v{t+4+u}, -v{t+4+u}, v{t+u}", [f"v{t+4+u}", f"v{t+u}"], [f"v{t+4+u}"]))
        for u in range(4):
            o.append(V(f"v_mul_f32 v{t+u}, s{S_C24}, v{t+u}", [f"v{t+u}"], [f"v{t+u}"]))
        o.append(Op("DS", f"ds_write_b128 v{V_TW}, {rg('v',t,4)} offset:{m*2048}", rd=[f"v{V_TW}"] + rl("v", t, 4), lds=("w", 0, 24576, True)))
        o.append(Op("DS", f"ds_write_b128 v{V_TW}, {rg('v',t+4,4)} offset:{m*2048+256}", rd=[f"v{V_TW}"] + rl("v", t + 4, 4), lds=("w", 0, 24576, True)))
        return o
    def rdSZ(i):
        z = V_SZ + (i & 1) * 8
        return [Op("DS", f"ds_read_b128 {rg('v',z,4)}, v{V_TR} offset:{i*512}", rd=[f"v{V_TR}"], wr=rl("v", z, 4), lds=("r", 0, 24576, True)),
                Op("DS", f"ds_read_b128 {rg('v',z+4,4)}, v{V_TR} offset:{i*512+256}", rd=[f"v{V_TR}"], wr=rl("v", z + 4, 4), lds=("r", 0, 24576, True))]
    def deq(i, jj):
        p = i & 1; z = V_SZ + p * 8
        fm = []; cv = []
        for j in (2 * jj, 2 * jj + 1):
            for u in range(4):
                r = raw(p, j) + u
                fm.append(V(f"v_fma_mix_f32 v{r}, v{r}, v{z+u}, v{z+4+u} op_sel_hi:[1,0,0]", [f"v{r}", f"v{z+u}", f"v{z+4+u}"], [f"v{r}"]))
        for u in range(4):
            a, b = raw(p, 2 * jj) + u, raw(p, 2 * jj + 1) + u
            cv.append(V(f"v_cvt_pk_bf16_f32 v{F(i,u)+jj}, v{a}, v{b}", [f"v{a}", f"v{b}"], [f"v{F(i,u)+jj}"]))
        return fm, cv
    def rdF(f, addr):
        w, off = divmod(addr, 65536)
        a = fr(f)
        return Op("DS", f"ds_read_b128 {rg('a',a,4)}, v{V_R+w} offset:{off}", rd=[f"v{V_R+w}"], wr=rl("a", a, 4), lds=("r", addr, addr + 2048, False), tag=("F", f))
    def mfma(dp, d, f, fb, first):
        dd = rg(dp, d, 4)
        return Op("M", f"v_mfma_f32_16x16x32_bf16 {dd}, {rg('a',fr(f),4)}, {rg('v',fb,4)}, {'0' if first else dd}",
                  rd=rl("a", fr(f), 4) + rl("v", fb, 4) + ([] if first else rl(dp, d, 4)), wr=rl(dp, d, 4))

    if ta:
        A_ = sum(int(c) << (4 * i) for i, c in enumerate(ta)); B_ = sum(int(c) << (4 * i) for i, c in enumerate(tb))
        rot = ["s_lshl_b32 s40, s15, 2", f"s_lshr_b32 s40, {A_}, s40", "s_and_b32 s40, s40, 15",
               "s_and_b32 s41, s18, 3", "s_lshl_b32 s41, s41, 2", f"s_lshr_b32 s41, {B_}, s41", "s_and_b32 s41, s41, 15",
               "s_add_u32 s40, s40, s41", "s_sub_u32 s41, s40, 9", "s_min_u32 s19, s40, s41"]
    else:
        rot = [f"s_mul_i32 s40, s15, {rotA}", f"s_mul_i32 s41, s18, {rotB}", "s_add_u32 s40, s40, s41", "s_mul_i32 s41, s40, 57",
               "s_lshr_b32 s41, s41, 9", "s_mul_i32 s41, s41, 9", "s_sub_u32 s19, s40, s41"]
    P = []
    if stamps: P += [S(stamp_text(True)), S(stamp_text())]
    P += txt([
        "s_cmp_ge_u32 s2, 252",
        "s_cbranch_scc1 L_end",
        "s_load_dwordx8 s[4:11], s[0:1], 0",
        "s_load_dwordx2 s[12:13], s[0:1], 32"])
    if stamps: P += txt([f"s_load_dwordx2 s[16:17], s[0:1], {40 if dbg else 48}"])
    if cpf:
        P += txt(["s_getpc_b64 s[40:41]"]) + [Op("L", "L_pc:")] + txt(["s_and_b32 s41, s41, 0xffff", "s_mov_b32 s42, L_end-L_pc", "s_mov_b32 s43, 0x20000",
                  f"v_lshlrev_b32 v15, {cpf}, v0"])
        P += [Op("VM", "buffer_load_dword v255, v15, s[40:43], 0 offen", rd=["v15"], wr=["v14x"])]
        P += txt(["s_nop 4"])
    P += txt([
        "v_lshrrev_b32 v16, 6, v0",
        "v_and_b32 v1, 63, v0",
        "v_readfirstlane_b32 s3, v16",
        "s_and_b32 s14, s2, 7",
        "s_lshr_b32 s15, s2, 3",
        "s_lshl_b32 s18, s14, 2",
        "s_and_b32 s19, s15, 3",
        "s_add_u32 s18, s18, s19",
        "s_lshr_b32 s19, s15, 2",
        "s_and_b32 s40, s14, 3",
        "s_add_u32 s40, s40, 32",
        "s_and_b32 s41, s14, 4",
        "s_add_u32 s41, s41, s15",
        "s_sub_u32 s41, s41, 28",
        "s_cmp_ge_u32 s15, 28",
        "s_cselect_b32 s18, s40, s18",
        "s_cselect_b32 s15, s41, s19",
        *rot,
        "s_lshr_b32 s64, s3, 1",
        "s_and_b32 s65, s3, 1",
        "s_lshl_b32 s18, s18, 7",
        "s_lshl_b32 s40, s65, 6",
        "s_add_u32 s18, s18, s40",
        "v_and_b32 v16, 15, v1",
        "v_lshrrev_b32 v17, 4, v1",
        f"s_mov_b32 s{S_WOFS+1}, 18432",
        "s_mul_i32 s40, s64, 9216",
        "s_lshl1_add_u32 s40, s18, s40",
        "v_lshl_add_u32 v18, v16, 3, s40",
        "v_add_u32 v19, s19, v17",
        "v_add_u32 v20, -9, v19",
        "v_min_u32 v20, v19, v20",
        f"v_mad_u32_u24 v{V_S}, v20, s{S_WOFS+1}, v18",
        "s_mul_i32 s42, s19, 1179648",
        "s_mul_i32 s43, s64, 589824",
        "s_lshl2_add_u32 s43, s18, s43",
        "s_add_u32 s42, s42, s43",
        f"v_mul_u32_u24 v{V_W}, 147456, v17",
        f"v_lshl_add_u32 v{V_W}, v16, 4, v{V_W}",
        f"v_add_u32 v{V_W}, s42, v{V_W}",
        f"s_mov_b32 s{S_W+2}, {576*4608*4}",
        f"s_mov_b32 s{S_S+2}, {18*4608*2}",
        f"s_mov_b32 s{S_Z+2}, {18*4608*2}",
        f"s_mov_b32 s{S_W+3}, 0x20000",
        f"s_mov_b32 s{S_S+3}, 0x20000",
        f"s_mov_b32 s{S_Z+3}, 0x20000"])
    P += txt([f"s_mov_b32 s{S_WOFS+k}, {k*18432}" for k in range(2, 8)])
    P += txt([
        "s_mul_i32 s14, s15, 18",
        "s_min_u32 s40, s15, 2",
        "s_add_u32 s14, s14, s40",
        "s_cmp_lt_u32 s15, 2",
        f"s_cselect_b32 s{S_NTL}, 19, 18",
        "v_lshrrev_b32 v21, 3, v1",
        "v_lshrrev_b32 v22, 4, v1",
        "v_and_b32 v22, 2, v22",
        "v_lshrrev_b32 v23, 2, v1",
        "v_and_b32 v23, 4, v23",
        "v_and_b32 v24, 7, v1",
        "v_or3_b32 v22, v22, v23, 0",
        "v_xor_b32 v22, v22, v24",
        "v_mul_u32_u24 v21, 1152, v21",
        "v_lshl_add_u32 v21, v22, 4, v21",
        f"s_mul_i32 s40, s3, {(R//2)*9216}",
        "s_lshl_b32 s15, s19, 7",
        "s_add_u32 s40, s40, s15",
        f"v_add_u32 v{V_X}, s40, v21",
        f"s_mul_i32 s{S_M0X}, s3, {(R//2)*1024}",
        f"s_mul_i32 s{S_X+2}, s{S_NTL}, 18432",
        f"s_mov_b32 s{S_X+3}, 0x20000",
        "s_mul_i32 s15, s14, 18432",
        f"s_cmp_eq_u32 s19, 8",
        f"s_cselect_b32 s{S_D1+1}, -8, 1",
        f"s_cselect_b32 s{S_D9+1}, -72, 9"])
    P += txt([f"s_mov_b32 s{S_XOFS+e}, {e*9216-(e&3)*1024}" for e in range(1, R // 2)])
    P += txt([
        "s_waitcnt lgkmcnt(0)",
        f"s_mov_b32 s{S_S}, s8", f"s_and_b32 s{S_S+1}, s9, 0xffff",
        f"s_mov_b32 s{S_Z}, s10", f"s_and_b32 s{S_Z+1}, s11, 0xffff",
        f"s_mov_b32 s{S_W}, s6", f"s_and_b32 s{S_W+1}, s7, 0xffff"])
    P += ldSZ(0)
    P += [ldW(0, j) for j in range(8)]
    P += txt([f"s_add_u32 s{S_X}, s4, s15", f"s_addc_u32 s{S_X+1}, s5, 0", f"s_and_b32 s{S_X+1}, s{S_X+1}, 0xffff"])
    P += [ldX(0, e) for e in range(R // 2)]
    P += [advW(1), advX(1)]
    P += [ldW(1, j) for j in range(8)]
    P += [ldX(1, e) for e in range(R // 2)]
    for m in (1, 2):
        P += txt([f"v_add_u32 v19, 4, v19", "v_add_u32 v20, -9, v19", "v_min_u32 v20, v19, v20",
                  f"v_mad_u32_u24 v{V_S+m}, v20, s{S_WOFS+1}, v18"])
        P += ldSZ(m)
    if stamps: P += [S(stamp_text())]
    P += txt([
        "s_mul_i32 s15, s14, 147456",
        f"s_add_u32 s{S_O}, s12, s15", f"s_addc_u32 s{S_O+1}, s13, 0", f"s_and_b32 s{S_O+1}, s{S_O+1}, 0xffff",
        f"s_mul_i32 s{S_O+2}, s{S_NTL}, 147456",
        f"s_mov_b32 s{S_O+3}, 0x20000",
        f"s_mov_b32 s{S_C24}, 0x4b800000", f"s_mov_b32 s{S_MSK}, 0xffff0000",
        f"s_lshl_b32 s{S_M0W}, s3, 10",
        "s_mul_i32 s40, s3, 6144",
        f"v_lshl_add_u32 v{V_TR}, v16, 4, s40",
        f"v_lshl_add_u32 v{V_TW}, v17, 9, v{V_TR}",
        "s_mul_i32 s40, s65, 9216",
        f"s_add_u32 s40, s40, {R*18432}",
        f"v_add_u32 v{V_X2}, s40, v21",
        "s_mul_i32 s40, s64, 18432",
        "s_lshl1_add_u32 s40, s18, s40",
        f"v_mul_u32_u24 v{V_O0}, 36864, v17",
        f"v_lshl_add_u32 v{V_O0}, v16, 3, v{V_O0}",
        f"v_add_u32 v{V_O0}, s40, v{V_O0}",
        f"v_add_u32 v{V_O1}, 9216, v{V_O0}",
        f"s_xor_b32 s40, s{S_M0W}, 2048",
        f"v_lshl_add_u32 v{V_E}, v1, 2, s40",
        f"v_xor_b32 v{V_EW}, 0x800, v{V_E}",
        "s_lshl_b32 s40, s64, 1",
        "v_xor_b32 v22, s40, v16",
        "v_lshrrev_b32 v23, 1, v22",
        "v_and_b32 v23, 2, v23",
        "v_lshlrev_b32 v24, 1, v22",
        "v_and_b32 v24, 4, v24",
        "s_lshl_b32 s40, s64, 2",
        "v_add_u32 v25, s40, v17",
        "v_xor_b32 v23, v23, v24",
        "v_xor_b32 v23, v23, v25",
        "v_lshlrev_b32 v23, 4, v23",
        f"v_lshl_add_u32 v{V_R}, v22, 7, v23",
        f"v_add_u32 v{V_R+1}, 0x10000, v{V_R}",
        f"v_add_u32 v{V_R+2}, 0x20000, v{V_R}"])
    for i in range(2, NST):
        P += txt([f"s_cmp_eq_u32 s19, {9-i}", f"s_cselect_b32 s{S_D1+i}, -8, 1", f"s_cselect_b32 s{S_D9+i}, -72, 9"])
    P += txt(["s_add_u32 s14, s19, s64"])
    for e in range(9):
        r = S_P2 + e
        if e == 4:
            P += txt(["s_add_u32 s15, s19, 8", "s_sub_u32 s40, s19, 1", "s_min_u32 s15, s15, s40", "s_lshl_b32 s15, s15, 7",
                      "s_lshl_b32 s40, s19, 7", "s_add_u32 s40, s40, 18432", "s_cmp_eq_u32 s64, 0", f"s_cselect_b32 s{S_OS}, s15, s40"])
            continue
        c = 2 * e if e < 4 else 2 * e - 9
        P += txt([f"s_add_u32 s15, s14, {c}", f"s_sub_u32 s40, s15, 9", "s_min_u32 s15, s15, s40"])
        if e < 4: P += txt([f"s_lshl_b32 s{r}, s15, 7"])
        else: P += txt(["s_lshl_b32 s15, s15, 7", f"s_add_u32 s{r}, s15, 18432"])
    P += txt([f"s_mov_b32 s{S_P2+4}, s{S_OS}"])
    P += prep(0, F(8, 0))
    P += rdSZ(0) + rdSZ(1)
    P.append(advW(2))
    first = True
    lastW = None
    for jj in range(4):
        fm, cv = deq(0, jj)
        P += fm
        if first and stamps: P += [S(stamp_text())]
        first = False
        P += cv + [ldW(2, 2 * jj), ldW(2, 2 * jj + 1)]
        lastW = P[-1]
    lastX = [o for o in P if o.tag == ("X", 1, R // 2 - 1)][0]
    fixed(P, "prologue")

    ops = []
    gB1 = {}; start = {}; flex = {}
    g = Gap(free="open", bar=True, name="B0"); gB1[0] = len(G); G.append(g)
    if stamps: g.stamp = True
    firstuse = {}; lastuse = {}; lastM = {}
    for s in range(NST):
        start[s] = len(G)
        for t in range(R):
            f = s * R + t
            for u in range(4):
                gp = Gap(mfma("a", acc1(t, u), f, F(s, u), s == 0), name=f"s{s}t{t}u{u}")
                gp.fragwait = (u == 3)
                if u == 0: firstuse[f] = len(G)
                lastuse[f] = len(G)
                lastM[("a", t, u)] = len(G)
                G.append(gp)
        if stamps and s in (4, 8): G[start[s]].stamp = True
        if s < NST - 1:
            flex[s] = len(G); G.append(Gap(free="flex", name=f"flex{s}"))
            gB1[s + 1] = flex[s] - b1
            G[gB1[s + 1]].bar = True
    st2 = {}; gB2 = {}
    for n in range(NS):
        st2[n] = len(G)
        for k in range(9):
            f = 9 * R + 9 * n + k
            for u in range(4):
                gp = Gap(mfma("v", acc2(n, u), f, F(k, u), k == 0), name=f"n{n}k{k}u{u}")
                gp.fragwait = (u == 3)
                if u == 0: firstuse[f] = len(G)
                lastuse[f] = len(G)
                lastM[("v", n, u)] = len(G)
                G.append(gp)
        gB2[n] = st2[n] + bpos
        G[gB2[n]].bar = True
    if stamps:
        G[st2[0]].stamp = True; G[st2[NS // 2]].stamp = True
    tail0 = len(G); G.append(Gap(free="open", name="tail0"))
    if stamps: G[tail0].stamp = True
    gB2[NS] = len(G); G.append(Gap(free="open", bar=True, name="tail1"))
    END = len(G) - 1

    NF = 9 * R + 9 * NS
    prevF = None
    for f in range(NF):
        if f < 9 * R:
            s, t = divmod(f, R); addr = ringbuf(s) + t * 2048; gb = gB1[s]
            nextb = gB1.get(s + 1, INF)
        else:
            n, k = divmod(f - 9 * R, 9); addr = slot(n) + k * 2048
            gb = gB1[8] if n == 0 else gB2[n - 1]
            nextb = INF
        o = rdF(f, addr)
        e = max(gb, firstuse[f] - 4 * D)
        if f >= NA: e = max(e, lastuse[f - NA])
        o.dl = min(firstuse[f] - 1, nextb - 3)
        if f < D: e = gb
        o.e = min(e, o.dl)
        assert f < NA or o.e >= lastuse[f - NA], (f, o.e, lastuse[f - NA])
        o.prio = -1000 + f
        if prevF: o.after.append((prevF, 0))
        prevF = o
        ops.append(o)
    tabw = []
    for m, tmp in ((1, F(7, 0)), (2, F(6, 0))):
        pp = prep(m, tmp)
        for k, o in enumerate(pp):
            o.e = start[m - 1] + (4 * R - 24); o.dl = flex[m - 1]; o.prio = o.dl + 0.5
            if k: o.after.append((pp[k - 1], 0))
        tabw.append(pp[-1]); ops += pp
    lastfm = {}
    szr = {}
    for i in range(1, NST):
        chain = []
        if i + 2 < NST:
            a = advW(i + 2); a.after.append((lastW, 0)); chain.append(a)
        for jj in range(4):
            fm, cv = deq(i, jj)
            chain += fm + cv
            lastfm[i] = fm[-1]
            if i + 2 < NST:
                chain += [ldW(i + 2, 2 * jj), ldW(i + 2, 2 * jj + 1)]
                lastW = chain[-1]
        prev = None
        for k, o in enumerate(chain):
            o.e = start[i - 1]; o.dl = flex[i - 1]; o.prio = o.dl
            if o.kind == "VM":
                o.after.append((prev, 0)); o.prio = o.dl - 0.5
                if chain[k - 1].kind == "VM": o.after.append((chain[k - 1], 0))
            else:
                if prev: o.after.append((prev, 0))
                prev = o
            if i in szr and o.kind == "V":
                for z in szr[i]: o.after.append((z, 4))
        ops += chain
        if i + 1 < NST:
            z = rdSZ(i + 1)
            for o in z:
                o.e = start[i - 1] + 4; o.dl = flex[i - 1]; o.prio = start[i - 1] + 2 * R
                if i - 1 in lastfm: o.after.append((lastfm[i - 1], 0))
                if i + 1 >= 4: o.after.append((tabw[(i + 1) // 4 - 1], 0))
            szr[i + 1] = z; ops += z
    for s in range(2, NST):
        a = advX(s); a.e = gB1[s - 2] - 2; a.after.append((lastX, 0)); a.prio = -500; a.dl = gB1[s - 1]
        ops.append(a); prev = a
        for e in range(R // 2):
            o = ldX(s, e); o.e = gB1[s - 2]; o.dl = gB1[s - 1] - 1; o.prio = -500; o.after.append((prev, 0)); prev = o
            ops.append(o)
        lastX = prev
    NPAIR = (NS + 1) // 2
    prev = lastX
    for p in range(NPAIR):
        if p:
            a = V(f"v_add_u32 v{V_X2}, 36864, v{V_X2}", [f"v{V_X2}"], [f"v{V_X2}"]); a.after.append((prev, 0)); a.prio = -400
            ops.append(a); prev = a
        ne = 9 if 2 * p + 1 < NS else 5
        for e in range(ne):
            o = ldP(p, e)
            if p == 0: o.e = start[6]
            elif p == 1: o.e = start[7]
            else: o.e = gB2[max(0, 2 * p - 5 if e < 4 else 2 * p - 4)]
            need = 2 * p if e <= 4 else 2 * p + 1
            o.dl = (gB1[8] if need == 0 else gB2[need - 1]) - 1
            o.prio = o.e - 300
            o.after.append((prev, 0)); prev = o
            if e == 0 and p: ops[-1].e = o.e - 2
            ops.append(o)
    units = []
    t1 = 0
    for j in range(NS + 1):
        if j >= 1: units.append(("v", j - 1, j))
        k = nb1 if j == 0 else p1per
        for _ in range(k):
            if t1 < R: units.append(("a", t1, j)); t1 += 1
    assert t1 == R
    rdone = {}; lastcv = {}; lastadd = {}; lastst = {}
    na = 0
    for q, (kp, idx, j) in enumerate(units):
        EB = (q % 6) * 8192
        base = acc1(idx, 0) if kp == "a" else acc2(idx, 0)
        tile = idx if kp == "a" else R + idx
        snd = []
        w2 = (kp == "a") or w2all
        for k in range(0, 8, 2 if w2 else 1):
            u, r = k >> 1, 2 + (k & 1)
            off = EB + (k >> 2) * 4096 + (k & 3) * 256
            ld = ("w", EB + (k >> 2) * 4096, EB + (k >> 2) * 4096 + 4096, False)
            x = base + 4 * u + r
            if w2:
                o = Op("DS", f"ds_write2st64_b32 v{V_EW}, {kp}{x}, {kp}{x+1} offset0:{off//256} offset1:{off//256+1}", rd=[f"v{V_EW}"] + rl(kp, x, 2),
                       lds=ld, cls="AT", grp=("E", q))
            else:
                o = Op("DS", f"ds_write_addtid_b32 {kp}{x} offset:{off}", rd=[f"{kp}{x}"], pre=("m0", f"s_mov_b32 m0, s{S_M0W}"),
                       lds=ld, cls="AT", grp=("E", q))
            o.e = max(lastM[(kp, idx, u)] + 4, gB1[8] if j == 0 else gB2[j - 1])
            o.e = min(o.e, tail0)
            o.dl = gB2[j] - (1 if j == NS else 2); o.prio = o.dl - 100 + (0 if kp == "v" else 1)
            if snd: o.after.append((snd[-1], w2sp if w2 else 0))
            snd.append(o)
        ops += snd
        rv = V_RECV + (q & 1) * 8
        dlf = st2.get(idx + nacc, END + 1) - 1 if kp == "v" else END
        dlf = min(dlf, gB2.get(j + 2, END))
        rcv = []
        for k in range(0, 8, 2):
            o0 = (EB + (k >> 2) * 4096 + (k & 3) * 256) // 256
            o = Op("DS", f"ds_read2st64_b32 {rg('v',rv+k,2)}, v{V_E} offset0:{o0} offset1:{o0+1}", rd=[f"v{V_E}"], wr=rl("v", rv + k, 2),
                   lds=("r", EB + (k >> 2) * 4096, EB + (k >> 2) * 4096 + 4096, False))
            o.e = gB2[j]; o.dl = min(dlf, gB2.get(j + 1, END + 3) - 3); o.prio = gB2[j] + q * 0.01
            if q - 2 in lastcv: o.after.append((lastcv[q - 2], 0))
            rcv.append(o)
        ops += rcv
        kept = []
        if kp == "a":
            kb = V_SZ + (na & 1) * 8
            for u in range(4):
                for r in range(2):
                    o = V(f"v_accvgpr_read_b32 v{kb+2*u+r}, a{base+4*u+r}", [f"a{base+4*u+r}"], [f"v{kb+2*u+r}"])
                    o.e = max(lastM[(kp, idx, u)] + 4, gB2[j] - 12); o.dl = dlf; o.prio = gB2[j] + 2 + q * 0.01
                    if ("a", na - 2) in lastadd: o.after.append((lastadd[("a", na - 2)], 0))
                    kept.append(o)
            ops += kept
        adds = []
        for u in range(4):
            src = V_SZ + (na & 1) * 8 + 2 * u if kp == "a" else base + 4 * u
            if pk:
                lst = [V(f"v_pk_add_f32 {rg('v',rv+2*u,2)}, {rg('v',src,2)}, {rg('v',rv+2*u,2)}", rl("v", src, 2) + rl("v", rv + 2 * u, 2), rl("v", rv + 2 * u, 2))]
            else:
                lst = [V(f"v_add_f32 v{rv+2*u+r}, v{src+r}, v{rv+2*u+r}", [f"v{src+r}", f"v{rv+2*u+r}"], [f"v{rv+2*u+r}"]) for r in range(2)]
            for o in lst:
                o.e = gB2[j]; o.dl = dlf; o.prio = gB2[j] + 4 + q * 0.01
                o.after.append((rcv[u], recvd))
                if kp == "a": o.after += [(kept[2 * u], 0), (kept[2 * u + 1], 0)]
                if adds: o.after.append((adds[-1], 0))
                adds.append(o)
        ops += adds
        if not pk: adds = adds[1::2]
        if kp == "a":
            lastadd[("a", na)] = adds[-1]; na += 1
        ob = V_T + (q & 3) * 4
        prev = None
        for rho in range(2):
            cvs = []
            for h in range(2):
                a, b = rv + 4 * h + rho, rv + 4 * h + 2 + rho
                o = V(f"v_cvt_pk_bf16_f32 v{ob+2*rho+h}, v{a}, v{b}", [f"v{a}", f"v{b}"], [f"v{ob+2*rho+h}"])
                o.e = gB2[j]; o.dl = END; o.prio = gB2[j] + 6 + q * 0.01
                o.after += [(adds[2 * h], 0), (adds[2 * h + 1], 0)]
                if q - 4 in lastst: o.after.append((lastst[q - 4], 1))
                if prev: o.after.append((prev, 0))
                prev = o
                cvs.append(o)
            lastcv[q] = cvs[-1]
            vo = V_O1 if rho else V_O0
            o = Op("VM", f"buffer_store_dwordx2 {rg('v',ob+2*rho,2)}, v{vo}, s[{S_O}:{S_O+3}], s{S_OS} offen {st if mix[q % len(mix)] == '1' else ''}".rstrip(),
                   rd=rl("v", ob + 2 * rho, 2) + [f"v{vo}"], pre=(f"s{S_OS}", f"s_mov_b32 s{S_OS}, {tile*147456}"), cls="ST", tag=("O", tile))
            o.e = gB2[j]; o.dl = END; o.prio = gB2[j] + 7 + q * 0.01
            o.after += [(c, 0) for c in cvs]
            if rho: o.after.append((lastst[q], 0))
            elif q - 1 in lastst: o.after.append((lastst[q - 1], 0))
            lastst[q] = o
            ops += cvs + [o]

    pend = sorted(ops, key=lambda o: (o.prio, o.id))
    cur = {}
    for o in G[0].ops:
        if o.pre: cur[o.pre[0]] = o.pre[1]
    lastvm = -99; lastdma = -99
    for gi, g in enumerate(G):
        if g.free == "fixed": continue
        room = 2
        sc_used = g.fragwait or g.bar
        if g.bar and not g.free: room -= 1
        m0user = None; nat = 0; osuser = None
        while True:
            pick = None
            for o in pend:
                if o.e > gi: continue
                if g.free:
                    if g.free == "flex" and o.dl > gi: continue
                    if any(a.gap is None for a, d in o.after): continue
                    if g.name == "B0" and not (o.tag and o.tag[0] == "F" and o.tag[1] < D) and o.prio > -400: continue
                    pick = o; break
                if any(a.gap is None or a.gap + d > gi for a, d in o.after): continue
                cost = 1
                chg = o.pre and cur.get(o.pre[0]) != o.pre[1]
                if chg and sc_used: cost = 2
                if cost > room: continue
                if o.pre and o.pre[0] == "m0" and m0user is not None and (chg or True) and m0user != o.pre[1]: continue
                if o.pre and o.pre[0] != "m0" and osuser is not None and osuser != o.pre[1]: continue
                urgent = o.dl - gi <= 2
                if o.cls == "AT" and nat >= 1 and not urgent: continue
                if o.kind == "VM" and gi - lastvm < vmsp and not urgent: continue
                if o.cls == "DMA" and gi >= st2[0] and gi - lastdma < dmasp and not urgent: continue
                pick = o; break
            if pick is None: break
            o = pick
            pend.remove(o); o.gap = gi; g.ops.append(o)
            chg = o.pre and cur.get(o.pre[0]) != o.pre[1]
            if o.pre:
                cur[o.pre[0]] = o.pre[1]
                if o.pre[0] == "m0": m0user = o.pre[1]
                else: osuser = o.pre[1]
            if not g.free:
                room -= 1
                if chg:
                    if sc_used: room -= 1
                    sc_used = True
            if o.cls == "AT": nat += 1
            if o.kind == "VM": lastvm = gi
            if o.cls == "DMA": lastdma = gi
            if room <= 0 and not g.free: break
    assert not pend, [(o.text, o.e, o.dl) for o in pend[:10]]
    late = [o for o in ops if o.gap > o.dl]
    assert not late, [(o.text, o.gap, o.dl, G[o.gap].name) for o in late[:10]]

    def dropped(o):
        if "s" in drop and o.cls == "ST": return True
        if "d" in drop and o.tag and o.tag[0] == "P" and o.tag[1] >= 2: return True
        if "x" in drop and (o.cls == "AT" or o.text.startswith("ds_read2st64")): return True
        if "v" in drop and o.kind == "V" and o.gap >= st2[0]: return True
        if "f" in drop and o.tag and o.tag[0] == "F" and o.gap >= st2[0]: return True
        if "W" in drop and o.tag and o.tag[0] == "W" and o.tag[1] >= 3: return True
        if "X" in drop and o.tag and o.tag[0] == "X" and o.tag[1] >= 3: return True
        if "q" in drop and o.kind == "V" and start[0] <= o.gap < st2[0]: return True
        return False
    for gi, g in enumerate(G):
        g.ops = [o for o in g.ops if not dropped(o)]
        if "b" in drop and gi >= st2[0] and g.mfma: g.bar = False
        if "B" in drop and gi < st2[0] and g.mfma: g.bar = False
    Lz = []
    cur = {}
    for gi, g in enumerate(G):
        if g.label: Lz.append(Op("L", g.label))
        if g.mfma: Lz.append(g.mfma)
        if g.stamp: Lz.append(S(stamp_text()))
        if g.free:
            if g.bar: Lz.append(Op("B", "s_barrier"))
            for o in g.ops:
                if o.pre and cur.get(o.pre[0]) != o.pre[1]:
                    cur[o.pre[0]] = o.pre[1]; Lz.append(Op("S", o.pre[1], wr=[o.pre[0]]))
                Lz.append(o)
        else:
            lst = g.ops
            if len(lst) == 2 and lst[0].pre and lst[0].pre[0] == "m0" and not lst[1].pre and not any(a is lst[0] for a, d in lst[1].after) \
               and not (lst[0].kind == lst[1].kind) and not (set(lst[0].rd) & set(lst[1].wr)):
                lst = [lst[1], lst[0]]
            for o in lst:
                if o.pre and cur.get(o.pre[0]) != o.pre[1]:
                    cur[o.pre[0]] = o.pre[1]; Lz.append(Op("S", o.pre[1], wr=[o.pre[0]]))
            wm = Op("WM", ""); wm.look = list(lst) + ([G[gi + 1].mfma] if gi + 1 < len(G) and G[gi + 1].mfma else [])
            Lz.append(wm)
            if g.bar:
                b = Op("B", "s_barrier"); Lz.append(b); wm.look.append(b)
            for spec in (wb.split(",") if wb else []):
                stp, who = spec.split(":")
                if gi == gB2.get(int(stp)) + 1:
                    lab = f"L_wb{stp}"
                    if who == "8":
                        Lz.append(S("s_lshl_b32 s15, s3, 8")); Lz.append(S("s_add_u32 s15, s15, s2")); Lz.append(S("s_cmp_lt_u32 s15, 8"))
                    elif who == "a":
                        Lz.append(S("s_cmp_eq_u32 s3, 0"))
                    Lz.append(S(f"s_cbranch_scc0 {lab}"))
                    Lz.append(S("buffer_wbl2 sc1"))
                    Lz.append(Op("L", lab + ":"))
            Lz += lst
    acc = [(k, o) for k, o in enumerate(Lz) if o.lds]
    bars = [k for k, o in enumerate(Lz) if o.kind == "B"]
    import bisect
    for y in range(len(acc)):
        ky, oy = acc[y]
        bi = bisect.bisect_left(bars, ky) - 1
        for x in range(y):
            kx, ox = acc[x]
            if ox.lds[0] == "r" and oy.lds[0] == "r": continue
            if ox.lds[0] == "w" and oy.lds[0] == "w": continue
            if ox.lds[3] and oy.lds[3]: continue
            if ox.lds[2] <= oy.lds[1] or oy.lds[2] <= ox.lds[1]: continue
            if drop and not (bi >= 0 and bars[bi] > kx): continue
            assert bi >= 0 and bars[bi] > kx, ("LDS race", ox.text, G[ox.gap].name, oy.text, G[oy.gap].name)
            Lz[bars[bi]].needs.append(ox)
    issued = {"VM": 0, "DS": 0}; done = {"VM": -1, "DS": -1}; CAP = {"VM": 63, "DS": 15}
    pendreg = {}
    out = []
    inl = 0
    def needs_of(o):
        n = {"VM": -1, "DS": -1}
        for r in o.rd + o.wr:
            if r in pendreg:
                q, i = pendreg[r]; n[q] = max(n[q], i)
        for x in o.needs:
            if hasattr(x, "qi"): n[x.kind] = max(n[x.kind], x.qi)
        return n
    def dowait(n):
        w = []
        for q, nm in (("VM", "vmcnt"), ("DS", "lgkmcnt")):
            if n[q] > done[q]:
                c = min(issued[q] - 1 - n[q], CAP[q])
                done[q] = issued[q] - 1 - c
                w.append(f"{nm}({c})")
        if w: out.append(Op("S", "s_waitcnt " + " ".join(w)))
        return bool(w)
    for o in Lz:
        if o.kind == "WM":
            n = {"VM": -1, "DS": -1}
            for x in o.look:
                m = needs_of(x)
                for q in n: n[q] = max(n[q], m[q])
            dowait(n); continue
        if dowait(needs_of(o)): inl += 1
        if o.kind in ("VM", "DS"):
            o.qi = issued[o.kind]; issued[o.kind] += 1
            for r in o.wr: pendreg[r] = (o.kind, o.qi)
        out.append(o)
    fin = []
    t = 0
    wV = {}; wM = {}; wS = {}
    nops = 0
    for o in out:
        need = 0
        if o.kind == "M":
            for r in o.rd: need = max(need, wV.get(r, -99) + 3 - t)
        elif o.kind in ("V", "DS", "VM"):
            for r in o.rd + o.wr: need = max(need, wM.get(r, -99) + 10 - t)
            if o.pre and o.pre[0] == "m0": need = max(need, wS.get("m0", -99) + 2 - t)
        if need > 0:
            fin.append(Op("S", f"s_nop {need-1}")); t += need; nops += 1
        if o.kind == "V":
            for r in o.wr: wV[r] = t
        elif o.kind == "M":
            for r in o.wr: wM[r] = t
        elif o.kind == "S":
            for r in o.wr: wS[r] = t
        fin.append(o)
        t += 2 if o.kind == "M" else 1
    if verbose:
        print("inline waits", inl, "nops", nops, "instr", len(fin), file=sys.stderr)
        for gi, g in enumerate(G):
            if g.free: print(gi, g.name, len(g.ops), file=sys.stderr)

    L = []
    A = L.append
    A("; @launch grid=(252,1,1) block=(256,1,1) lds=163840")
    A('.amdgcn_target "amdgcn-amd-amdhsa--gfx950"')
    A(".text"); A(f".globl {NAME}"); A(".p2align 8"); A(f".type {NAME},@function"); A(f"{NAME}:")
    for o in fin: A(o.text if o.kind == "L" else "  " + o.text)
    if stamps:
        A("  " + stamp_text()); A("  s_waitcnt vmcnt(0)"); A("  " + stamp_text()); A("  " + stamp_text(True))
        n = nst[0]
        if dbg:
            for x in ["s_waitcnt lgkmcnt(0)", "s_cmp_lg_u32 s3, 0", "s_cbranch_scc1 L_end",
                      "s_lshr_b32 s18, s2, 6", "s_mul_i32 s19, s18, 65", "s_cmp_lg_u32 s19, s2", "s_cbranch_scc1 L_end",
                      "s_mov_b32 s20, s16", "s_and_b32 s21, s17, 0xffff", "s_mov_b32 s22, 256", "s_mov_b32 s23, 0x20000",
                      "s_lshl_b32 s18, s18, 4", "v_mov_b32 v2, s18", "s_mov_b64 exec, 1"]: A("  " + x)
            for j, k in enumerate((4, 5, 7, 11)):
                A(f"  s_sub_u32 s19, s{STREGS[k]}, s{STREGS[1]}"); A(f"  v_mov_b32 v{4+j}, s19")
            A("  buffer_store_dwordx4 v[4:7], v2, s[20:23], 0 offen"); A("  s_waitcnt vmcnt(0)"); A("  s_endpgm")
        for x in ["s_waitcnt lgkmcnt(0)", "s_cmp_lg_u32 s3, 0", "s_cbranch_scc1 L_end",
                  "s_mov_b32 s20, s16", "s_and_b32 s21, s17, 0xffff", "s_mov_b32 s22, 0x100000", "s_mov_b32 s23, 0x20000",
                  f"s_mul_i32 s18, s2, {n*8}", "v_mov_b32 v2, s18", "s_mov_b64 exec, 1"]: A("  " + x)
        for k in range(n):
            for x in [f"v_mov_b32 v4, s{STREGS[k]}", f"v_mov_b32 v5, s{STREGS[k]+1}",
                      f"buffer_store_dwordx2 v[4:5], v2, s[20:23], 0 offen offset:{8*k}", "s_nop 1"]: A("  " + x)
        A("  s_waitcnt vmcnt(0)")
    A("L_end:"); A("  s_endpgm")
    A('.section .rodata,"a"'); A(".p2align 6"); A(f".amdhsa_kernel {NAME}")
    A(f"  .amdhsa_next_free_vgpr {256 + A_FR + NA*4}")
    A("  .amdhsa_next_free_sgpr 102")
    A("  .amdhsa_accum_offset 256")
    A("  .amdhsa_group_segment_fixed_size 0")
    A("  .amdhsa_kernarg_size 56")
    A("  .amdhsa_user_sgpr_count 2")
    A("  .amdhsa_user_sgpr_kernarg_segment_ptr 1")
    A("  .amdhsa_system_sgpr_workgroup_id_x 1")
    A("  .amdhsa_float_denorm_mode_32 3")
    A(".end_amdhsa_kernel")
    return "\n".join(L) + "\n", nst[0]

if __name__ == "__main__":
    ap = argparse.ArgumentParser()
    ap.add_argument("-o", default="k2.s")
    for k, d in dict(R=8, rotA=4, rotB=2, D=3, NA=5, b1=8, bpos=20, nb1=2, vmsp=2, dmasp=4, nacc=3, recvd=5, p1per=1, w2all=0, w2sp=2, pk=0, cpf=0, dbg=0, nt0=0).items():
        ap.add_argument("--" + k, type=int, default=d)
    ap.add_argument("--stamps", action="store_true")
    ap.add_argument("-v", dest="verbose", action="store_true")
    for k in ("st", "lw", "lx", "lx2", "drop", "ta"): ap.add_argument("--" + k, default="")
    ap.add_argument("--tb", default="0000")
    ap.add_argument("--lw0", default="nt")
    ap.add_argument("--mix", default="1")
    ap.add_argument("--wb", default="")
    a = vars(ap.parse_args())
    o = a.pop("o")
    s, n = gen(**a)
    open(o, "w").write(s)
    print(o, "lines", s.count("\n"), "stamps", n)
```

```python
import sys, argparse
NAME = "standalone__w4a16_gemm_dequant__prompt_kernel"
INF = 10 ** 9

def rl(p, b, n): return [f"{p}{b+i}" for i in range(n)]
def rg(p, b, n): return f"{p}[{b}:{b+n-1}]" if n > 1 else f"{p}{b}"

class Op:
    cnt = 0
    def __init__(s, kind, text, rd=(), wr=(), pre=None, lds=None, cls=None, e=0, dl=INF, prio=None, after=(), tag=None, grp=None):
        s.kind = kind; s.text = text; s.rd = list(rd); s.wr = list(wr); s.pre = pre; s.lds = lds; s.cls = cls
        s.e = e; s.dl = dl; s.prio = dl if prio is None else prio; s.after = list(after); s.tag = tag; s.grp = grp
        s.gap = None; s.needs = []; s.id = Op.cnt; Op.cnt += 1

class Gap:
    def __init__(s, mfma=None, free=None, bar=False, name=""):
        s.mfma = mfma; s.free = free; s.bar = bar; s.ops = []; s.name = name; s.stamp = False; s.label = None
        s.fragwait = False

def gen(R=8, rotA=4, rotB=2, D=3, NA=5, b1=8, bpos=20, nb1=2, vmsp=2, dmasp=4, stamps=False, st="", lw="", lx="", lx2="",
        nacc=3, skip18=True, verbose=False, recvd=5, p1per=1, w2all=0, w2sp=2, drop='', pk=0, ta='', tb='0000', mix='1', wb='', cpf=0, dbg=0, lw0='nt', nt0=0, probe=''):
    NT, NST = 19, 9
    NS = NT - R
    assert R % 2 == 0 and 4 <= R <= 10
    RING = 24576
    SLOT0 = 53248
    def ringbuf(s): return RING + (s % 3) * R * 2048
    def slot(n): return SLOT0 + ((n + 2) % 6) * 18432
    assert RING + 3 * R * 2048 <= slot(0)
    S_X, S_W, S_S, S_Z, S_O = 20, 24, 28, 32, 36
    S_WOFS, S_XOFS, S_P2, S_D1, S_D9 = 40, 48, 56, 66, 75
    S_M0X, S_M0W, S_C24, S_MSK, S_OS, S_NTL = 84, 85, 86, 87, 88, 89
    STREGS = [90, 92, 94, 96, 98, 100, 4, 6, 8, 10, 12, 14, 66, 68]
    V_W, V_X, V_X2, V_R, V_O0, V_O1, V_TR, V_TW, V_E, V_S = 2, 3, 4, 5, 8, 9, 10, 11, 12, 13
    V_SZ, V_RAW, V_F, V_T = 16, 32, 96, 240
    V_EW = 0
    def raw(p, j): return V_RAW + p * 32 + j * 4
    def F(i, u): return V_F + (i * 4 + u) * 4
    def acc1(t, u): return (t * 4 + u) * 4
    A_FR = 16 * R
    def fr(f): return A_FR + (f % NA) * 4
    def acc2(n, u): return V_RAW + (n % nacc) * 16 + u * 4
    V_RECV = V_RAW + 48
    nst = [0]
    def stamp_text(real=False):
        r = STREGS[nst[0]]; nst[0] += 1
        return f"s_memrealtime s[{r}:{r+1}]" if real else f"s_memtime s[{r}:{r+1}]"

    G = []
    def S(t): return Op("S", t)
    def V(t, rd=(), wr=(), **k): return Op("V", t, rd, wr, **k)
    def fixed(ops, name="", bar=False):
        g = Gap(free="fixed", name=name, bar=bar); g.ops = list(ops)
        for o in g.ops: o.gap = len(G)
        G.append(g); return g
    def txt(lines):
        out = []
        for x in lines:
            out.append(Op("V" if x.startswith("v_") else "S", x))
        return out

    def ldW(i, j):
        r = raw(i & 1, j)
        so = "0" if j == 0 else f"s{S_WOFS+j}"
        return Op("VM", f"buffer_load_dwordx4 {rg('v',r,4)}, v{V_W}, s[{S_W}:{S_W+3}], {so} offen {lw0 if i < nt0 else lw}".rstrip(),
                  rd=[f"v{V_W}"], wr=rl("v", r, 4), cls="VM", tag=("W", i, j))
    def ldSZ(m):
        r = V_T + 4 * m
        return [Op("VM", f"buffer_load_dwordx2 {rg('v',r,2)}, v{V_S+m}, s[{S_S}:{S_S+3}], 0 offen", rd=[f"v{V_S+m}"], wr=rl("v", r, 2), cls="VM"),
                Op("VM", f"buffer_load_dwordx2 {rg('v',r+2,2)}, v{V_S+m}, s[{S_Z}:{S_Z+3}], 0 offen", rd=[f"v{V_S+m}"], wr=rl("v", r + 2, 2), cls="VM")]
    def ldX(s, e):
        so = f"s{S_XOFS+e}" if e else "0"
        b = ringbuf(s)
        return Op("VM", f"buffer_load_dwordx4 v{V_X}, s[{S_X}:{S_X+3}], {so} offen offset:{(e&3)*1024} {lx} lds".rstrip(),
                  rd=[f"v{V_X}"], pre=("m0", f"s_add_u32 m0, s{S_M0X}, {b + (e>>2)*4096}"), lds=("w", b, b + R * 2048, False),
                  cls="DMA", tag=("X", s, e), grp=("X", s))
    def ldP(p, e):
        b = slot(2 * p) + e * 4096
        return Op("VM", f"buffer_load_dwordx4 v{V_X2}, s[{S_X}:{S_X+3}], s{S_P2+e} offen {lx2} lds".rstrip(),
                  rd=[f"v{V_X2}"], pre=("m0", f"s_add_u32 m0, s{S_M0W}, {b}"), lds=("w", b, b + 4096, False),
                  cls="DMA", tag=("P", p, e), grp=("P", p))
    def advW(i): return V(f"v_lshl_add_u32 v{V_W}, s{S_D9+i}, 17, v{V_W}", [f"v{V_W}"], [f"v{V_W}"])
    def advX(i): return V(f"v_lshl_add_u32 v{V_X}, s{S_D1+i}, 7, v{V_X}", [f"v{V_X}"], [f"v{V_X}"])
    def prep(m, t):
        r = V_T + 4 * m
        o = []
        for h in range(2):
            o.append(V(f"v_lshlrev_b32 v{t+2*h}, 16, v{r+h}", [f"v{r+h}"], [f"v{t+2*h}"]))
            o.append(V(f"v_and_b32 v{t+2*h+1}, s{S_MSK}, v{r+h}", [f"v{r+h}"], [f"v{t+2*h+1}"]))
        for h in range(2):
            o.append(V(f"v_lshlrev_b32 v{t+4+2*h}, 16, v{r+2+h}", [f"v{r+2+h}"], [f"v{t+4+2*h}"]))
            o.append(V(f"v_and_b32 v{t+4+2*h+1}, s{S_MSK}, v{r+2+h}", [f"v{r+2+h}"], [f"v{t+4+2*h+1}"]))
        for u in range(4):
            o.append(V(f"v_mul_f32_e64 v{t+4+u}, -v{t+4+u}, v{t+u}", [f"v{t+4+u}", f"v{t+u}"], [f"v{t+4+u}"]))
        for u in range(4):
            o.append(V(f"v_mul_f32 v{t+u}, s{S_C24}, v{t+u}", [f"v{t+u}"], [f"v{t+u}"]))
        o.append(Op("DS", f"ds_write_b128 v{V_TW}, {rg('v',t,4)} offset:{m*2048}", rd=[f"v{V_TW}"] + rl("v", t, 4), lds=("w", 0, 24576, True)))
        o.append(Op("DS", f"ds_write_b128 v{V_TW}, {rg('v',t+4,4)} offset:{m*2048+256}", rd=[f"v{V_TW}"] + rl("v", t + 4, 4), lds=("w", 0, 24576, True)))
        return o
    def rdSZ(i):
        z = V_SZ + (i & 1) * 8
        return [Op("DS", f"ds_read_b128 {rg('v',z,4)}, v{V_TR} offset:{i*512}", rd=[f"v{V_TR}"], wr=rl("v", z, 4), lds=("r", 0, 24576, True)),
                Op("DS", f"ds_read_b128 {rg('v',z+4,4)}, v{V_TR} offset:{i*512+256}", rd=[f"v{V_TR}"], wr=rl("v", z + 4, 4), lds=("r", 0, 24576, True))]
    def deq(i, jj):
        p = i & 1; z = V_SZ + p * 8
        fm = []; cv = []
        for j in (2 * jj, 2 * jj + 1):
            for u in range(4):
                r = raw(p, j) + u
                fm.append(V(f"v_fma_mix_f32 v{r}, v{r}, v{z+u}, v{z+4+u} op_sel_hi:[1,0,0]", [f"v{r}", f"v{z+u}", f"v{z+4+u}"], [f"v{r}"]))
        for u in range(4):
            a, b = raw(p, 2 * jj) + u, raw(p, 2 * jj + 1) + u
            cv.append(V(f"v_cvt_pk_bf16_f32 v{F(i,u)+jj}, v{a}, v{b}", [f"v{a}", f"v{b}"], [f"v{F(i,u)+jj}"]))
        return fm, cv
    def rdF(f, addr):
        w, off = divmod(addr, 65536)
        a = fr(f)
        return Op("DS", f"ds_read_b128 {rg('a',a,4)}, v{V_R+w} offset:{off}", rd=[f"v{V_R+w}"], wr=rl("a", a, 4), lds=("r", addr, addr + 2048, False), tag=("F", f))
    def mfma(dp, d, f, fb, first):
        dd = rg(dp, d, 4)
        return Op("M", f"v_mfma_f32_16x16x32_bf16 {dd}, {rg('a',fr(f),4)}, {rg('v',fb,4)}, {'0' if first else dd}",
                  rd=rl("a", fr(f), 4) + rl("v", fb, 4) + ([] if first else rl(dp, d, 4)), wr=rl(dp, d, 4))

    if ta:
        A_ = sum(int(c) << (4 * i) for i, c in enumerate(ta)); B_ = sum(int(c) << (4 * i) for i, c in enumerate(tb))
        rot = ["s_lshl_b32 s40, s15, 2", f"s_lshr_b32 s40, {A_}, s40", "s_and_b32 s40, s40, 15",
               "s_and_b32 s41, s18, 3", "s_lshl_b32 s41, s41, 2", f"s_lshr_b32 s41, {B_}, s41", "s_and_b32 s41, s41, 15",
               "s_add_u32 s40, s40, s41", "s_sub_u32 s41, s40, 9", "s_min_u32 s19, s40, s41"]
    else:
        rot = [f"s_mul_i32 s40, s15, {rotA}", f"s_mul_i32 s41, s18, {rotB}", "s_add_u32 s40, s40, s41", "s_mul_i32 s41, s40, 57",
               "s_lshr_b32 s41, s41, 9", "s_mul_i32 s41, s41, 9", "s_sub_u32 s19, s40, s41"]
    P = []
    if stamps: P += [S(stamp_text(True)), S(stamp_text())]
    P += txt([
        "s_cmp_ge_u32 s2, 252",
        "s_cbranch_scc1 L_end",
        "s_load_dwordx8 s[4:11], s[0:1], 0",
        "s_load_dwordx2 s[12:13], s[0:1], 32"])
    if stamps: P += txt([f"s_load_dwordx2 s[16:17], s[0:1], {40 if dbg else 48}"])
    if cpf:
        P += txt(["s_getpc_b64 s[40:41]"]) + [Op("L", "L_pc:")] + txt(["s_and_b32 s41, s41, 0xffff", "s_mov_b32 s42, L_end-L_pc", "s_mov_b32 s43, 0x20000",
                  f"v_lshlrev_b32 v15, {cpf}, v0"])
        P += [Op("VM", "buffer_load_dword v255, v15, s[40:43], 0 offen", rd=["v15"], wr=["v14x"])]
        P += txt(["s_nop 4"])
    P += txt([
        "v_lshrrev_b32 v16, 6, v0",
        "v_and_b32 v1, 63, v0",
        "v_readfirstlane_b32 s3, v16",
        "s_and_b32 s14, s2, 7",
        "s_lshr_b32 s15, s2, 3",
        "s_lshl_b32 s18, s14, 2",
        "s_and_b32 s19, s15, 3",
        "s_add_u32 s18, s18, s19",
        "s_lshr_b32 s19, s15, 2",
        "s_and_b32 s40, s14, 3",
        "s_add_u32 s40, s40, 32",
        "s_and_b32 s41, s14, 4",
        "s_add_u32 s41, s41, s15",
        "s_sub_u32 s41, s41, 28",
        "s_cmp_ge_u32 s15, 28",
        "s_cselect_b32 s18, s40, s18",
        "s_cselect_b32 s15, s41, s19",
        *rot,
        "s_lshr_b32 s64, s3, 1",
        "s_and_b32 s65, s3, 1",
        "s_lshl_b32 s18, s18, 7",
        "s_lshl_b32 s40, s65, 6",
        "s_add_u32 s18, s18, s40",
        "v_and_b32 v16, 15, v1",
        "v_lshrrev_b32 v17, 4, v1",
        f"s_mov_b32 s{S_WOFS+1}, 18432",
        "s_mul_i32 s40, s64, 9216",
        "s_lshl1_add_u32 s40, s18, s40",
        "v_lshl_add_u32 v18, v16, 3, s40",
        "v_add_u32 v19, s19, v17",
        "v_add_u32 v20, -9, v19",
        "v_min_u32 v20, v19, v20",
        f"v_mad_u32_u24 v{V_S}, v20, s{S_WOFS+1}, v18",
        "s_mul_i32 s42, s19, 1179648",
        "s_mul_i32 s43, s64, 589824",
        "s_lshl2_add_u32 s43, s18, s43",
        "s_add_u32 s42, s42, s43",
        f"v_mul_u32_u24 v{V_W}, 147456, v17",
        f"v_lshl_add_u32 v{V_W}, v16, 4, v{V_W}",
        f"v_add_u32 v{V_W}, s42, v{V_W}",
        f"s_mov_b32 s{S_W+2}, {576*4608*4}",
        f"s_mov_b32 s{S_S+2}, {18*4608*2}",
        f"s_mov_b32 s{S_Z+2}, {18*4608*2}",
        f"s_mov_b32 s{S_W+3}, 0x20000",
        f"s_mov_b32 s{S_S+3}, 0x20000",
        f"s_mov_b32 s{S_Z+3}, 0x20000"])
    P += txt([f"s_mov_b32 s{S_WOFS+k}, {k*18432}" for k in range(2, 8)])
    P += txt([
        "s_mul_i32 s14, s15, 18",
        "s_min_u32 s40, s15, 2",
        "s_add_u32 s14, s14, s40",
        "s_cmp_lt_u32 s15, 2",
        f"s_cselect_b32 s{S_NTL}, 19, 18",
        "v_lshrrev_b32 v21, 3, v1",
        "v_lshrrev_b32 v22, 4, v1",
        "v_and_b32 v22, 2, v22",
        "v_lshrrev_b32 v23, 2, v1",
        "v_and_b32 v23, 4, v23",
        "v_and_b32 v24, 7, v1",
        "v_or3_b32 v22, v22, v23, 0",
        "v_xor_b32 v22, v22, v24",
        "v_mul_u32_u24 v21, 1152, v21",
        "v_lshl_add_u32 v21, v22, 4, v21",
        f"s_mul_i32 s40, s3, {(R//2)*9216}",
        "s_lshl_b32 s15, s19, 7",
        "s_add_u32 s40, s40, s15",
        f"v_add_u32 v{V_X}, s40, v21",
        f"s_mul_i32 s{S_M0X}, s3, {(R//2)*1024}",
        f"s_mul_i32 s{S_X+2}, s{S_NTL}, 18432",
        f"s_mov_b32 s{S_X+3}, 0x20000",
        "s_mul_i32 s15, s14, 18432",
        f"s_cmp_eq_u32 s19, 8",
        f"s_cselect_b32 s{S_D1+1}, -8, 1",
        f"s_cselect_b32 s{S_D9+1}, -72, 9"])
    P += txt([f"s_mov_b32 s{S_XOFS+e}, {e*9216-(e&3)*1024}" for e in range(1, R // 2)])
    P += txt([
        "s_waitcnt lgkmcnt(0)",
        f"s_mov_b32 s{S_S}, s8", f"s_and_b32 s{S_S+1}, s9, 0xffff",
        f"s_mov_b32 s{S_Z}, s10", f"s_and_b32 s{S_Z+1}, s11, 0xffff",
        f"s_mov_b32 s{S_W}, s6", f"s_and_b32 s{S_W+1}, s7, 0xffff"])
    P += ldSZ(0)
    P += [ldW(0, j) for j in range(8)]
    P += txt([f"s_add_u32 s{S_X}, s4, s15", f"s_addc_u32 s{S_X+1}, s5, 0", f"s_and_b32 s{S_X+1}, s{S_X+1}, 0xffff"])
    P += [ldX(0, e) for e in range(R // 2)]
    P += [advW(1), advX(1)]
    P += [ldW(1, j) for j in range(8)]
    P += [ldX(1, e) for e in range(R // 2)]
    for m in (1, 2):
        P += txt([f"v_add_u32 v19, 4, v19", "v_add_u32 v20, -9, v19", "v_min_u32 v20, v19, v20",
                  f"v_mad_u32_u24 v{V_S+m}, v20, s{S_WOFS+1}, v18"])
        P += ldSZ(m)
    if stamps: P += [S(stamp_text())]
    P += txt([
        "s_mul_i32 s15, s14, 147456",
        f"s_add_u32 s{S_O}, s12, s15", f"s_addc_u32 s{S_O+1}, s13, 0", f"s_and_b32 s{S_O+1}, s{S_O+1}, 0xffff",
        f"s_mul_i32 s{S_O+2}, s{S_NTL}, 147456",
        f"s_mov_b32 s{S_O+3}, 0x20000",
        f"s_mov_b32 s{S_C24}, 0x4b800000", f"s_mov_b32 s{S_MSK}, 0xffff0000",
        f"s_lshl_b32 s{S_M0W}, s3, 10",
        "s_mul_i32 s40, s3, 6144",
        f"v_lshl_add_u32 v{V_TR}, v16, 4, s40",
        f"v_lshl_add_u32 v{V_TW}, v17, 9, v{V_TR}",
        "s_mul_i32 s40, s65, 9216",
        f"s_add_u32 s40, s40, {R*18432}",
        f"v_add_u32 v{V_X2}, s40, v21",
        "s_mul_i32 s40, s64, 18432",
        "s_lshl1_add_u32 s40, s18, s40",
        f"v_mul_u32_u24 v{V_O0}, 36864, v17",
        f"v_lshl_add_u32 v{V_O0}, v16, 3, v{V_O0}",
        f"v_add_u32 v{V_O0}, s40, v{V_O0}",
        f"v_add_u32 v{V_O1}, 9216, v{V_O0}",
        f"s_xor_b32 s40, s{S_M0W}, 2048",
        f"v_lshl_add_u32 v{V_E}, v1, 2, s40",
        f"v_xor_b32 v{V_EW}, 0x800, v{V_E}",
        "s_lshl_b32 s40, s64, 1",
        "v_xor_b32 v22, s40, v16",
        "v_lshrrev_b32 v23, 1, v22",
        "v_and_b32 v23, 2, v23",
        "v_lshlrev_b32 v24, 1, v22",
        "v_and_b32 v24, 4, v24",
        "s_lshl_b32 s40, s64, 2",
        "v_add_u32 v25, s40, v17",
        "v_xor_b32 v23, v23, v24",
        "v_xor_b32 v23, v23, v25",
        "v_lshlrev_b32 v23, 4, v23",
        f"v_lshl_add_u32 v{V_R}, v22, 7, v23",
        f"v_add_u32 v{V_R+1}, 0x10000, v{V_R}",
        f"v_add_u32 v{V_R+2}, 0x20000, v{V_R}"])
    for i in range(2, NST):
        P += txt([f"s_cmp_eq_u32 s19, {9-i}", f"s_cselect_b32 s{S_D1+i}, -8, 1", f"s_cselect_b32 s{S_D9+i}, -72, 9"])
    P += txt(["s_add_u32 s14, s19, s64"])
    for e in range(9):
        r = S_P2 + e
        if e == 4:
            P += txt(["s_add_u32 s15, s19, 8", "s_sub_u32 s40, s19, 1", "s_min_u32 s15, s15, s40", "s_lshl_b32 s15, s15, 7",
                      "s_lshl_b32 s40, s19, 7", "s_add_u32 s40, s40, 18432", "s_cmp_eq_u32 s64, 0", f"s_cselect_b32 s{S_OS}, s15, s40"])
            continue
        c = 2 * e if e < 4 else 2 * e - 9
        P += txt([f"s_add_u32 s15, s14, {c}", f"s_sub_u32 s40, s15, 9", "s_min_u32 s15, s15, s40"])
        if e < 4: P += txt([f"s_lshl_b32 s{r}, s15, 7"])
        else: P += txt(["s_lshl_b32 s15, s15, 7", f"s_add_u32 s{r}, s15, 18432"])
    P += txt([f"s_mov_b32 s{S_P2+4}, s{S_OS}"])
    P += prep(0, F(8, 0))
    P += rdSZ(0) + rdSZ(1)
    P.append(advW(2))
    first = True
    lastW = None
    for jj in range(4):
        fm, cv = deq(0, jj)
        P += fm
        if first and stamps: P += [S(stamp_text())]
        first = False
        P += cv + [ldW(2, 2 * jj), ldW(2, 2 * jj + 1)]
        lastW = P[-1]
    lastX = [o for o in P if o.tag == ("X", 1, R // 2 - 1)][0]
    fixed(P, "prologue")

    ops = []
    gB1 = {}; start = {}; flex = {}
    g = Gap(free="open", bar=True, name="B0"); gB1[0] = len(G); G.append(g)
    if stamps: g.stamp = True
    firstuse = {}; lastuse = {}; lastM = {}
    for s in range(NST):
        start[s] = len(G)
        for t in range(R):
            f = s * R + t
            for u in range(4):
                gp = Gap(mfma("a", acc1(t, u), f, F(s, u), s == 0), name=f"s{s}t{t}u{u}")
                gp.fragwait = (u == 3)
                if u == 0: firstuse[f] = len(G)
                lastuse[f] = len(G)
                lastM[("a", t, u)] = len(G)
                G.append(gp)
        if stamps and s in (4, 8): G[start[s]].stamp = True
        if s < NST - 1:
            flex[s] = len(G); G.append(Gap(free="flex", name=f"flex{s}"))
            gB1[s + 1] = flex[s] - b1
            G[gB1[s + 1]].bar = True
    st2 = {}; gB2 = {}
    for n in range(NS):
        st2[n] = len(G)
        for k in range(9):
            f = 9 * R + 9 * n + k
            for u in range(4):
                gp = Gap(mfma("v", acc2(n, u), f, F(k, u), k == 0), name=f"n{n}k{k}u{u}")
                gp.fragwait = (u == 3)
                if u == 0: firstuse[f] = len(G)
                lastuse[f] = len(G)
                lastM[("v", n, u)] = len(G)
                G.append(gp)
        gB2[n] = st2[n] + bpos
        G[gB2[n]].bar = True
    if stamps:
        G[st2[0]].stamp = True; G[st2[NS // 2]].stamp = True
    tail0 = len(G); G.append(Gap(free="open", name="tail0"))
    if stamps: G[tail0].stamp = True
    gB2[NS] = len(G); G.append(Gap(free="open", bar=True, name="tail1"))
    END = len(G) - 1

    NF = 9 * R + 9 * NS
    prevF = None
    for f in range(NF):
        if f < 9 * R:
            s, t = divmod(f, R); addr = ringbuf(s) + t * 2048; gb = gB1[s]
            nextb = gB1.get(s + 1, INF)
        else:
            n, k = divmod(f - 9 * R, 9); addr = slot(n) + k * 2048
            gb = gB1[8] if n == 0 else gB2[n - 1]
            nextb = INF
        o = rdF(f, addr)
        e = max(gb, firstuse[f] - 4 * D)
        if f >= NA: e = max(e, lastuse[f - NA])
        o.dl = min(firstuse[f] - 1, nextb - 3)
        if f < D: e = gb
        o.e = min(e, o.dl)
        assert f < NA or o.e >= lastuse[f - NA], (f, o.e, lastuse[f - NA])
        o.prio = -1000 + f
        if prevF: o.after.append((prevF, 0))
        prevF = o
        ops.append(o)
    tabw = []
    for m, tmp in ((1, F(7, 0)), (2, F(6, 0))):
        pp = prep(m, tmp)
        for k, o in enumerate(pp):
            o.e = start[m - 1] + (4 * R - 24); o.dl = flex[m - 1]; o.prio = o.dl + 0.5
            if k: o.after.append((pp[k - 1], 0))
        tabw.append(pp[-1]); ops += pp
    lastfm = {}
    szr = {}
    for i in range(1, NST):
        chain = []
        if i + 2 < NST:
            a = advW(i + 2); a.after.append((lastW, 0)); chain.append(a)
        for jj in range(4):
            fm, cv = deq(i, jj)
            chain += fm + cv
            lastfm[i] = fm[-1]
            if i + 2 < NST:
                chain += [ldW(i + 2, 2 * jj), ldW(i + 2, 2 * jj + 1)]
                lastW = chain[-1]
        prev = None
        for k, o in enumerate(chain):
            o.e = start[i - 1]; o.dl = flex[i - 1]; o.prio = o.dl
            if o.kind == "VM":
                o.after.append((prev, 0)); o.prio = o.dl - 0.5
                if chain[k - 1].kind == "VM": o.after.append((chain[k - 1], 0))
            else:
                if prev: o.after.append((prev, 0))
                prev = o
            if i in szr and o.kind == "V":
                for z in szr[i]: o.after.append((z, 4))
        ops += chain
        if i + 1 < NST:
            z = rdSZ(i + 1)
            for o in z:
                o.e = start[i - 1] + 4; o.dl = flex[i - 1]; o.prio = start[i - 1] + 2 * R
                if i - 1 in lastfm: o.after.append((lastfm[i - 1], 0))
                if i + 1 >= 4: o.after.append((tabw[(i + 1) // 4 - 1], 0))
            szr[i + 1] = z; ops += z
    for s in range(2, NST):
        a = advX(s); a.e = gB1[s - 2] - 2; a.after.append((lastX, 0)); a.prio = -500; a.dl = gB1[s - 1]
        ops.append(a); prev = a
        for e in range(R // 2):
            o = ldX(s, e); o.e = gB1[s - 2]; o.dl = gB1[s - 1] - 1; o.prio = -500; o.after.append((prev, 0)); prev = o
            ops.append(o)
        lastX = prev
    NPAIR = (NS + 1) // 2
    prev = lastX
    for p in range(NPAIR):
        if p:
            a = V(f"v_add_u32 v{V_X2}, 36864, v{V_X2}", [f"v{V_X2}"], [f"v{V_X2}"]); a.after.append((prev, 0)); a.prio = -400
            ops.append(a); prev = a
        ne = 9 if 2 * p + 1 < NS else 5
        for e in range(ne):
            o = ldP(p, e)
            if p == 0: o.e = start[6]
            elif p == 1: o.e = start[7]
            else: o.e = gB2[max(0, 2 * p - 5 if e < 4 else 2 * p - 4)]
            need = 2 * p if e <= 4 else 2 * p + 1
            o.dl = (gB1[8] if need == 0 else gB2[need - 1]) - 1
            o.prio = o.e - 300
            o.after.append((prev, 0)); prev = o
            if e == 0 and p: ops[-1].e = o.e - 2
            ops.append(o)
    units = []
    t1 = 0
    for j in range(NS + 1):
        if j >= 1: units.append(("v", j - 1, j))
        k = nb1 if j == 0 else p1per
        for _ in range(k):
            if t1 < R: units.append(("a", t1, j)); t1 += 1
    assert t1 == R
    rdone = {}; lastcv = {}; lastadd = {}; lastst = {}
    na = 0
    for q, (kp, idx, j) in enumerate(units):
        EB = (q % 6) * 8192
        base = acc1(idx, 0) if kp == "a" else acc2(idx, 0)
        tile = idx if kp == "a" else R + idx
        snd = []
        w2 = (kp == "a") or w2all
        for k in range(0, 8, 2 if w2 else 1):
            u, r = k >> 1, 2 + (k & 1)
            off = EB + (k >> 2) * 4096 + (k & 3) * 256
            ld = ("w", EB + (k >> 2) * 4096, EB + (k >> 2) * 4096 + 4096, False)
            x = base + 4 * u + r
            if w2:
                o = Op("DS", f"ds_write2st64_b32 v{V_EW}, {kp}{x}, {kp}{x+1} offset0:{off//256} offset1:{off//256+1}", rd=[f"v{V_EW}"] + rl(kp, x, 2),
                       lds=ld, cls="AT", grp=("E", q))
            else:
                o = Op("DS", f"ds_write_addtid_b32 {kp}{x} offset:{off}", rd=[f"{kp}{x}"], pre=("m0", f"s_mov_b32 m0, s{S_M0W}"),
                       lds=ld, cls="AT", grp=("E", q))
            o.e = max(lastM[(kp, idx, u)] + 4, gB1[8] if j == 0 else gB2[j - 1])
            o.e = min(o.e, tail0)
            o.dl = gB2[j] - (1 if j == NS else 2); o.prio = o.dl - 100 + (0 if kp == "v" else 1)
            if snd: o.after.append((snd[-1], w2sp if w2 else 0))
            snd.append(o)
        ops += snd
        rv = V_RECV + (q & 1) * 8
        dlf = st2.get(idx + nacc, END + 1) - 1 if kp == "v" else END
        dlf = min(dlf, gB2.get(j + 2, END))
        rcv = []
        for k in range(0, 8, 2):
            o0 = (EB + (k >> 2) * 4096 + (k & 3) * 256) // 256
            o = Op("DS", f"ds_read2st64_b32 {rg('v',rv+k,2)}, v{V_E} offset0:{o0} offset1:{o0+1}", rd=[f"v{V_E}"], wr=rl("v", rv + k, 2),
                   lds=("r", EB + (k >> 2) * 4096, EB + (k >> 2) * 4096 + 4096, False))
            o.e = gB2[j]; o.dl = min(dlf, gB2.get(j + 1, END + 3) - 3); o.prio = gB2[j] + q * 0.01
            if q - 2 in lastcv: o.after.append((lastcv[q - 2], 0))
            rcv.append(o)
        ops += rcv
        kept = []
        if kp == "a":
            kb = V_SZ + (na & 1) * 8
            for u in range(4):
                for r in range(2):
                    o = V(f"v_accvgpr_read_b32 v{kb+2*u+r}, a{base+4*u+r}", [f"a{base+4*u+r}"], [f"v{kb+2*u+r}"])
                    o.e = max(lastM[(kp, idx, u)] + 4, gB2[j] - 12); o.dl = dlf; o.prio = gB2[j] + 2 + q * 0.01
                    if ("a", na - 2) in lastadd: o.after.append((lastadd[("a", na - 2)], 0))
                    kept.append(o)
            ops += kept
        adds = []
        for u in range(4):
            src = V_SZ + (na & 1) * 8 + 2 * u if kp == "a" else base + 4 * u
            if pk:
                lst = [V(f"v_pk_add_f32 {rg('v',rv+2*u,2)}, {rg('v',src,2)}, {rg('v',rv+2*u,2)}", rl("v", src, 2) + rl("v", rv + 2 * u, 2), rl("v", rv + 2 * u, 2))]
            else:
                lst = [V(f"v_add_f32 v{rv+2*u+r}, v{src+r}, v{rv+2*u+r}", [f"v{src+r}", f"v{rv+2*u+r}"], [f"v{rv+2*u+r}"]) for r in range(2)]
            for o in lst:
                o.e = gB2[j]; o.dl = dlf; o.prio = gB2[j] + 4 + q * 0.01
                o.after.append((rcv[u], recvd))
                if kp == "a": o.after += [(kept[2 * u], 0), (kept[2 * u + 1], 0)]
                if adds: o.after.append((adds[-1], 0))
                adds.append(o)
        ops += adds
        if not pk: adds = adds[1::2]
        if kp == "a":
            lastadd[("a", na)] = adds[-1]; na += 1
        ob = V_T + (q & 3) * 4
        prev = None
        for rho in range(2):
            cvs = []
            for h in range(2):
                a, b = rv + 4 * h + rho, rv + 4 * h + 2 + rho
                o = V(f"v_cvt_pk_bf16_f32 v{ob+2*rho+h}, v{a}, v{b}", [f"v{a}", f"v{b}"], [f"v{ob+2*rho+h}"])
                o.e = gB2[j]; o.dl = END; o.prio = gB2[j] + 6 + q * 0.01
                o.after += [(adds[2 * h], 0), (adds[2 * h + 1], 0)]
                if q - 4 in lastst: o.after.append((lastst[q - 4], 1))
                if prev: o.after.append((prev, 0))
                prev = o
                cvs.append(o)
            lastcv[q] = cvs[-1]
            vo = V_O1 if rho else V_O0
            o = Op("VM", f"buffer_store_dwordx2 {rg('v',ob+2*rho,2)}, v{vo}, s[{S_O}:{S_O+3}], s{S_OS} offen {st if mix[q % len(mix)] == '1' else ''}".rstrip(),
                   rd=rl("v", ob + 2 * rho, 2) + [f"v{vo}"], pre=(f"s{S_OS}", f"s_mov_b32 s{S_OS}, {tile*147456}"), cls="ST", tag=("O", tile))
            o.e = gB2[j]; o.dl = END; o.prio = gB2[j] + 7 + q * 0.01
            o.after += [(c, 0) for c in cvs]
            if rho: o.after.append((lastst[q], 0))
            elif q - 1 in lastst: o.after.append((lastst[q - 1], 0))
            lastst[q] = o
            ops += cvs + [o]

    pend = sorted(ops, key=lambda o: (o.prio, o.id))
    cur = {}
    for o in G[0].ops:
        if o.pre: cur[o.pre[0]] = o.pre[1]
    lastvm = -99; lastdma = -99
    for gi, g in enumerate(G):
        if g.free == "fixed": continue
        room = 2
        sc_used = g.fragwait or g.bar
        if g.bar and not g.free: room -= 1
        m0user = None; nat = 0; osuser = None
        while True:
            pick = None
            for o in pend:
                if o.e > gi: continue
                if g.free:
                    if g.free == "flex" and o.dl > gi: continue
                    if any(a.gap is None for a, d in o.after): continue
                    if g.name == "B0" and not (o.tag and o.tag[0] == "F" and o.tag[1] < D) and o.prio > -400: continue
                    pick = o; break
                if any(a.gap is None or a.gap + d > gi for a, d in o.after): continue
                cost = 1
                chg = o.pre and cur.get(o.pre[0]) != o.pre[1]
                if chg and sc_used: cost = 2
                if cost > room: continue
                if o.pre and o.pre[0] == "m0" and m0user is not None and (chg or True) and m0user != o.pre[1]: continue
                if o.pre and o.pre[0] != "m0" and osuser is not None and osuser != o.pre[1]: continue
                urgent = o.dl - gi <= 2
                if o.cls == "AT" and nat >= 1 and not urgent: continue
                if o.kind == "VM" and gi - lastvm < vmsp and not urgent: continue
                if o.cls == "DMA" and gi >= st2[0] and gi - lastdma < dmasp and not urgent: continue
                pick = o; break
            if pick is None: break
            o = pick
            pend.remove(o); o.gap = gi; g.ops.append(o)
            chg = o.pre and cur.get(o.pre[0]) != o.pre[1]
            if o.pre:
                cur[o.pre[0]] = o.pre[1]
                if o.pre[0] == "m0": m0user = o.pre[1]
                else: osuser = o.pre[1]
            if not g.free:
                room -= 1
                if chg:
                    if sc_used: room -= 1
                    sc_used = True
            if o.cls == "AT": nat += 1
            if o.kind == "VM": lastvm = gi
            if o.cls == "DMA": lastdma = gi
            if room <= 0 and not g.free: break
    assert not pend, [(o.text, o.e, o.dl) for o in pend[:10]]
    late = [o for o in ops if o.gap > o.dl]
    assert not late, [(o.text, o.gap, o.dl, G[o.gap].name) for o in late[:10]]

    def dropped(o):
        if "s" in drop and o.cls == "ST": return True
        if "d" in drop and o.tag and o.tag[0] == "P" and o.tag[1] >= 2: return True
        if "x" in drop and (o.cls == "AT" or o.text.startswith("ds_read2st64")): return True
        if "v" in drop and o.kind == "V" and o.gap >= st2[0]: return True
        if "f" in drop and o.tag and o.tag[0] == "F" and o.gap >= st2[0]: return True
        if "W" in drop and o.tag and o.tag[0] == "W" and o.tag[1] >= 3: return True
        if "X" in drop and o.tag and o.tag[0] == "X" and o.tag[1] >= 3: return True
        if "q" in drop and o.kind == "V" and start[0] <= o.gap < st2[0]: return True
        return False
    for gi, g in enumerate(G):
        g.ops = [o for o in g.ops if not dropped(o)]
        if "b" in drop and gi >= st2[0] and g.mfma: g.bar = False
        if "B" in drop and gi < st2[0] and g.mfma: g.bar = False
    Lz = []
    cur = {}
    for gi, g in enumerate(G):
        if g.label: Lz.append(Op("L", g.label))
        if g.mfma: Lz.append(g.mfma)
        if g.stamp: Lz.append(S(stamp_text()))
        if g.free:
            if g.bar: Lz.append(Op("B", "s_barrier"))
            for o in g.ops:
                if o.pre and cur.get(o.pre[0]) != o.pre[1]:
                    cur[o.pre[0]] = o.pre[1]; Lz.append(Op("S", o.pre[1], wr=[o.pre[0]]))
                Lz.append(o)
        else:
            lst = g.ops
            if len(lst) == 2 and lst[0].pre and lst[0].pre[0] == "m0" and not lst[1].pre and not any(a is lst[0] for a, d in lst[1].after) \
               and not (lst[0].kind == lst[1].kind) and not (set(lst[0].rd) & set(lst[1].wr)):
                lst = [lst[1], lst[0]]
            for o in lst:
                if o.pre and cur.get(o.pre[0]) != o.pre[1]:
                    cur[o.pre[0]] = o.pre[1]; Lz.append(Op("S", o.pre[1], wr=[o.pre[0]]))
            wm = Op("WM", ""); wm.look = list(lst) + ([G[gi + 1].mfma] if gi + 1 < len(G) and G[gi + 1].mfma else [])
            Lz.append(wm)
            if g.bar:
                b = Op("B", "s_barrier"); Lz.append(b); wm.look.append(b)
            for spec in (wb.split(",") if wb else []):
                stp, who = spec.split(":")
                if gi == gB2.get(int(stp)) + 1:
                    lab = f"L_wb{stp}"
                    if who == "8":
                        Lz.append(S("s_lshl_b32 s15, s3, 8")); Lz.append(S("s_add_u32 s15, s15, s2")); Lz.append(S("s_cmp_lt_u32 s15, 8"))
                    elif who == "a":
                        Lz.append(S("s_cmp_eq_u32 s3, 0"))
                    Lz.append(S(f"s_cbranch_scc0 {lab}"))
                    Lz.append(S("buffer_wbl2 sc1"))
                    Lz.append(Op("L", lab + ":"))
            Lz += lst
    acc = [(k, o) for k, o in enumerate(Lz) if o.lds]
    bars = [k for k, o in enumerate(Lz) if o.kind == "B"]
    import bisect
    for y in range(len(acc)):
        ky, oy = acc[y]
        bi = bisect.bisect_left(bars, ky) - 1
        for x in range(y):
            kx, ox = acc[x]
            if ox.lds[0] == "r" and oy.lds[0] == "r": continue
            if ox.lds[0] == "w" and oy.lds[0] == "w": continue
            if ox.lds[3] and oy.lds[3]: continue
            if ox.lds[2] <= oy.lds[1] or oy.lds[2] <= ox.lds[1]: continue
            if drop and not (bi >= 0 and bars[bi] > kx): continue
            assert bi >= 0 and bars[bi] > kx, ("LDS race", ox.text, G[ox.gap].name, oy.text, G[oy.gap].name)
            Lz[bars[bi]].needs.append(ox)
    issued = {"VM": 0, "DS": 0}; done = {"VM": -1, "DS": -1}; CAP = {"VM": 63, "DS": 15}
    pendreg = {}
    out = []
    inl = 0
    def needs_of(o):
        n = {"VM": -1, "DS": -1}
        for r in o.rd + o.wr:
            if r in pendreg:
                q, i = pendreg[r]; n[q] = max(n[q], i)
        for x in o.needs:
            if hasattr(x, "qi"): n[x.kind] = max(n[x.kind], x.qi)
        return n
    def dowait(n):
        w = []
        for q, nm in (("VM", "vmcnt"), ("DS", "lgkmcnt")):
            if n[q] > done[q]:
                c = min(issued[q] - 1 - n[q], CAP[q])
                done[q] = issued[q] - 1 - c
                w.append(f"{nm}({c})")
        if w: out.append(Op("S", "s_waitcnt " + " ".join(w)))
        return bool(w)
    for o in Lz:
        if o.kind == "WM":
            n = {"VM": -1, "DS": -1}
            for x in o.look:
                m = needs_of(x)
                for q in n: n[q] = max(n[q], m[q])
            dowait(n); continue
        if dowait(needs_of(o)): inl += 1
        if o.kind in ("VM", "DS"):
            o.qi = issued[o.kind]; issued[o.kind] += 1
            for r in o.wr: pendreg[r] = (o.kind, o.qi)
        out.append(o)
    fin = []
    t = 0
    wV = {}; wM = {}; wS = {}
    nops = 0
    for o in out:
        need = 0
        if o.kind == "M":
            for r in o.rd: need = max(need, wV.get(r, -99) + 3 - t)
        elif o.kind in ("V", "DS", "VM"):
            for r in o.rd + o.wr: need = max(need, wM.get(r, -99) + 10 - t)
            if o.pre and o.pre[0] == "m0": need = max(need, wS.get("m0", -99) + 2 - t)
        if need > 0:
            fin.append(Op("S", f"s_nop {need-1}")); t += need; nops += 1
        if o.kind == "V":
            for r in o.wr: wV[r] = t
        elif o.kind == "M":
            for r in o.wr: wM[r] = t
        elif o.kind == "S":
            for r in o.wr: wS[r] = t
        fin.append(o)
        t += 2 if o.kind == "M" else 1
    if verbose:
        print("inline waits", inl, "nops", nops, "instr", len(fin), file=sys.stderr)
        for gi, g in enumerate(G):
            if g.free: print(gi, g.name, len(g.ops), file=sys.stderr)

    L = []
    A = L.append
    A("; @launch grid=(252,1,1) block=(256,1,1) lds=163840")
    A('.amdgcn_target "amdgcn-amd-amdhsa--gfx950"')
    A(".text"); A(f".globl {NAME}"); A(".p2align 8"); A(f".type {NAME},@function"); A(f"{NAME}:")
    for o in fin: A(o.text if o.kind == "L" else "  " + o.text)
    if stamps:
        A("  " + stamp_text()); A("  s_waitcnt vmcnt(0)"); A("  " + stamp_text()); A("  " + stamp_text(True))
        n = nst[0]
        if probe:
            C, Kf, idx, wg = map(int, probe.split(","))
            for x in ["s_waitcnt lgkmcnt(0)", "s_cmp_lg_u32 s3, 0", "s_cbranch_scc1 L_end"]: A("  " + x)
            if wg >= 0:
                A(f"  s_cmp_lg_u32 s2, {wg}"); A("  s_cbranch_scc1 L_end")
            for x in [f"s_sub_u32 s18, s{STREGS[idx]}, s{STREGS[1]}", f"s_mul_i32 s18, s18, {Kf}", f"s_add_u32 s18, s18, {C}",
                      "s_min_u32 s18, s18, 400000"]: A("  " + x)
            A("L_spin:")
            for x in ["s_memtime s[20:21]", "s_waitcnt lgkmcnt(0)", f"s_sub_u32 s19, s20, s{STREGS[1]}", "s_cmp_lt_u32 s19, s18",
                      "s_cbranch_scc1 L_spin", "s_endpgm"]: A("  " + x)
        if dbg:
            for x in ["s_waitcnt lgkmcnt(0)", "s_cmp_lg_u32 s3, 0", "s_cbranch_scc1 L_end",
                      "s_lshr_b32 s18, s2, 6", "s_mul_i32 s19, s18, 65", "s_cmp_lg_u32 s19, s2", "s_cbranch_scc1 L_end",
                      "s_mov_b32 s20, s16", "s_and_b32 s21, s17, 0xffff", "s_mov_b32 s22, 256", "s_mov_b32 s23, 0x20000",
                      "s_lshl_b32 s18, s18, 4", "v_mov_b32 v2, s18", "s_mov_b64 exec, 1"]: A("  " + x)
            for j, k in enumerate((4, 5, 7, 11)):
                A(f"  s_sub_u32 s19, s{STREGS[k]}, s{STREGS[1]}"); A(f"  v_mov_b32 v{4+j}, s19")
            A("  buffer_store_dwordx4 v[4:7], v2, s[20:23], 0 offen"); A("  s_waitcnt vmcnt(0)"); A("  s_endpgm")
        for x in ["s_waitcnt lgkmcnt(0)", "s_cmp_lg_u32 s3, 0", "s_cbranch_scc1 L_end",
                  "s_mov_b32 s20, s16", "s_and_b32 s21, s17, 0xffff", "s_mov_b32 s22, 0x100000", "s_mov_b32 s23, 0x20000",
                  f"s_mul_i32 s18, s2, {n*8}", "v_mov_b32 v2, s18", "s_mov_b64 exec, 1"]: A("  " + x)
        for k in range(n):
            for x in [f"v_mov_b32 v4, s{STREGS[k]}", f"v_mov_b32 v5, s{STREGS[k]+1}",
                      f"buffer_store_dwordx2 v[4:5], v2, s[20:23], 0 offen offset:{8*k}", "s_nop 1"]: A("  " + x)
        A("  s_waitcnt vmcnt(0)")
    A("L_end:"); A("  s_endpgm")
    A('.section .rodata,"a"'); A(".p2align 6"); A(f".amdhsa_kernel {NAME}")
    A(f"  .amdhsa_next_free_vgpr {256 + A_FR + NA*4}")
    A("  .amdhsa_next_free_sgpr 102")
    A("  .amdhsa_accum_offset 256")
    A("  .amdhsa_group_segment_fixed_size 0")
    A("  .amdhsa_kernarg_size 56")
    A("  .amdhsa_user_sgpr_count 2")
    A("  .amdhsa_user_sgpr_kernarg_segment_ptr 1")
    A("  .amdhsa_system_sgpr_workgroup_id_x 1")
    A("  .amdhsa_float_denorm_mode_32 3")
    A(".end_amdhsa_kernel")
    return "\n".join(L) + "\n", nst[0]

if __name__ == "__main__":
    ap = argparse.ArgumentParser()
    ap.add_argument("-o", default="k2.s")
    for k, d in dict(R=8, rotA=4, rotB=2, D=3, NA=5, b1=8, bpos=20, nb1=2, vmsp=2, dmasp=4, nacc=3, recvd=5, p1per=1, w2all=0, w2sp=2, pk=0, cpf=0, dbg=0, nt0=0).items():
        ap.add_argument("--" + k, type=int, default=d)
    ap.add_argument("--stamps", action="store_true")
    ap.add_argument("-v", dest="verbose", action="store_true")
    for k in ("st", "lw", "lx", "lx2", "drop", "ta"): ap.add_argument("--" + k, default="")
    ap.add_argument("--tb", default="0000")
    ap.add_argument("--lw0", default="nt")
    ap.add_argument("--mix", default="1")
    ap.add_argument("--probe", default="")
    ap.add_argument("--wb", default="")
    a = vars(ap.parse_args())
    o = a.pop("o")
    s, n = gen(**a)
    open(o, "w").write(s)
    print(o, "lines", s.count("\n"), "stamps", n)
```

```python
import sys, argparse
NAME = "standalone__w4a16_gemm_dequant__prompt_kernel"
INF = 10 ** 9

def rl(p, b, n): return [f"{p}{b+i}" for i in range(n)]
def rg(p, b, n): return f"{p}[{b}:{b+n-1}]" if n > 1 else f"{p}{b}"

class Op:
    cnt = 0
    def __init__(s, kind, text, rd=(), wr=(), pre=None, lds=None, cls=None, e=0, dl=INF, prio=None, after=(), tag=None, grp=None):
        s.kind = kind; s.text = text; s.rd = list(rd); s.wr = list(wr); s.pre = pre; s.lds = lds; s.cls = cls
        s.e = e; s.dl = dl; s.prio = dl if prio is None else prio; s.after = list(after); s.tag = tag; s.grp = grp
        s.gap = None; s.needs = []; s.id = Op.cnt; Op.cnt += 1

class Gap:
    def __init__(s, mfma=None, free=None, bar=False, name=""):
        s.mfma = mfma; s.free = free; s.bar = bar; s.ops = []; s.name = name; s.stamp = False; s.label = None
        s.fragwait = False

def gen(R=8, rotA=4, rotB=2, D=3, NA=5, b1=8, bpos=20, nb1=2, vmsp=2, dmasp=4, stamps=False, st="", lw="", lx="", lx2="",
        nacc=3, skip18=True, verbose=False, recvd=5, p1per=1, w2all=0, w2sp=2, drop='', pk=0, ta='', tb='0000', mix='1', wb='', cpf=0, dbg=0, lw0='nt', nt0=0, probe=''):
    NT, NST = 19, 9
    NS = NT - R
    assert R % 2 == 0 and 4 <= R <= 10
    RING = 24576
    SLOT0 = 53248
    def ringbuf(s): return RING + (s % 3) * R * 2048
    def slot(n): return SLOT0 + ((n + 2) % 6) * 18432
    assert RING + 3 * R * 2048 <= slot(0)
    S_X, S_W, S_S, S_Z, S_O = 20, 24, 28, 32, 36
    S_WOFS, S_XOFS, S_P2, S_D1, S_D9 = 40, 48, 56, 66, 75
    S_M0X, S_M0W, S_C24, S_MSK, S_OS, S_NTL = 84, 85, 86, 87, 88, 89
    STREGS = [90, 92, 94, 96, 98, 100, 4, 6, 8, 10, 12, 14, 66, 68]
    V_W, V_X, V_X2, V_R, V_O0, V_O1, V_TR, V_TW, V_E, V_S = 2, 3, 4, 5, 8, 9, 10, 11, 12, 13
    V_SZ, V_RAW, V_F, V_T = 16, 32, 96, 240
    V_EW = 0
    def raw(p, j): return V_RAW + p * 32 + j * 4
    def F(i, u): return V_F + (i * 4 + u) * 4
    def acc1(t, u): return (t * 4 + u) * 4
    A_FR = 16 * R
    def fr(f): return A_FR + (f % NA) * 4
    def acc2(n, u): return V_RAW + (n % nacc) * 16 + u * 4
    V_RECV = V_RAW + 48
    nst = [0]
    def stamp_text(real=False):
        r = STREGS[nst[0]]; nst[0] += 1
        return f"s_memrealtime s[{r}:{r+1}]" if real else f"s_memtime s[{r}:{r+1}]"

    G = []
    def S(t): return Op("S", t)
    def V(t, rd=(), wr=(), **k): return Op("V", t, rd, wr, **k)
    def fixed(ops, name="", bar=False):
        g = Gap(free="fixed", name=name, bar=bar); g.ops = list(ops)
        for o in g.ops: o.gap = len(G)
        G.append(g); return g
    def txt(lines):
        out = []
        for x in lines:
            out.append(Op("V" if x.startswith("v_") else "S", x))
        return out

    def ldW(i, j):
        r = raw(i & 1, j)
        so = "0" if j == 0 else f"s{S_WOFS+j}"
        return Op("VM", f"buffer_load_dwordx4 {rg('v',r,4)}, v{V_W}, s[{S_W}:{S_W+3}], {so} offen {lw0 if i < nt0 else lw}".rstrip(),
                  rd=[f"v{V_W}"], wr=rl("v", r, 4), cls="VM", tag=("W", i, j))
    def ldSZ(m):
        r = V_T + 4 * m
        return [Op("VM", f"buffer_load_dwordx2 {rg('v',r,2)}, v{V_S+m}, s[{S_S}:{S_S+3}], 0 offen", rd=[f"v{V_S+m}"], wr=rl("v", r, 2), cls="VM"),
                Op("VM", f"buffer_load_dwordx2 {rg('v',r+2,2)}, v{V_S+m}, s[{S_Z}:{S_Z+3}], 0 offen", rd=[f"v{V_S+m}"], wr=rl("v", r + 2, 2), cls="VM")]
    def ldX(s, e):
        so = f"s{S_XOFS+e}" if e else "0"
        b = ringbuf(s)
        return Op("VM", f"buffer_load_dwordx4 v{V_X}, s[{S_X}:{S_X+3}], {so} offen offset:{(e&3)*1024} {lx} lds".rstrip(),
                  rd=[f"v{V_X}"], pre=("m0", f"s_add_u32 m0, s{S_M0X}, {b + (e>>2)*4096}"), lds=("w", b, b + R * 2048, False),
                  cls="DMA", tag=("X", s, e), grp=("X", s))
    def ldP(p, e):
        b = slot(2 * p) + e * 4096
        return Op("VM", f"buffer_load_dwordx4 v{V_X2}, s[{S_X}:{S_X+3}], s{S_P2+e} offen {lx2} lds".rstrip(),
                  rd=[f"v{V_X2}"], pre=("m0", f"s_add_u32 m0, s{S_M0W}, {b}"), lds=("w", b, b + 4096, False),
                  cls="DMA", tag=("P", p, e), grp=("P", p))
    def advW(i): return V(f"v_lshl_add_u32 v{V_W}, s{S_D9+i}, 17, v{V_W}", [f"v{V_W}"], [f"v{V_W}"])
    def advX(i): return V(f"v_lshl_add_u32 v{V_X}, s{S_D1+i}, 7, v{V_X}", [f"v{V_X}"], [f"v{V_X}"])
    def prep(m, t):
        r = V_T + 4 * m
        o = []
        for h in range(2):
            o.append(V(f"v_lshlrev_b32 v{t+2*h}, 16, v{r+h}", [f"v{r+h}"], [f"v{t+2*h}"]))
            o.append(V(f"v_and_b32 v{t+2*h+1}, s{S_MSK}, v{r+h}", [f"v{r+h}"], [f"v{t+2*h+1}"]))
        for h in range(2):
            o.append(V(f"v_lshlrev_b32 v{t+4+2*h}, 16, v{r+2+h}", [f"v{r+2+h}"], [f"v{t+4+2*h}"]))
            o.append(V(f"v_and_b32 v{t+4+2*h+1}, s{S_MSK}, v{r+2+h}", [f"v{r+2+h}"], [f"v{t+4+2*h+1}"]))
        for u in range(4):
            o.append(V(f"v_mul_f32_e64 v{t+4+u}, -v{t+4+u}, v{t+u}", [f"v{t+4+u}", f"v{t+u}"], [f"v{t+4+u}"]))
        for u in range(4):
            o.append(V(f"v_mul_f32 v{t+u}, s{S_C24}, v{t+u}", [f"v{t+u}"], [f"v{t+u}"]))
        o.append(Op("DS", f"ds_write_b128 v{V_TW}, {rg('v',t,4)} offset:{m*2048}", rd=[f"v{V_TW}"] + rl("v", t, 4), lds=("w", 0, 24576, True)))
        o.append(Op("DS", f"ds_write_b128 v{V_TW}, {rg('v',t+4,4)} offset:{m*2048+256}", rd=[f"v{V_TW}"] + rl("v", t + 4, 4), lds=("w", 0, 24576, True)))
        return o
    def rdSZ(i):
        z = V_SZ + (i & 1) * 8
        return [Op("DS", f"ds_read_b128 {rg('v',z,4)}, v{V_TR} offset:{i*512}", rd=[f"v{V_TR}"], wr=rl("v", z, 4), lds=("r", 0, 24576, True)),
                Op("DS", f"ds_read_b128 {rg('v',z+4,4)}, v{V_TR} offset:{i*512+256}", rd=[f"v{V_TR}"], wr=rl("v", z + 4, 4), lds=("r", 0, 24576, True))]
    def deq(i, jj):
        p = i & 1; z = V_SZ + p * 8
        fm = []; cv = []
        for j in (2 * jj, 2 * jj + 1):
            for u in range(4):
                r = raw(p, j) + u
                fm.append(V(f"v_fma_mix_f32 v{r}, v{r}, v{z+u}, v{z+4+u} op_sel_hi:[1,0,0]", [f"v{r}", f"v{z+u}", f"v{z+4+u}"], [f"v{r}"]))
        for u in range(4):
            a, b = raw(p, 2 * jj) + u, raw(p, 2 * jj + 1) + u
            cv.append(V(f"v_cvt_pk_bf16_f32 v{F(i,u)+jj}, v{a}, v{b}", [f"v{a}", f"v{b}"], [f"v{F(i,u)+jj}"]))
        return fm, cv
    def rdF(f, addr):
        w, off = divmod(addr, 65536)
        a = fr(f)
        return Op("DS", f"ds_read_b128 {rg('a',a,4)}, v{V_R+w} offset:{off}", rd=[f"v{V_R+w}"], wr=rl("a", a, 4), lds=("r", addr, addr + 2048, False), tag=("F", f))
    def mfma(dp, d, f, fb, first):
        dd = rg(dp, d, 4)
        return Op("M", f"v_mfma_f32_16x16x32_bf16 {dd}, {rg('a',fr(f),4)}, {rg('v',fb,4)}, {'0' if first else dd}",
                  rd=rl("a", fr(f), 4) + rl("v", fb, 4) + ([] if first else rl(dp, d, 4)), wr=rl(dp, d, 4))

    if ta:
        A_ = sum(int(c) << (4 * i) for i, c in enumerate(ta)); B_ = sum(int(c) << (4 * i) for i, c in enumerate(tb))
        rot = ["s_lshl_b32 s40, s15, 2", f"s_lshr_b32 s40, {A_}, s40", "s_and_b32 s40, s40, 15",
               "s_and_b32 s41, s18, 3", "s_lshl_b32 s41, s41, 2", f"s_lshr_b32 s41, {B_}, s41", "s_and_b32 s41, s41, 15",
               "s_add_u32 s40, s40, s41", "s_sub_u32 s41, s40, 9", "s_min_u32 s19, s40, s41"]
    else:
        rot = [f"s_mul_i32 s40, s15, {rotA}", f"s_mul_i32 s41, s18, {rotB}", "s_add_u32 s40, s40, s41", "s_mul_i32 s41, s40, 57",
               "s_lshr_b32 s41, s41, 9", "s_mul_i32 s41, s41, 9", "s_sub_u32 s19, s40, s41"]
    P = []
    if stamps: P += [S(stamp_text(True)), S(stamp_text())]
    P += txt([
        "s_cmp_ge_u32 s2, 252",
        "s_cbranch_scc1 L_end",
        "s_load_dwordx8 s[4:11], s[0:1], 0",
        "s_load_dwordx2 s[12:13], s[0:1], 32"])
    if stamps: P += txt([f"s_load_dwordx2 s[16:17], s[0:1], {40 if dbg else 48}"])
    if cpf:
        P += txt(["s_getpc_b64 s[40:41]"]) + [Op("L", "L_pc:")] + txt(["s_and_b32 s41, s41, 0xffff", "s_mov_b32 s42, L_end-L_pc", "s_mov_b32 s43, 0x20000",
                  f"v_lshlrev_b32 v15, {cpf}, v0"])
        P += [Op("VM", "buffer_load_dword v255, v15, s[40:43], 0 offen", rd=["v15"], wr=["v14x"])]
        P += txt(["s_nop 4"])
    P += txt([
        "v_lshrrev_b32 v16, 6, v0",
        "v_and_b32 v1, 63, v0",
        "v_readfirstlane_b32 s3, v16",
        "s_and_b32 s14, s2, 7",
        "s_lshr_b32 s15, s2, 3",
        "s_lshl_b32 s18, s14, 2",
        "s_and_b32 s19, s15, 3",
        "s_add_u32 s18, s18, s19",
        "s_lshr_b32 s19, s15, 2",
        "s_and_b32 s40, s14, 3",
        "s_add_u32 s40, s40, 32",
        "s_and_b32 s41, s14, 4",
        "s_add_u32 s41, s41, s15",
        "s_sub_u32 s41, s41, 28",
        "s_cmp_ge_u32 s15, 28",
        "s_cselect_b32 s18, s40, s18",
        "s_cselect_b32 s15, s41, s19",
        *rot,
        "s_lshr_b32 s64, s3, 1",
        "s_and_b32 s65, s3, 1",
        "s_lshl_b32 s18, s18, 7",
        "s_lshl_b32 s40, s65, 6",
        "s_add_u32 s18, s18, s40",
        "v_and_b32 v16, 15, v1",
        "v_lshrrev_b32 v17, 4, v1",
        f"s_mov_b32 s{S_WOFS+1}, 18432",
        "s_mul_i32 s40, s64, 9216",
        "s_lshl1_add_u32 s40, s18, s40",
        "v_lshl_add_u32 v18, v16, 3, s40",
        "v_add_u32 v19, s19, v17",
        "v_add_u32 v20, -9, v19",
        "v_min_u32 v20, v19, v20",
        f"v_mad_u32_u24 v{V_S}, v20, s{S_WOFS+1}, v18",
        "s_mul_i32 s42, s19, 1179648",
        "s_mul_i32 s43, s64, 589824",
        "s_lshl2_add_u32 s43, s18, s43",
        "s_add_u32 s42, s42, s43",
        f"v_mul_u32_u24 v{V_W}, 147456, v17",
        f"v_lshl_add_u32 v{V_W}, v16, 4, v{V_W}",
        f"v_add_u32 v{V_W}, s42, v{V_W}",
        f"s_mov_b32 s{S_W+2}, {576*4608*4}",
        f"s_mov_b32 s{S_S+2}, {18*4608*2}",
        f"s_mov_b32 s{S_Z+2}, {18*4608*2}",
        f"s_mov_b32 s{S_W+3}, 0x20000",
        f"s_mov_b32 s{S_S+3}, 0x20000",
        f"s_mov_b32 s{S_Z+3}, 0x20000"])
    P += txt([f"s_mov_b32 s{S_WOFS+k}, {k*18432}" for k in range(2, 8)])
    P += txt([
        "s_mul_i32 s14, s15, 18",
        "s_min_u32 s40, s15, 2",
        "s_add_u32 s14, s14, s40",
        "s_cmp_lt_u32 s15, 2",
        f"s_cselect_b32 s{S_NTL}, 19, 18",
        "v_lshrrev_b32 v21, 3, v1",
        "v_lshrrev_b32 v22, 4, v1",
        "v_and_b32 v22, 2, v22",
        "v_lshrrev_b32 v23, 2, v1",
        "v_and_b32 v23, 4, v23",
        "v_and_b32 v24, 7, v1",
        "v_or3_b32 v22, v22, v23, 0",
        "v_xor_b32 v22, v22, v24",
        "v_mul_u32_u24 v21, 1152, v21",
        "v_lshl_add_u32 v21, v22, 4, v21",
        f"s_mul_i32 s40, s3, {(R//2)*9216}",
        "s_lshl_b32 s15, s19, 7",
        "s_add_u32 s40, s40, s15",
        f"v_add_u32 v{V_X}, s40, v21",
        f"s_mul_i32 s{S_M0X}, s3, {(R//2)*1024}",
        f"s_mul_i32 s{S_X+2}, s{S_NTL}, 18432",
        f"s_mov_b32 s{S_X+3}, 0x20000",
        "s_mul_i32 s15, s14, 18432",
        f"s_cmp_eq_u32 s19, 8",
        f"s_cselect_b32 s{S_D1+1}, -8, 1",
        f"s_cselect_b32 s{S_D9+1}, -72, 9"])
    P += txt([f"s_mov_b32 s{S_XOFS+e}, {e*9216-(e&3)*1024}" for e in range(1, R // 2)])
    P += txt([
        "s_waitcnt lgkmcnt(0)",
        f"s_mov_b32 s{S_S}, s8", f"s_and_b32 s{S_S+1}, s9, 0xffff",
        f"s_mov_b32 s{S_Z}, s10", f"s_and_b32 s{S_Z+1}, s11, 0xffff",
        f"s_mov_b32 s{S_W}, s6", f"s_and_b32 s{S_W+1}, s7, 0xffff"])
    P += ldSZ(0)
    P += [ldW(0, j) for j in range(8)]
    P += txt([f"s_add_u32 s{S_X}, s4, s15", f"s_addc_u32 s{S_X+1}, s5, 0", f"s_and_b32 s{S_X+1}, s{S_X+1}, 0xffff"])
    P += [ldX(0, e) for e in range(R // 2)]
    P += [advW(1), advX(1)]
    P += [ldW(1, j) for j in range(8)]
    P += [ldX(1, e) for e in range(R // 2)]
    for m in (1, 2):
        P += txt([f"v_add_u32 v19, 4, v19", "v_add_u32 v20, -9, v19", "v_min_u32 v20, v19, v20",
                  f"v_mad_u32_u24 v{V_S+m}, v20, s{S_WOFS+1}, v18"])
        P += ldSZ(m)
    if stamps: P += [S(stamp_text())]
    P += txt([
        "s_mul_i32 s15, s14, 147456",
        f"s_add_u32 s{S_O}, s12, s15", f"s_addc_u32 s{S_O+1}, s13, 0", f"s_and_b32 s{S_O+1}, s{S_O+1}, 0xffff",
        f"s_mul_i32 s{S_O+2}, s{S_NTL}, 147456",
        f"s_mov_b32 s{S_O+3}, 0x20000",
        f"s_mov_b32 s{S_C24}, 0x4b800000", f"s_mov_b32 s{S_MSK}, 0xffff0000",
        f"s_lshl_b32 s{S_M0W}, s3, 10",
        "s_mul_i32 s40, s3, 6144",
        f"v_lshl_add_u32 v{V_TR}, v16, 4, s40",
        f"v_lshl_add_u32 v{V_TW}, v17, 9, v{V_TR}",
        "s_mul_i32 s40, s65, 9216",
        f"s_add_u32 s40, s40, {R*18432}",
        f"v_add_u32 v{V_X2}, s40, v21",
        "s_mul_i32 s40, s64, 18432",
        "s_lshl1_add_u32 s40, s18, s40",
        f"v_mul_u32_u24 v{V_O0}, 36864, v17",
        f"v_lshl_add_u32 v{V_O0}, v16, 3, v{V_O0}",
        f"v_add_u32 v{V_O0}, s40, v{V_O0}",
        f"v_add_u32 v{V_O1}, 9216, v{V_O0}",
        f"s_xor_b32 s40, s{S_M0W}, 2048",
        f"v_lshl_add_u32 v{V_E}, v1, 2, s40",
        f"v_xor_b32 v{V_EW}, 0x800, v{V_E}",
        "s_lshl_b32 s40, s64, 1",
        "v_xor_b32 v22, s40, v16",
        "v_lshrrev_b32 v23, 1, v22",
        "v_and_b32 v23, 2, v23",
        "v_lshlrev_b32 v24, 1, v22",
        "v_and_b32 v24, 4, v24",
        "s_lshl_b32 s40, s64, 2",
        "v_add_u32 v25, s40, v17",
        "v_xor_b32 v23, v23, v24",
        "v_xor_b32 v23, v23, v25",
        "v_lshlrev_b32 v23, 4, v23",
        f"v_lshl_add_u32 v{V_R}, v22, 7, v23",
        f"v_add_u32 v{V_R+1}, 0x10000, v{V_R}",
        f"v_add_u32 v{V_R+2}, 0x20000, v{V_R}"])
    for i in range(2, NST):
        P += txt([f"s_cmp_eq_u32 s19, {9-i}", f"s_cselect_b32 s{S_D1+i}, -8, 1", f"s_cselect_b32 s{S_D9+i}, -72, 9"])
    P += txt(["s_add_u32 s14, s19, s64"])
    for e in range(9):
        r = S_P2 + e
        if e == 4:
            P += txt(["s_add_u32 s15, s19, 8", "s_sub_u32 s40, s19, 1", "s_min_u32 s15, s15, s40", "s_lshl_b32 s15, s15, 7",
                      "s_lshl_b32 s40, s19, 7", "s_add_u32 s40, s40, 18432", "s_cmp_eq_u32 s64, 0", f"s_cselect_b32 s{S_OS}, s15, s40"])
            continue
        c = 2 * e if e < 4 else 2 * e - 9
        P += txt([f"s_add_u32 s15, s14, {c}", f"s_sub_u32 s40, s15, 9", "s_min_u32 s15, s15, s40"])
        if e < 4: P += txt([f"s_lshl_b32 s{r}, s15, 7"])
        else: P += txt(["s_lshl_b32 s15, s15, 7", f"s_add_u32 s{r}, s15, 18432"])
    P += txt([f"s_mov_b32 s{S_P2+4}, s{S_OS}"])
    P += prep(0, F(8, 0))
    P += rdSZ(0) + rdSZ(1)
    P.append(advW(2))
    first = True
    lastW = None
    for jj in range(4):
        fm, cv = deq(0, jj)
        P += fm
        if first and stamps: P += [S(stamp_text())]
        first = False
        P += cv + [ldW(2, 2 * jj), ldW(2, 2 * jj + 1)]
        lastW = P[-1]
    lastX = [o for o in P if o.tag == ("X", 1, R // 2 - 1)][0]
    fixed(P, "prologue")

    ops = []
    gB1 = {}; start = {}; flex = {}
    g = Gap(free="open", bar=True, name="B0"); gB1[0] = len(G); G.append(g)
    if stamps: g.stamp = True
    firstuse = {}; lastuse = {}; lastM = {}
    for s in range(NST):
        start[s] = len(G)
        for t in range(R):
            f = s * R + t
            for u in range(4):
                gp = Gap(mfma("a", acc1(t, u), f, F(s, u), s == 0), name=f"s{s}t{t}u{u}")
                gp.fragwait = (u == 3)
                if u == 0: firstuse[f] = len(G)
                lastuse[f] = len(G)
                lastM[("a", t, u)] = len(G)
                G.append(gp)
        if stamps and s in (4, 8): G[start[s]].stamp = True
        if s < NST - 1:
            flex[s] = len(G); G.append(Gap(free="flex", name=f"flex{s}"))
            gB1[s + 1] = flex[s] - b1
            G[gB1[s + 1]].bar = True
    st2 = {}; gB2 = {}
    for n in range(NS):
        st2[n] = len(G)
        for k in range(9):
            f = 9 * R + 9 * n + k
            for u in range(4):
                gp = Gap(mfma("v", acc2(n, u), f, F(k, u), k == 0), name=f"n{n}k{k}u{u}")
                gp.fragwait = (u == 3)
                if u == 0: firstuse[f] = len(G)
                lastuse[f] = len(G)
                lastM[("v", n, u)] = len(G)
                G.append(gp)
        gB2[n] = st2[n] + bpos
        G[gB2[n]].bar = True
    if stamps:
        G[st2[0]].stamp = True; G[st2[NS // 2]].stamp = True
    tail0 = len(G); G.append(Gap(free="open", name="tail0"))
    if stamps: G[tail0].stamp = True
    gB2[NS] = len(G); G.append(Gap(free="open", bar=True, name="tail1"))
    END = len(G) - 1

    NF = 9 * R + 9 * NS
    prevF = None
    for f in range(NF):
        if f < 9 * R:
            s, t = divmod(f, R); addr = ringbuf(s) + t * 2048; gb = gB1[s]
            nextb = gB1.get(s + 1, INF)
        else:
            n, k = divmod(f - 9 * R, 9); addr = slot(n) + k * 2048
            gb = gB1[8] if n == 0 else gB2[n - 1]
            nextb = INF
        o = rdF(f, addr)
        e = max(gb, firstuse[f] - 4 * D)
        if f >= NA: e = max(e, lastuse[f - NA])
        o.dl = min(firstuse[f] - 1, nextb - 3)
        if f < D: e = gb
        o.e = min(e, o.dl)
        assert f < NA or o.e >= lastuse[f - NA], (f, o.e, lastuse[f - NA])
        o.prio = -1000 + f
        if prevF: o.after.append((prevF, 0))
        prevF = o
        ops.append(o)
    tabw = []
    for m, tmp in ((1, F(7, 0)), (2, F(6, 0))):
        pp = prep(m, tmp)
        for k, o in enumerate(pp):
            o.e = start[m - 1] + (4 * R - 24); o.dl = flex[m - 1]; o.prio = o.dl + 0.5
            if k: o.after.append((pp[k - 1], 0))
        tabw.append(pp[-1]); ops += pp
    lastfm = {}
    szr = {}
    for i in range(1, NST):
        chain = []
        if i + 2 < NST:
            a = advW(i + 2); a.after.append((lastW, 0)); chain.append(a)
        for jj in range(4):
            fm, cv = deq(i, jj)
            chain += fm + cv
            lastfm[i] = fm[-1]
            if i + 2 < NST:
                chain += [ldW(i + 2, 2 * jj), ldW(i + 2, 2 * jj + 1)]
                lastW = chain[-1]
        prev = None
        for k, o in enumerate(chain):
            o.e = start[i - 1]; o.dl = flex[i - 1]; o.prio = o.dl
            if o.kind == "VM":
                o.after.append((prev, 0)); o.prio = o.dl - 0.5
                if chain[k - 1].kind == "VM": o.after.append((chain[k - 1], 0))
            else:
                if prev: o.after.append((prev, 0))
                prev = o
            if i in szr and o.kind == "V":
                for z in szr[i]: o.after.append((z, 4))
        ops += chain
        if i + 1 < NST:
            z = rdSZ(i + 1)
            for o in z:
                o.e = start[i - 1] + 4; o.dl = flex[i - 1]; o.prio = start[i - 1] + 2 * R
                if i - 1 in lastfm: o.after.append((lastfm[i - 1], 0))
                if i + 1 >= 4: o.after.append((tabw[(i + 1) // 4 - 1], 0))
            szr[i + 1] = z; ops += z
    for s in range(2, NST):
        a = advX(s); a.e = gB1[s - 2] - 2; a.after.append((lastX, 0)); a.prio = -500; a.dl = gB1[s - 1]
        ops.append(a); prev = a
        for e in range(R // 2):
            o = ldX(s, e); o.e = gB1[s - 2]; o.dl = gB1[s - 1] - 1; o.prio = -500; o.after.append((prev, 0)); prev = o
            ops.append(o)
        lastX = prev
    NPAIR = (NS + 1) // 2
    prev = lastX
    for p in range(NPAIR):
        if p:
            a = V(f"v_add_u32 v{V_X2}, 36864, v{V_X2}", [f"v{V_X2}"], [f"v{V_X2}"]); a.after.append((prev, 0)); a.prio = -400
            ops.append(a); prev = a
        ne = 9 if 2 * p + 1 < NS else 5
        for e in range(ne):
            o = ldP(p, e)
            if p == 0: o.e = start[6]
            elif p == 1: o.e = start[7]
            else: o.e = gB2[max(0, 2 * p - 5 if e < 4 else 2 * p - 4)]
            need = 2 * p if e <= 4 else 2 * p + 1
            o.dl = (gB1[8] if need == 0 else gB2[need - 1]) - 1
            o.prio = o.e - 300
            o.after.append((prev, 0)); prev = o
            if e == 0 and p: ops[-1].e = o.e - 2
            ops.append(o)
    units = []
    t1 = 0
    for j in range(NS + 1):
        if j >= 1: units.append(("v", j - 1, j))
        k = nb1 if j == 0 else p1per
        for _ in range(k):
            if t1 < R: units.append(("a", t1, j)); t1 += 1
    assert t1 == R
    rdone = {}; lastcv = {}; lastadd = {}; lastst = {}
    na = 0
    for q, (kp, idx, j) in enumerate(units):
        EB = (q % 6) * 8192
        base = acc1(idx, 0) if kp == "a" else acc2(idx, 0)
        tile = idx if kp == "a" else R + idx
        snd = []
        w2 = (kp == "a") or w2all
        for k in range(0, 8, 2 if w2 else 1):
            u, r = k >> 1, 2 + (k & 1)
            off = EB + (k >> 2) * 4096 + (k & 3) * 256
            ld = ("w", EB + (k >> 2) * 4096, EB + (k >> 2) * 4096 + 4096, False)
            x = base + 4 * u + r
            if w2:
                o = Op("DS", f"ds_write2st64_b32 v{V_EW}, {kp}{x}, {kp}{x+1} offset0:{off//256} offset1:{off//256+1}", rd=[f"v{V_EW}"] + rl(kp, x, 2),
                       lds=ld, cls="AT", grp=("E", q))
            else:
                o = Op("DS", f"ds_write_addtid_b32 {kp}{x} offset:{off}", rd=[f"{kp}{x}"], pre=("m0", f"s_mov_b32 m0, s{S_M0W}"),
                       lds=ld, cls="AT", grp=("E", q))
            o.e = max(lastM[(kp, idx, u)] + 4, gB1[8] if j == 0 else gB2[j - 1])
            o.e = min(o.e, tail0)
            o.dl = gB2[j] - (1 if j == NS else 2); o.prio = o.dl - 100 + (0 if kp == "v" else 1)
            if snd: o.after.append((snd[-1], w2sp if w2 else 0))
            snd.append(o)
        ops += snd
        rv = V_RECV + (q & 1) * 8
        dlf = st2.get(idx + nacc, END + 1) - 1 if kp == "v" else END
        dlf = min(dlf, gB2.get(j + 2, END))
        rcv = []
        for k in range(0, 8, 2):
            o0 = (EB + (k >> 2) * 4096 + (k & 3) * 256) // 256
            o = Op("DS", f"ds_read2st64_b32 {rg('v',rv+k,2)}, v{V_E} offset0:{o0} offset1:{o0+1}", rd=[f"v{V_E}"], wr=rl("v", rv + k, 2),
                   lds=("r", EB + (k >> 2) * 4096, EB + (k >> 2) * 4096 + 4096, False))
            o.e = gB2[j]; o.dl = min(dlf, gB2.get(j + 1, END + 3) - 3); o.prio = gB2[j] + q * 0.01
            if q - 2 in lastcv: o.after.append((lastcv[q - 2], 0))
            rcv.append(o)
        ops += rcv
        kept = []
        if kp == "a":
            kb = V_SZ + (na & 1) * 8
            for u in range(4):
                for r in range(2):
                    o = V(f"v_accvgpr_read_b32 v{kb+2*u+r}, a{base+4*u+r}", [f"a{base+4*u+r}"], [f"v{kb+2*u+r}"])
                    o.e = max(lastM[(kp, idx, u)] + 4, gB2[j] - 12); o.dl = dlf; o.prio = gB2[j] + 2 + q * 0.01
                    if ("a", na - 2) in lastadd: o.after.append((lastadd[("a", na - 2)], 0))
                    kept.append(o)
            ops += kept
        adds = []
        for u in range(4):
            src = V_SZ + (na & 1) * 8 + 2 * u if kp == "a" else base + 4 * u
            if pk:
                lst = [V(f"v_pk_add_f32 {rg('v',rv+2*u,2)}, {rg('v',src,2)}, {rg('v',rv+2*u,2)}", rl("v", src, 2) + rl("v", rv + 2 * u, 2), rl("v", rv + 2 * u, 2))]
            else:
                lst = [V(f"v_add_f32 v{rv+2*u+r}, v{src+r}, v{rv+2*u+r}", [f"v{src+r}", f"v{rv+2*u+r}"], [f"v{rv+2*u+r}"]) for r in range(2)]
            for o in lst:
                o.e = gB2[j]; o.dl = dlf; o.prio = gB2[j] + 4 + q * 0.01
                o.after.append((rcv[u], recvd))
                if kp == "a": o.after += [(kept[2 * u], 0), (kept[2 * u + 1], 0)]
                if adds: o.after.append((adds[-1], 0))
                adds.append(o)
        ops += adds
        if not pk: adds = adds[1::2]
        if kp == "a":
            lastadd[("a", na)] = adds[-1]; na += 1
        ob = V_T + (q & 3) * 4
        prev = None
        for rho in range(2):
            cvs = []
            for h in range(2):
                a, b = rv + 4 * h + rho, rv + 4 * h + 2 + rho
                o = V(f"v_cvt_pk_bf16_f32 v{ob+2*rho+h}, v{a}, v{b}", [f"v{a}", f"v{b}"], [f"v{ob+2*rho+h}"])
                o.e = gB2[j]; o.dl = END; o.prio = gB2[j] + 6 + q * 0.01
                o.after += [(adds[2 * h], 0), (adds[2 * h + 1], 0)]
                if q - 4 in lastst: o.after.append((lastst[q - 4], 1))
                if prev: o.after.append((prev, 0))
                prev = o
                cvs.append(o)
            lastcv[q] = cvs[-1]
            vo = V_O1 if rho else V_O0
            o = Op("VM", f"buffer_store_dwordx2 {rg('v',ob+2*rho,2)}, v{vo}, s[{S_O}:{S_O+3}], s{S_OS} offen {st if mix[q % len(mix)] == '1' else ''}".rstrip(),
                   rd=rl("v", ob + 2 * rho, 2) + [f"v{vo}"], pre=(f"s{S_OS}", f"s_mov_b32 s{S_OS}, {tile*147456}"), cls="ST", tag=("O", tile))
            o.e = gB2[j]; o.dl = END; o.prio = gB2[j] + 7 + q * 0.01
            o.after += [(c, 0) for c in cvs]
            if rho: o.after.append((lastst[q], 0))
            elif q - 1 in lastst: o.after.append((lastst[q - 1], 0))
            lastst[q] = o
            ops += cvs + [o]

    pend = sorted(ops, key=lambda o: (o.prio, o.id))
    cur = {}
    for o in G[0].ops:
        if o.pre: cur[o.pre[0]] = o.pre[1]
    lastvm = -99; lastdma = -99
    for gi, g in enumerate(G):
        if g.free == "fixed": continue
        room = 2
        sc_used = g.fragwait or g.bar
        if g.bar and not g.free: room -= 1
        m0user = None; nat = 0; osuser = None
        while True:
            pick = None
            for o in pend:
                if o.e > gi: continue
                if g.free:
                    if g.free == "flex" and o.dl > gi: continue
                    if any(a.gap is None for a, d in o.after): continue
                    if g.name == "B0" and not (o.tag and o.tag[0] == "F" and o.tag[1] < D) and o.prio > -400: continue
                    pick = o; break
                if any(a.gap is None or a.gap + d > gi for a, d in o.after): continue
                cost = 1
                chg = o.pre and cur.get(o.pre[0]) != o.pre[1]
                if chg and sc_used: cost = 2
                if cost > room: continue
                if o.pre and o.pre[0] == "m0" and m0user is not None and (chg or True) and m0user != o.pre[1]: continue
                if o.pre and o.pre[0] != "m0" and osuser is not None and osuser != o.pre[1]: continue
                urgent = o.dl - gi <= 2
                if o.cls == "AT" and nat >= 1 and not urgent: continue
                if o.kind == "VM" and gi - lastvm < vmsp and not urgent: continue
                if o.cls == "DMA" and gi >= st2[0] and gi - lastdma < dmasp and not urgent: continue
                pick = o; break
            if pick is None: break
            o = pick
            pend.remove(o); o.gap = gi; g.ops.append(o)
            chg = o.pre and cur.get(o.pre[0]) != o.pre[1]
            if o.pre:
                cur[o.pre[0]] = o.pre[1]
                if o.pre[0] == "m0": m0user = o.pre[1]
                else: osuser = o.pre[1]
            if not g.free:
                room -= 1
                if chg:
                    if sc_used: room -= 1
                    sc_used = True
            if o.cls == "AT": nat += 1
            if o.kind == "VM": lastvm = gi
            if o.cls == "DMA": lastdma = gi
            if room <= 0 and not g.free: break
    assert not pend, [(o.text, o.e, o.dl) for o in pend[:10]]
    late = [o for o in ops if o.gap > o.dl]
    assert not late, [(o.text, o.gap, o.dl, G[o.gap].name) for o in late[:10]]

    def dropped(o):
        if "s" in drop and o.cls == "ST": return True
        if "d" in drop and o.tag and o.tag[0] == "P" and o.tag[1] >= 2: return True
        if "x" in drop and (o.cls == "AT" or o.text.startswith("ds_read2st64")): return True
        if "v" in drop and o.kind == "V" and o.gap >= st2[0]: return True
        if "f" in drop and o.tag and o.tag[0] == "F" and o.gap >= st2[0]: return True
        if "W" in drop and o.tag and o.tag[0] == "W" and o.tag[1] >= 3: return True
        if "X" in drop and o.tag and o.tag[0] == "X" and o.tag[1] >= 3: return True
        if "q" in drop and o.kind == "V" and start[0] <= o.gap < st2[0]: return True
        return False
    for gi, g in enumerate(G):
        g.ops = [o for o in g.ops if not dropped(o)]
        if "b" in drop and gi >= st2[0] and g.mfma: g.bar = False
        if "B" in drop and gi < st2[0] and g.mfma: g.bar = False
    Lz = []
    cur = {}
    for gi, g in enumerate(G):
        if g.label: Lz.append(Op("L", g.label))
        if g.mfma: Lz.append(g.mfma)
        if g.stamp: Lz.append(S(stamp_text()))
        if g.free:
            if g.bar: Lz.append(Op("B", "s_barrier"))
            for o in g.ops:
                if o.pre and cur.get(o.pre[0]) != o.pre[1]:
                    cur[o.pre[0]] = o.pre[1]; Lz.append(Op("S", o.pre[1], wr=[o.pre[0]]))
                Lz.append(o)
        else:
            lst = g.ops
            if len(lst) == 2 and lst[0].pre and lst[0].pre[0] == "m0" and not lst[1].pre and not any(a is lst[0] for a, d in lst[1].after) \
               and not (lst[0].kind == lst[1].kind) and not (set(lst[0].rd) & set(lst[1].wr)):
                lst = [lst[1], lst[0]]
            for o in lst:
                if o.pre and cur.get(o.pre[0]) != o.pre[1]:
                    cur[o.pre[0]] = o.pre[1]; Lz.append(Op("S", o.pre[1], wr=[o.pre[0]]))
            wm = Op("WM", ""); wm.look = list(lst) + ([G[gi + 1].mfma] if gi + 1 < len(G) and G[gi + 1].mfma else [])
            Lz.append(wm)
            if g.bar:
                b = Op("B", "s_barrier"); Lz.append(b); wm.look.append(b)
            for spec in (wb.split(",") if wb else []):
                stp, who = spec.split(":")
                if gi == gB2.get(int(stp)) + 1:
                    lab = f"L_wb{stp}"
                    if who == "8":
                        Lz.append(S("s_lshl_b32 s15, s3, 8")); Lz.append(S("s_add_u32 s15, s15, s2")); Lz.append(S("s_cmp_lt_u32 s15, 8"))
                    elif who == "a":
                        Lz.append(S("s_cmp_eq_u32 s3, 0"))
                    Lz.append(S(f"s_cbranch_scc0 {lab}"))
                    Lz.append(S("buffer_wbl2 sc1"))
                    Lz.append(Op("L", lab + ":"))
            Lz += lst
    acc = [(k, o) for k, o in enumerate(Lz) if o.lds]
    bars = [k for k, o in enumerate(Lz) if o.kind == "B"]
    import bisect
    for y in range(len(acc)):
        ky, oy = acc[y]
        bi = bisect.bisect_left(bars, ky) - 1
        for x in range(y):
            kx, ox = acc[x]
            if ox.lds[0] == "r" and oy.lds[0] == "r": continue
            if ox.lds[0] == "w" and oy.lds[0] == "w": continue
            if ox.lds[3] and oy.lds[3]: continue
            if ox.lds[2] <= oy.lds[1] or oy.lds[2] <= ox.lds[1]: continue
            if drop and not (bi >= 0 and bars[bi] > kx): continue
            assert bi >= 0 and bars[bi] > kx, ("LDS race", ox.text, G[ox.gap].name, oy.text, G[oy.gap].name)
            Lz[bars[bi]].needs.append(ox)
    issued = {"VM": 0, "DS": 0}; done = {"VM": -1, "DS": -1}; CAP = {"VM": 63, "DS": 15}
    pendreg = {}
    out = []
    inl = 0
    def needs_of(o):
        n = {"VM": -1, "DS": -1}
        for r in o.rd + o.wr:
            if r in pendreg:
                q, i = pendreg[r]; n[q] = max(n[q], i)
        for x in o.needs:
            if hasattr(x, "qi"): n[x.kind] = max(n[x.kind], x.qi)
        return n
    def dowait(n):
        w = []
        for q, nm in (("VM", "vmcnt"), ("DS", "lgkmcnt")):
            if n[q] > done[q]:
                c = min(issued[q] - 1 - n[q], CAP[q])
                done[q] = issued[q] - 1 - c
                w.append(f"{nm}({c})")
        if w: out.append(Op("S", "s_waitcnt " + " ".join(w)))
        return bool(w)
    for o in Lz:
        if o.kind == "WM":
            n = {"VM": -1, "DS": -1}
            for x in o.look:
                m = needs_of(x)
                for q in n: n[q] = max(n[q], m[q])
            dowait(n); continue
        if dowait(needs_of(o)): inl += 1
        if o.kind in ("VM", "DS"):
            o.qi = issued[o.kind]; issued[o.kind] += 1
            for r in o.wr: pendreg[r] = (o.kind, o.qi)
        out.append(o)
    fin = []
    t = 0
    wV = {}; wM = {}; wS = {}
    nops = 0
    for o in out:
        need = 0
        if o.kind == "M":
            for r in o.rd: need = max(need, wV.get(r, -99) + 3 - t)
        elif o.kind in ("V", "DS", "VM"):
            for r in o.rd + o.wr: need = max(need, wM.get(r, -99) + 10 - t)
            if o.pre and o.pre[0] == "m0": need = max(need, wS.get("m0", -99) + 2 - t)
        if need > 0:
            fin.append(Op("S", f"s_nop {need-1}")); t += need; nops += 1
        if o.kind == "V":
            for r in o.wr: wV[r] = t
        elif o.kind == "M":
            for r in o.wr: wM[r] = t
        elif o.kind == "S":
            for r in o.wr: wS[r] = t
        fin.append(o)
        t += 2 if o.kind == "M" else 1
    if verbose:
        print("inline waits", inl, "nops", nops, "instr", len(fin), file=sys.stderr)
        for gi, g in enumerate(G):
            if g.free: print(gi, g.name, len(g.ops), file=sys.stderr)

    L = []
    A = L.append
    A("; @launch grid=(252,1,1) block=(256,1,1) lds=163840")
    A('.amdgcn_target "amdgcn-amd-amdhsa--gfx950"')
    A(".text"); A(f".globl {NAME}"); A(".p2align 8"); A(f".type {NAME},@function"); A(f"{NAME}:")
    for o in fin: A(o.text if o.kind == "L" else "  " + o.text)
    if stamps:
        A("  " + stamp_text()); A("  s_waitcnt vmcnt(0)"); A("  " + stamp_text()); A("  " + stamp_text(True))
        n = nst[0]
        if probe:
            C, Kf, idx, wg = map(int, probe.split(","))
            for x in ["s_waitcnt lgkmcnt(0)", "s_cmp_lg_u32 s3, 0", "s_cbranch_scc1 L_end"]: A("  " + x)
            if wg >= 0:
                A(f"  s_cmp_lg_u32 s2, {wg}"); A("  s_cbranch_scc1 L_end")
            rt = idx == 12
            b0 = STREGS[0 if rt else 1]
            for x in [f"s_sub_u32 s18, s{STREGS[idx]}, s{b0}", f"s_mul_i32 s18, s18, {Kf}", f"s_add_u32 s18, s18, {C}",
                      f"s_min_u32 s18, s18, {20000 if rt else 400000}"]: A("  " + x)
            A("L_spin:")
            for x in ["s_memrealtime s[20:21]" if rt else "s_memtime s[20:21]", "s_waitcnt lgkmcnt(0)", f"s_sub_u32 s19, s20, s{b0}", "s_cmp_lt_u32 s19, s18",
                      "s_cbranch_scc1 L_spin", "s_endpgm"]: A("  " + x)
        if dbg:
            for x in ["s_waitcnt lgkmcnt(0)", "s_cmp_lg_u32 s3, 0", "s_cbranch_scc1 L_end",
                      "s_lshr_b32 s18, s2, 6", "s_mul_i32 s19, s18, 65", "s_cmp_lg_u32 s19, s2", "s_cbranch_scc1 L_end",
                      "s_mov_b32 s20, s16", "s_and_b32 s21, s17, 0xffff", "s_mov_b32 s22, 256", "s_mov_b32 s23, 0x20000",
                      "s_lshl_b32 s18, s18, 4", "v_mov_b32 v2, s18", "s_mov_b64 exec, 1"]: A("  " + x)
            for j, k in enumerate((4, 5, 7, 11)):
                A(f"  s_sub_u32 s19, s{STREGS[k]}, s{STREGS[1]}"); A(f"  v_mov_b32 v{4+j}, s19")
            A("  buffer_store_dwordx4 v[4:7], v2, s[20:23], 0 offen"); A("  s_waitcnt vmcnt(0)"); A("  s_endpgm")
        for x in ["s_waitcnt lgkmcnt(0)", "s_cmp_lg_u32 s3, 0", "s_cbranch_scc1 L_end",
                  "s_mov_b32 s20, s16", "s_and_b32 s21, s17, 0xffff", "s_mov_b32 s22, 0x100000", "s_mov_b32 s23, 0x20000",
                  f"s_mul_i32 s18, s2, {n*8}", "v_mov_b32 v2, s18", "s_mov_b64 exec, 1"]: A("  " + x)
        for k in range(n):
            for x in [f"v_mov_b32 v4, s{STREGS[k]}", f"v_mov_b32 v5, s{STREGS[k]+1}",
                      f"buffer_store_dwordx2 v[4:5], v2, s[20:23], 0 offen offset:{8*k}", "s_nop 1"]: A("  " + x)
        A("  s_waitcnt vmcnt(0)")
    A("L_end:"); A("  s_endpgm")
    A('.section .rodata,"a"'); A(".p2align 6"); A(f".amdhsa_kernel {NAME}")
    A(f"  .amdhsa_next_free_vgpr {256 + A_FR + NA*4}")
    A("  .amdhsa_next_free_sgpr 102")
    A("  .amdhsa_accum_offset 256")
    A("  .amdhsa_group_segment_fixed_size 0")
    A("  .amdhsa_kernarg_size 56")
    A("  .amdhsa_user_sgpr_count 2")
    A("  .amdhsa_user_sgpr_kernarg_segment_ptr 1")
    A("  .amdhsa_system_sgpr_workgroup_id_x 1")
    A("  .amdhsa_float_denorm_mode_32 3")
    A(".end_amdhsa_kernel")
    return "\n".join(L) + "\n", nst[0]

if __name__ == "__main__":
    ap = argparse.ArgumentParser()
    ap.add_argument("-o", default="k2.s")
    for k, d in dict(R=8, rotA=4, rotB=2, D=3, NA=5, b1=8, bpos=20, nb1=2, vmsp=2, dmasp=4, nacc=3, recvd=5, p1per=1, w2all=0, w2sp=2, pk=0, cpf=0, dbg=0, nt0=0).items():
        ap.add_argument("--" + k, type=int, default=d)
    ap.add_argument("--stamps", action="store_true")
    ap.add_argument("-v", dest="verbose", action="store_true")
    for k in ("st", "lw", "lx", "lx2", "drop", "ta"): ap.add_argument("--" + k, default="")
    ap.add_argument("--tb", default="0000")
    ap.add_argument("--lw0", default="nt")
    ap.add_argument("--mix", default="1")
    ap.add_argument("--probe", default="")
    ap.add_argument("--wb", default="")
    a = vars(ap.parse_args())
    o = a.pop("o")
    s, n = gen(**a)
    open(o, "w").write(s)
    print(o, "lines", s.count("\n"), "stamps", n)
```

```python
import sys, argparse
NAME = "standalone__w4a16_gemm_dequant__prompt_kernel"
INF = 10 ** 9

def rl(p, b, n): return [f"{p}{b+i}" for i in range(n)]
def rg(p, b, n): return f"{p}[{b}:{b+n-1}]" if n > 1 else f"{p}{b}"

class Op:
    cnt = 0
    def __init__(s, kind, text, rd=(), wr=(), pre=None, lds=None, cls=None, e=0, dl=INF, prio=None, after=(), tag=None, grp=None):
        s.kind = kind; s.text = text; s.rd = list(rd); s.wr = list(wr); s.pre = pre; s.lds = lds; s.cls = cls
        s.e = e; s.dl = dl; s.prio = dl if prio is None else prio; s.after = list(after); s.tag = tag; s.grp = grp
        s.gap = None; s.needs = []; s.id = Op.cnt; Op.cnt += 1

class Gap:
    def __init__(s, mfma=None, free=None, bar=False, name=""):
        s.mfma = mfma; s.free = free; s.bar = bar; s.ops = []; s.name = name; s.stamp = False; s.label = None
        s.fragwait = False

def gen(R=8, rotA=4, rotB=2, D=3, NA=5, b1=8, bpos=20, nb1=2, vmsp=2, dmasp=4, stamps=False, st="", lw="", lx="", lx2="",
        nacc=3, skip18=True, verbose=False, recvd=5, p1per=1, w2all=0, w2sp=2, drop='', pk=0, ta='', tb='0000', mix='1', wb='', cpf=0, dbg=0, lw0='nt', nt0=0, probe='', rotC=0, pro=0, x0pos=0):
    NT, NST = 19, 9
    NS = NT - R
    assert R % 2 == 0 and 4 <= R <= 10
    RING = 24576
    SLOT0 = 53248
    def ringbuf(s): return RING + (s % 3) * R * 2048
    def slot(n): return SLOT0 + ((n + 2) % 6) * 18432
    assert RING + 3 * R * 2048 <= slot(0)
    S_X, S_W, S_S, S_Z, S_O = 20, 24, 28, 32, 36
    S_WOFS, S_XOFS, S_P2, S_D1, S_D9 = 40, 48, 56, 66, 75
    S_M0X, S_M0W, S_C24, S_MSK, S_OS, S_NTL = 84, 85, 86, 87, 88, 89
    STREGS = [90, 92, 94, 96, 98, 100, 4, 6, 8, 10, 12, 14, 66, 68]
    V_W, V_X, V_X2, V_R, V_O0, V_O1, V_TR, V_TW, V_E, V_S = 2, 3, 4, 5, 8, 9, 10, 11, 12, 13
    V_SZ, V_RAW, V_F, V_T = 16, 32, 96, 240
    V_EW = 0
    def raw(p, j): return V_RAW + p * 32 + j * 4
    def F(i, u): return V_F + (i * 4 + u) * 4
    def acc1(t, u): return (t * 4 + u) * 4
    A_FR = 16 * R
    def fr(f): return A_FR + (f % NA) * 4
    def acc2(n, u): return V_RAW + (n % nacc) * 16 + u * 4
    V_RECV = V_RAW + 48
    nst = [0]
    def stamp_text(real=False):
        r = STREGS[nst[0]]; nst[0] += 1
        return f"s_memrealtime s[{r}:{r+1}]" if real else f"s_memtime s[{r}:{r+1}]"

    G = []
    def S(t): return Op("S", t)
    def V(t, rd=(), wr=(), **k): return Op("V", t, rd, wr, **k)
    def fixed(ops, name="", bar=False):
        g = Gap(free="fixed", name=name, bar=bar); g.ops = list(ops)
        for o in g.ops: o.gap = len(G)
        G.append(g); return g
    def txt(lines):
        out = []
        for x in lines:
            out.append(Op("V" if x.startswith("v_") else "S", x))
        return out

    def ldW(i, j):
        r = raw(i & 1, j)
        so = "0" if j == 0 else f"s{S_WOFS+j}"
        return Op("VM", f"buffer_load_dwordx4 {rg('v',r,4)}, v{V_W}, s[{S_W}:{S_W+3}], {so} offen {lw0 if i < nt0 else lw}".rstrip(),
                  rd=[f"v{V_W}"], wr=rl("v", r, 4), cls="VM", tag=("W", i, j))
    def ldSZ(m):
        r = V_T + 4 * m
        return [Op("VM", f"buffer_load_dwordx2 {rg('v',r,2)}, v{V_S+m}, s[{S_S}:{S_S+3}], 0 offen", rd=[f"v{V_S+m}"], wr=rl("v", r, 2), cls="VM"),
                Op("VM", f"buffer_load_dwordx2 {rg('v',r+2,2)}, v{V_S+m}, s[{S_Z}:{S_Z+3}], 0 offen", rd=[f"v{V_S+m}"], wr=rl("v", r + 2, 2), cls="VM")]
    def ldX(s, e):
        so = f"s{S_XOFS+e}" if e else "0"
        b = ringbuf(s)
        return Op("VM", f"buffer_load_dwordx4 v{V_X}, s[{S_X}:{S_X+3}], {so} offen offset:{(e&3)*1024} {lx} lds".rstrip(),
                  rd=[f"v{V_X}"], pre=("m0", f"s_add_u32 m0, s{S_M0X}, {b + (e>>2)*4096}"), lds=("w", b, b + R * 2048, False),
                  cls="DMA", tag=("X", s, e), grp=("X", s))
    def ldP(p, e):
        b = slot(2 * p) + e * 4096
        return Op("VM", f"buffer_load_dwordx4 v{V_X2}, s[{S_X}:{S_X+3}], s{S_P2+e} offen {lx2} lds".rstrip(),
                  rd=[f"v{V_X2}"], pre=("m0", f"s_add_u32 m0, s{S_M0W}, {b}"), lds=("w", b, b + 4096, False),
                  cls="DMA", tag=("P", p, e), grp=("P", p))
    def advW(i): return V(f"v_lshl_add_u32 v{V_W}, s{S_D9+i}, 17, v{V_W}", [f"v{V_W}"], [f"v{V_W}"])
    def advX(i): return V(f"v_lshl_add_u32 v{V_X}, s{S_D1+i}, 7, v{V_X}", [f"v{V_X}"], [f"v{V_X}"])
    def prep(m, t):
        r = V_T + 4 * m
        o = []
        for h in range(2):
            o.append(V(f"v_lshlrev_b32 v{t+2*h}, 16, v{r+h}", [f"v{r+h}"], [f"v{t+2*h}"]))
            o.append(V(f"v_and_b32 v{t+2*h+1}, s{S_MSK}, v{r+h}", [f"v{r+h}"], [f"v{t+2*h+1}"]))
        for h in range(2):
            o.append(V(f"v_lshlrev_b32 v{t+4+2*h}, 16, v{r+2+h}", [f"v{r+2+h}"], [f"v{t+4+2*h}"]))
            o.append(V(f"v_and_b32 v{t+4+2*h+1}, s{S_MSK}, v{r+2+h}", [f"v{r+2+h}"], [f"v{t+4+2*h+1}"]))
        for u in range(4):
            o.append(V(f"v_mul_f32_e64 v{t+4+u}, -v{t+4+u}, v{t+u}", [f"v{t+4+u}", f"v{t+u}"], [f"v{t+4+u}"]))
        for u in range(4):
            o.append(V(f"v_mul_f32 v{t+u}, s{S_C24}, v{t+u}", [f"v{t+u}"], [f"v{t+u}"]))
        o.append(Op("DS", f"ds_write_b128 v{V_TW}, {rg('v',t,4)} offset:{m*2048}", rd=[f"v{V_TW}"] + rl("v", t, 4), lds=("w", 0, 24576, True)))
        o.append(Op("DS", f"ds_write_b128 v{V_TW}, {rg('v',t+4,4)} offset:{m*2048+256}", rd=[f"v{V_TW}"] + rl("v", t + 4, 4), lds=("w", 0, 24576, True)))
        return o
    def rdSZ(i):
        z = V_SZ + (i & 1) * 8
        return [Op("DS", f"ds_read_b128 {rg('v',z,4)}, v{V_TR} offset:{i*512}", rd=[f"v{V_TR}"], wr=rl("v", z, 4), lds=("r", 0, 24576, True)),
                Op("DS", f"ds_read_b128 {rg('v',z+4,4)}, v{V_TR} offset:{i*512+256}", rd=[f"v{V_TR}"], wr=rl("v", z + 4, 4), lds=("r", 0, 24576, True))]
    def deq(i, jj):
        p = i & 1; z = V_SZ + p * 8
        fm = []; cv = []
        for j in (2 * jj, 2 * jj + 1):
            for u in range(4):
                r = raw(p, j) + u
                fm.append(V(f"v_fma_mix_f32 v{r}, v{r}, v{z+u}, v{z+4+u} op_sel_hi:[1,0,0]", [f"v{r}", f"v{z+u}", f"v{z+4+u}"], [f"v{r}"]))
        for u in range(4):
            a, b = raw(p, 2 * jj) + u, raw(p, 2 * jj + 1) + u
            cv.append(V(f"v_cvt_pk_bf16_f32 v{F(i,u)+jj}, v{a}, v{b}", [f"v{a}", f"v{b}"], [f"v{F(i,u)+jj}"]))
        return fm, cv
    def rdF(f, addr):
        w, off = divmod(addr, 65536)
        a = fr(f)
        return Op("DS", f"ds_read_b128 {rg('a',a,4)}, v{V_R+w} offset:{off}", rd=[f"v{V_R+w}"], wr=rl("a", a, 4), lds=("r", addr, addr + 2048, False), tag=("F", f))
    def mfma(dp, d, f, fb, first):
        dd = rg(dp, d, 4)
        return Op("M", f"v_mfma_f32_16x16x32_bf16 {dd}, {rg('a',fr(f),4)}, {rg('v',fb,4)}, {'0' if first else dd}",
                  rd=rl("a", fr(f), 4) + rl("v", fb, 4) + ([] if first else rl(dp, d, 4)), wr=rl(dp, d, 4))

    if ta:
        A_ = sum(int(c) << (4 * i) for i, c in enumerate(ta)); B_ = sum(int(c) << (4 * i) for i, c in enumerate(tb))
        rot = ["s_lshl_b32 s40, s15, 2", f"s_lshr_b32 s40, {A_}, s40", "s_and_b32 s40, s40, 15",
               "s_and_b32 s41, s18, 3", "s_lshl_b32 s41, s41, 2", f"s_lshr_b32 s41, {B_}, s41", "s_and_b32 s41, s41, 15",
               "s_add_u32 s40, s40, s41"]
        if rotC: rot += [f"s_mul_i32 s41, s14, {rotC}", "s_add_u32 s40, s40, s41", "s_mul_i32 s41, s40, 57", "s_lshr_b32 s41, s41, 9",
                         "s_mul_i32 s41, s41, 9", "s_sub_u32 s19, s40, s41"]
        else: rot += ["s_sub_u32 s41, s40, 9", "s_min_u32 s19, s40, s41"]
    else:
        rot = [f"s_mul_i32 s40, s15, {rotA}", f"s_mul_i32 s41, s18, {rotB}", "s_add_u32 s40, s40, s41", "s_mul_i32 s41, s40, 57",
               "s_lshr_b32 s41, s41, 9", "s_mul_i32 s41, s41, 9", "s_sub_u32 s19, s40, s41"]
    P = []
    if stamps: P += [S(stamp_text(True)), S(stamp_text())]
    P += txt([
        "s_cmp_ge_u32 s2, 252",
        "s_cbranch_scc1 L_end",
        "s_load_dwordx8 s[4:11], s[0:1], 0",
        "s_load_dwordx2 s[12:13], s[0:1], 32"])
    if stamps: P += txt([f"s_load_dwordx2 s[16:17], s[0:1], {40 if dbg else 48}"])
    if cpf:
        P += txt(["s_getpc_b64 s[40:41]"]) + [Op("L", "L_pc:")] + txt(["s_and_b32 s41, s41, 0xffff", "s_mov_b32 s42, L_end-L_pc", "s_mov_b32 s43, 0x20000",
                  f"v_lshlrev_b32 v15, {cpf}, v0"])
        P += [Op("VM", "buffer_load_dword v255, v15, s[40:43], 0 offen", rd=["v15"], wr=["v14x"])]
        P += txt(["s_nop 4"])
    P += txt([
        "v_lshrrev_b32 v16, 6, v0",
        "v_and_b32 v1, 63, v0",
        "v_readfirstlane_b32 s3, v16",
        "s_and_b32 s14, s2, 7",
        "s_lshr_b32 s15, s2, 3",
        "s_lshl_b32 s18, s14, 2",
        "s_and_b32 s19, s15, 3",
        "s_add_u32 s18, s18, s19",
        "s_lshr_b32 s19, s15, 2",
        "s_and_b32 s40, s14, 3",
        "s_add_u32 s40, s40, 32",
        "s_and_b32 s41, s14, 4",
        "s_add_u32 s41, s41, s15",
        "s_sub_u32 s41, s41, 28",
        "s_cmp_ge_u32 s15, 28",
        "s_cselect_b32 s18, s40, s18",
        "s_cselect_b32 s15, s41, s19",
        *rot,
        "s_lshr_b32 s64, s3, 1",
        "s_and_b32 s65, s3, 1",
        "s_lshl_b32 s18, s18, 7",
        "s_lshl_b32 s40, s65, 6",
        "s_add_u32 s18, s18, s40",
        "v_and_b32 v16, 15, v1",
        "v_lshrrev_b32 v17, 4, v1",
        f"s_mov_b32 s{S_WOFS+1}, 18432",
        "s_mul_i32 s40, s64, 9216",
        "s_lshl1_add_u32 s40, s18, s40",
        "v_lshl_add_u32 v18, v16, 3, s40",
        "v_add_u32 v19, s19, v17",
        "v_add_u32 v20, -9, v19",
        "v_min_u32 v20, v19, v20",
        f"v_mad_u32_u24 v{V_S}, v20, s{S_WOFS+1}, v18",
        "s_mul_i32 s42, s19, 1179648",
        "s_mul_i32 s43, s64, 589824",
        "s_lshl2_add_u32 s43, s18, s43",
        "s_add_u32 s42, s42, s43",
        f"v_mul_u32_u24 v{V_W}, 147456, v17",
        f"v_lshl_add_u32 v{V_W}, v16, 4, v{V_W}",
        f"v_add_u32 v{V_W}, s42, v{V_W}",
        f"s_mov_b32 s{S_W+2}, {576*4608*4}",
        f"s_mov_b32 s{S_S+2}, {18*4608*2}",
        f"s_mov_b32 s{S_Z+2}, {18*4608*2}",
        f"s_mov_b32 s{S_W+3}, 0x20000",
        f"s_mov_b32 s{S_S+3}, 0x20000",
        f"s_mov_b32 s{S_Z+3}, 0x20000"])
    P += txt([f"s_mov_b32 s{S_WOFS+k}, {k*18432}" for k in range(2, 8)])
    P += txt([
        "s_mul_i32 s14, s15, 18",
        "s_min_u32 s40, s15, 2",
        "s_add_u32 s14, s14, s40",
        "s_cmp_lt_u32 s15, 2",
        f"s_cselect_b32 s{S_NTL}, 19, 18",
        "v_lshrrev_b32 v21, 3, v1",
        "v_lshrrev_b32 v22, 4, v1",
        "v_and_b32 v22, 2, v22",
        "v_lshrrev_b32 v23, 2, v1",
        "v_and_b32 v23, 4, v23",
        "v_and_b32 v24, 7, v1",
        "v_or3_b32 v22, v22, v23, 0",
        "v_xor_b32 v22, v22, v24",
        "v_mul_u32_u24 v21, 1152, v21",
        "v_lshl_add_u32 v21, v22, 4, v21",
        f"s_mul_i32 s40, s3, {(R//2)*9216}",
        "s_lshl_b32 s15, s19, 7",
        "s_add_u32 s40, s40, s15",
        f"v_add_u32 v{V_X}, s40, v21",
        f"s_mul_i32 s{S_M0X}, s3, {(R//2)*1024}",
        f"s_mul_i32 s{S_X+2}, s{S_NTL}, 18432",
        f"s_mov_b32 s{S_X+3}, 0x20000",
        "s_mul_i32 s15, s14, 18432",
        f"s_cmp_eq_u32 s19, 8",
        f"s_cselect_b32 s{S_D1+1}, -8, 1",
        f"s_cselect_b32 s{S_D9+1}, -72, 9"])
    P += txt([f"s_mov_b32 s{S_XOFS+e}, {e*9216-(e&3)*1024}" for e in range(1, R // 2)])
    P += txt([
        "s_waitcnt lgkmcnt(0)",
        f"s_mov_b32 s{S_S}, s8", f"s_and_b32 s{S_S+1}, s9, 0xffff",
        f"s_mov_b32 s{S_Z}, s10", f"s_and_b32 s{S_Z+1}, s11, 0xffff",
        f"s_mov_b32 s{S_W}, s6", f"s_and_b32 s{S_W+1}, s7, 0xffff"])
    szadr = lambda m: txt([f"v_add_u32 v19, 4, v19", "v_add_u32 v20, -9, v19", "v_min_u32 v20, v19, v20",
                           f"v_mad_u32_u24 v{V_S+m}, v20, s{S_WOFS+1}, v18"])
    xsrd = txt([f"s_add_u32 s{S_X}, s4, s15", f"s_addc_u32 s{S_X+1}, s5, 0", f"s_and_b32 s{S_X+1}, s{S_X+1}, 0xffff"])
    P += ldSZ(0)
    X0 = [ldX(0, e) for e in range(R // 2)]
    if pro and x0pos == 2:
        P += [ldW(0, j) for j in range(4)] + xsrd + X0 + [ldW(0, j) for j in range(4, 8)]
    else:
        P += [ldW(0, j) for j in range(8)]
        P += xsrd
        if pro and x0pos == 1: P += X0
    if not pro:
        P += [ldX(0, e) for e in range(R // 2)]
        P += [advW(1), advX(1)]
        P += [ldW(1, j) for j in range(8)]
        P += [ldX(1, e) for e in range(R // 2)]
        for m in (1, 2):
            P += szadr(m) + ldSZ(m)
    if stamps: P += [S(stamp_text())]
    P += txt([
        "s_mul_i32 s15, s14, 147456",
        f"s_add_u32 s{S_O}, s12, s15", f"s_addc_u32 s{S_O+1}, s13, 0", f"s_and_b32 s{S_O+1}, s{S_O+1}, 0xffff",
        f"s_mul_i32 s{S_O+2}, s{S_NTL}, 147456",
        f"s_mov_b32 s{S_O+3}, 0x20000",
        f"s_mov_b32 s{S_C24}, 0x4b800000", f"s_mov_b32 s{S_MSK}, 0xffff0000",
        f"s_lshl_b32 s{S_M0W}, s3, 10",
        "s_mul_i32 s40, s3, 6144",
        f"v_lshl_add_u32 v{V_TR}, v16, 4, s40",
        f"v_lshl_add_u32 v{V_TW}, v17, 9, v{V_TR}",
        "s_mul_i32 s40, s65, 9216",
        f"s_add_u32 s40, s40, {R*18432}",
        f"v_add_u32 v{V_X2}, s40, v21",
        "s_mul_i32 s40, s64, 18432",
        "s_lshl1_add_u32 s40, s18, s40",
        f"v_mul_u32_u24 v{V_O0}, 36864, v17",
        f"v_lshl_add_u32 v{V_O0}, v16, 3, v{V_O0}",
        f"v_add_u32 v{V_O0}, s40, v{V_O0}",
        f"v_add_u32 v{V_O1}, 9216, v{V_O0}",
        f"s_xor_b32 s40, s{S_M0W}, 2048",
        f"v_lshl_add_u32 v{V_E}, v1, 2, s40",
        f"v_xor_b32 v{V_EW}, 0x800, v{V_E}",
        "s_lshl_b32 s40, s64, 1",
        "v_xor_b32 v22, s40, v16",
        "v_lshrrev_b32 v23, 1, v22",
        "v_and_b32 v23, 2, v23",
        "v_lshlrev_b32 v24, 1, v22",
        "v_and_b32 v24, 4, v24",
        "s_lshl_b32 s40, s64, 2",
        "v_add_u32 v25, s40, v17",
        "v_xor_b32 v23, v23, v24",
        "v_xor_b32 v23, v23, v25",
        "v_lshlrev_b32 v23, 4, v23",
        f"v_lshl_add_u32 v{V_R}, v22, 7, v23",
        f"v_add_u32 v{V_R+1}, 0x10000, v{V_R}",
        f"v_add_u32 v{V_R+2}, 0x20000, v{V_R}"])
    for i in range(2, NST):
        P += txt([f"s_cmp_eq_u32 s19, {9-i}", f"s_cselect_b32 s{S_D1+i}, -8, 1", f"s_cselect_b32 s{S_D9+i}, -72, 9"])
    P += txt(["s_add_u32 s14, s19, s64"])
    for e in range(9):
        r = S_P2 + e
        if e == 4:
            P += txt(["s_add_u32 s15, s19, 8", "s_sub_u32 s40, s19, 1", "s_min_u32 s15, s15, s40", "s_lshl_b32 s15, s15, 7",
                      "s_lshl_b32 s40, s19, 7", "s_add_u32 s40, s40, 18432", "s_cmp_eq_u32 s64, 0", f"s_cselect_b32 s{S_OS}, s15, s40"])
            continue
        c = 2 * e if e < 4 else 2 * e - 9
        P += txt([f"s_add_u32 s15, s14, {c}", f"s_sub_u32 s40, s15, 9", "s_min_u32 s15, s15, s40"])
        if e < 4: P += txt([f"s_lshl_b32 s{r}, s15, 7"])
        else: P += txt(["s_lshl_b32 s15, s15, 7", f"s_add_u32 s{r}, s15, 18432"])
    P += txt([f"s_mov_b32 s{S_P2+4}, s{S_OS}"])
    if pro:
        P += szadr(1) + szadr(2)
        P += (X0 if x0pos == 0 else []) + [advW(1), advX(1)]
    P += prep(0, F(8, 0))
    P += rdSZ(0) + rdSZ(1)
    if not pro: P.append(advW(2))
    first = True
    lastW = None
    for jj in range(4):
        fm, cv = deq(0, jj)
        if pro:
            w1 = [ldW(1, 2 * jj), ldW(1, 2 * jj + 1)]
            P += fm[:1]
            if first and stamps: P += [S(stamp_text())]
            P += fm[1:5] + w1 + fm[5:] + cv
            lastW = w1[-1]
        else:
            P += fm
            if first and stamps: P += [S(stamp_text())]
            P += cv + [ldW(2, 2 * jj), ldW(2, 2 * jj + 1)]
            lastW = P[-1]
        first = False
    if pro:
        P += [ldX(1, e) for e in range(R // 2)] + ldSZ(1) + ldSZ(2)
    lastX = [o for o in P if o.tag == ("X", 1, R // 2 - 1)][0]
    fixed(P, "prologue")

    ops = []
    gB1 = {}; start = {}; flex = {}
    g = Gap(free="open", bar=True, name="B0"); gB1[0] = len(G); G.append(g)
    if stamps: g.stamp = True
    firstuse = {}; lastuse = {}; lastM = {}
    for s in range(NST):
        start[s] = len(G)
        for t in range(R):
            f = s * R + t
            for u in range(4):
                gp = Gap(mfma("a", acc1(t, u), f, F(s, u), s == 0), name=f"s{s}t{t}u{u}")
                gp.fragwait = (u == 3)
                if u == 0: firstuse[f] = len(G)
                lastuse[f] = len(G)
                lastM[("a", t, u)] = len(G)
                G.append(gp)
        if stamps and s in (4, 8): G[start[s]].stamp = True
        if s < NST - 1:
            flex[s] = len(G); G.append(Gap(free="flex", name=f"flex{s}"))
            gB1[s + 1] = flex[s] - b1
            G[gB1[s + 1]].bar = True
    st2 = {}; gB2 = {}
    for n in range(NS):
        st2[n] = len(G)
        for k in range(9):
            f = 9 * R + 9 * n + k
            for u in range(4):
                gp = Gap(mfma("v", acc2(n, u), f, F(k, u), k == 0), name=f"n{n}k{k}u{u}")
                gp.fragwait = (u == 3)
                if u == 0: firstuse[f] = len(G)
                lastuse[f] = len(G)
                lastM[("v", n, u)] = len(G)
                G.append(gp)
        gB2[n] = st2[n] + bpos
        G[gB2[n]].bar = True
    if stamps:
        G[st2[0]].stamp = True; G[st2[NS // 2]].stamp = True
    tail0 = len(G); G.append(Gap(free="open", name="tail0"))
    if stamps: G[tail0].stamp = True
    gB2[NS] = len(G); G.append(Gap(free="open", bar=True, name="tail1"))
    END = len(G) - 1

    NF = 9 * R + 9 * NS
    prevF = None
    for f in range(NF):
        if f < 9 * R:
            s, t = divmod(f, R); addr = ringbuf(s) + t * 2048; gb = gB1[s]
            nextb = gB1.get(s + 1, INF)
        else:
            n, k = divmod(f - 9 * R, 9); addr = slot(n) + k * 2048
            gb = gB1[8] if n == 0 else gB2[n - 1]
            nextb = INF
        o = rdF(f, addr)
        e = max(gb, firstuse[f] - 4 * D)
        if f >= NA: e = max(e, lastuse[f - NA])
        o.dl = min(firstuse[f] - 1, nextb - 3)
        if f < D: e = gb
        o.e = min(e, o.dl)
        assert f < NA or o.e >= lastuse[f - NA], (f, o.e, lastuse[f - NA])
        o.prio = -1000 + f
        if prevF: o.after.append((prevF, 0))
        prevF = o
        ops.append(o)
    tabw = []
    for m, tmp in ((1, F(7, 0)), (2, F(6, 0))):
        pp = prep(m, tmp)
        for k, o in enumerate(pp):
            o.e = start[m - 1] + (4 * R - 24); o.dl = flex[m - 1]; o.prio = o.dl + 0.5
            if k: o.after.append((pp[k - 1], 0))
        tabw.append(pp[-1]); ops += pp
    lastfm = {}
    szr = {}
    for i in range(1, NST):
        chain = []
        wi = 2 if (pro and i == 1) else i + 2
        if wi < NST:
            a = advW(wi); a.after.append((lastW, 0)); chain.append(a)
        cvl = []
        for jj in range(4):
            fm, cv = deq(i, jj)
            chain += fm + cv
            cvl.append(cv[-1])
            lastfm[i] = fm[-1]
            if wi < NST:
                chain += [ldW(wi, 2 * jj), ldW(wi, 2 * jj + 1)]
                lastW = chain[-1]
        prev = None
        for k, o in enumerate(chain):
            o.e = start[i - 1] + (pro - 1 if (pro and i == 1) else 0); o.dl = flex[i - 1]; o.prio = o.dl
            if o.kind == "VM":
                o.after.append((prev, 0)); o.prio = o.dl - 0.5
                if chain[k - 1].kind == "VM": o.after.append((chain[k - 1], 0))
            else:
                if prev: o.after.append((prev, 0))
                prev = o
            if i in szr and o.kind == "V":
                for z in szr[i]: o.after.append((z, 4))
        ops += chain
        if pro and i == 1:
            a = advW(3); a.after.append((lastW, 0)); a.e = start[0]; a.dl = flex[0]; a.prio = a.dl - 0.6
            ops.append(a); prev = a
            for j in range(8):
                o = ldW(3, j); o.e = start[0]; o.dl = flex[0]; o.prio = o.dl - 0.4
                o.after += [(prev, 0), (cvl[j // 2], 0)]; prev = o
                ops.append(o)
            lastW = prev
        if i + 1 < NST:
            z = rdSZ(i + 1)
            for o in z:
                o.e = start[i - 1] + 4; o.dl = flex[i - 1]; o.prio = start[i - 1] + 2 * R
                if i - 1 in lastfm: o.after.append((lastfm[i - 1], 0))
                if i + 1 >= 4: o.after.append((tabw[(i + 1) // 4 - 1], 0))
            szr[i + 1] = z; ops += z
    for s in range(2, NST):
        a = advX(s); a.e = gB1[s - 2] - 2; a.after.append((lastX, 0)); a.prio = -500; a.dl = gB1[s - 1]
        ops.append(a); prev = a
        for e in range(R // 2):
            o = ldX(s, e); o.e = gB1[s - 2]; o.dl = gB1[s - 1] - 1; o.prio = -500; o.after.append((prev, 0)); prev = o
            ops.append(o)
        lastX = prev
    NPAIR = (NS + 1) // 2
    prev = lastX
    for p in range(NPAIR):
        if p:
            a = V(f"v_add_u32 v{V_X2}, 36864, v{V_X2}", [f"v{V_X2}"], [f"v{V_X2}"]); a.after.append((prev, 0)); a.prio = -400
            ops.append(a); prev = a
        ne = 9 if 2 * p + 1 < NS else 5
        for e in range(ne):
            o = ldP(p, e)
            if p == 0: o.e = start[6]
            elif p == 1: o.e = start[7]
            else: o.e = gB2[max(0, 2 * p - 5 if e < 4 else 2 * p - 4)]
            need = 2 * p if e <= 4 else 2 * p + 1
            o.dl = (gB1[8] if need == 0 else gB2[need - 1]) - 1
            o.prio = o.e - 300
            o.after.append((prev, 0)); prev = o
            if e == 0 and p: ops[-1].e = o.e - 2
            ops.append(o)
    units = []
    t1 = 0
    for j in range(NS + 1):
        if j >= 1: units.append(("v", j - 1, j))
        k = nb1 if j == 0 else p1per
        for _ in range(k):
            if t1 < R: units.append(("a", t1, j)); t1 += 1
    assert t1 == R
    rdone = {}; lastcv = {}; lastadd = {}; lastst = {}
    na = 0
    for q, (kp, idx, j) in enumerate(units):
        EB = (q % 6) * 8192
        base = acc1(idx, 0) if kp == "a" else acc2(idx, 0)
        tile = idx if kp == "a" else R + idx
        snd = []
        w2 = (kp == "a") or w2all
        for k in range(0, 8, 2 if w2 else 1):
            u, r = k >> 1, 2 + (k & 1)
            off = EB + (k >> 2) * 4096 + (k & 3) * 256
            ld = ("w", EB + (k >> 2) * 4096, EB + (k >> 2) * 4096 + 4096, False)
            x = base + 4 * u + r
            if w2:
                o = Op("DS", f"ds_write2st64_b32 v{V_EW}, {kp}{x}, {kp}{x+1} offset0:{off//256} offset1:{off//256+1}", rd=[f"v{V_EW}"] + rl(kp, x, 2),
                       lds=ld, cls="AT", grp=("E", q))
            else:
                o = Op("DS", f"ds_write_addtid_b32 {kp}{x} offset:{off}", rd=[f"{kp}{x}"], pre=("m0", f"s_mov_b32 m0, s{S_M0W}"),
                       lds=ld, cls="AT", grp=("E", q))
            o.e = max(lastM[(kp, idx, u)] + 4, gB1[8] if j == 0 else gB2[j - 1])
            o.e = min(o.e, tail0)
            o.dl = gB2[j] - (1 if j == NS else 2); o.prio = o.dl - 100 + (0 if kp == "v" else 1)
            if snd: o.after.append((snd[-1], w2sp if w2 else 0))
            snd.append(o)
        ops += snd
        rv = V_RECV + (q & 1) * 8
        dlf = st2.get(idx + nacc, END + 1) - 1 if kp == "v" else END
        dlf = min(dlf, gB2.get(j + 2, END))
        rcv = []
        for k in range(0, 8, 2):
            o0 = (EB + (k >> 2) * 4096 + (k & 3) * 256) // 256
            o = Op("DS", f"ds_read2st64_b32 {rg('v',rv+k,2)}, v{V_E} offset0:{o0} offset1:{o0+1}", rd=[f"v{V_E}"], wr=rl("v", rv + k, 2),
                   lds=("r", EB + (k >> 2) * 4096, EB + (k >> 2) * 4096 + 4096, False))
            o.e = gB2[j]; o.dl = min(dlf, gB2.get(j + 1, END + 3) - 3); o.prio = gB2[j] + q * 0.01
            if q - 2 in lastcv: o.after.append((lastcv[q - 2], 0))
            rcv.append(o)
        ops += rcv
        kept = []
        if kp == "a":
            kb = V_SZ + (na & 1) * 8
            for u in range(4):
                for r in range(2):
                    o = V(f"v_accvgpr_read_b32 v{kb+2*u+r}, a{base+4*u+r}", [f"a{base+4*u+r}"], [f"v{kb+2*u+r}"])
                    o.e = max(lastM[(kp, idx, u)] + 4, gB2[j] - 12); o.dl = dlf; o.prio = gB2[j] + 2 + q * 0.01
                    if ("a", na - 2) in lastadd: o.after.append((lastadd[("a", na - 2)], 0))
                    kept.append(o)
            ops += kept
        adds = []
        for u in range(4):
            src = V_SZ + (na & 1) * 8 + 2 * u if kp == "a" else base + 4 * u
            if pk:
                lst = [V(f"v_pk_add_f32 {rg('v',rv+2*u,2)}, {rg('v',src,2)}, {rg('v',rv+2*u,2)}", rl("v", src, 2) + rl("v", rv + 2 * u, 2), rl("v", rv + 2 * u, 2))]
            else:
                lst = [V(f"v_add_f32 v{rv+2*u+r}, v{src+r}, v{rv+2*u+r}", [f"v{src+r}", f"v{rv+2*u+r}"], [f"v{rv+2*u+r}"]) for r in range(2)]
            for o in lst:
                o.e = gB2[j]; o.dl = dlf; o.prio = gB2[j] + 4 + q * 0.01
                o.after.append((rcv[u], recvd))
                if kp == "a": o.after += [(kept[2 * u], 0), (kept[2 * u + 1], 0)]
                if adds: o.after.append((adds[-1], 0))
                adds.append(o)
        ops += adds
        if not pk: adds = adds[1::2]
        if kp == "a":
            lastadd[("a", na)] = adds[-1]; na += 1
        ob = V_T + (q & 3) * 4
        prev = None
        for rho in range(2):
            cvs = []
            for h in range(2):
                a, b = rv + 4 * h + rho, rv + 4 * h + 2 + rho
                o = V(f"v_cvt_pk_bf16_f32 v{ob+2*rho+h}, v{a}, v{b}", [f"v{a}", f"v{b}"], [f"v{ob+2*rho+h}"])
                o.e = gB2[j]; o.dl = END; o.prio = gB2[j] + 6 + q * 0.01
                o.after += [(adds[2 * h], 0), (adds[2 * h + 1], 0)]
                if q - 4 in lastst: o.after.append((lastst[q - 4], 1))
                if prev: o.after.append((prev, 0))
                prev = o
                cvs.append(o)
            lastcv[q] = cvs[-1]
            vo = V_O1 if rho else V_O0
            o = Op("VM", f"buffer_store_dwordx2 {rg('v',ob+2*rho,2)}, v{vo}, s[{S_O}:{S_O+3}], s{S_OS} offen {st if mix[q % len(mix)] == '1' else ''}".rstrip(),
                   rd=rl("v", ob + 2 * rho, 2) + [f"v{vo}"], pre=(f"s{S_OS}", f"s_mov_b32 s{S_OS}, {tile*147456}"), cls="ST", tag=("O", tile))
            o.e = gB2[j]; o.dl = END; o.prio = gB2[j] + 7 + q * 0.01
            o.after += [(c, 0) for c in cvs]
            if rho: o.after.append((lastst[q], 0))
            elif q - 1 in lastst: o.after.append((lastst[q - 1], 0))
            lastst[q] = o
            ops += cvs + [o]

    pend = sorted(ops, key=lambda o: (o.prio, o.id))
    cur = {}
    for o in G[0].ops:
        if o.pre: cur[o.pre[0]] = o.pre[1]
    lastvm = -99; lastdma = -99
    for gi, g in enumerate(G):
        if g.free == "fixed": continue
        room = 2
        sc_used = g.fragwait or g.bar
        if g.bar and not g.free: room -= 1
        m0user = None; nat = 0; osuser = None
        while True:
            pick = None
            for o in pend:
                if o.e > gi: continue
                if g.free:
                    if g.free == "flex" and o.dl > gi: continue
                    if any(a.gap is None for a, d in o.after): continue
                    if g.name == "B0" and not (o.tag and o.tag[0] == "F" and o.tag[1] < D) and o.prio > -400: continue
                    pick = o; break
                if any(a.gap is None or a.gap + d > gi for a, d in o.after): continue
                cost = 1
                chg = o.pre and cur.get(o.pre[0]) != o.pre[1]
                if chg and sc_used: cost = 2
                if cost > room: continue
                if o.pre and o.pre[0] == "m0" and m0user is not None and (chg or True) and m0user != o.pre[1]: continue
                if o.pre and o.pre[0] != "m0" and osuser is not None and osuser != o.pre[1]: continue
                urgent = o.dl - gi <= 2
                if o.cls == "AT" and nat >= 1 and not urgent: continue
                if o.kind == "VM" and gi - lastvm < vmsp and not urgent: continue
                if o.cls == "DMA" and gi >= st2[0] and gi - lastdma < dmasp and not urgent: continue
                pick = o; break
            if pick is None: break
            o = pick
            pend.remove(o); o.gap = gi; g.ops.append(o)
            chg = o.pre and cur.get(o.pre[0]) != o.pre[1]
            if o.pre:
                cur[o.pre[0]] = o.pre[1]
                if o.pre[0] == "m0": m0user = o.pre[1]
                else: osuser = o.pre[1]
            if not g.free:
                room -= 1
                if chg:
                    if sc_used: room -= 1
                    sc_used = True
            if o.cls == "AT": nat += 1
            if o.kind == "VM": lastvm = gi
            if o.cls == "DMA": lastdma = gi
            if room <= 0 and not g.free: break
    assert not pend, [(o.text, o.e, o.dl) for o in pend[:10]]
    late = [o for o in ops if o.gap > o.dl]
    assert not late, [(o.text, o.gap, o.dl, G[o.gap].name) for o in late[:10]]

    def dropped(o):
        if "s" in drop and o.cls == "ST": return True
        if "d" in drop and o.tag and o.tag[0] == "P" and o.tag[1] >= 2: return True
        if "x" in drop and (o.cls == "AT" or o.text.startswith("ds_read2st64")): return True
        if "v" in drop and o.kind == "V" and o.gap >= st2[0]: return True
        if "f" in drop and o.tag and o.tag[0] == "F" and o.gap >= st2[0]: return True
        if "W" in drop and o.tag and o.tag[0] == "W" and o.tag[1] >= 3: return True
        if "X" in drop and o.tag and o.tag[0] == "X" and o.tag[1] >= 3: return True
        if "q" in drop and o.kind == "V" and start[0] <= o.gap < st2[0]: return True
        return False
    for gi, g in enumerate(G):
        g.ops = [o for o in g.ops if not dropped(o)]
        if "b" in drop and gi >= st2[0] and g.mfma: g.bar = False
        if "B" in drop and gi < st2[0] and g.mfma: g.bar = False
    Lz = []
    cur = {}
    for gi, g in enumerate(G):
        if g.label: Lz.append(Op("L", g.label))
        if g.mfma: Lz.append(g.mfma)
        if g.stamp: Lz.append(S(stamp_text()))
        if g.free:
            if g.bar: Lz.append(Op("B", "s_barrier"))
            for o in g.ops:
                if o.pre and cur.get(o.pre[0]) != o.pre[1]:
                    cur[o.pre[0]] = o.pre[1]; Lz.append(Op("S", o.pre[1], wr=[o.pre[0]]))
                Lz.append(o)
        else:
            lst = g.ops
            if len(lst) == 2 and lst[0].pre and lst[0].pre[0] == "m0" and not lst[1].pre and not any(a is lst[0] for a, d in lst[1].after) \
               and not (lst[0].kind == lst[1].kind) and not (set(lst[0].rd) & set(lst[1].wr)):
                lst = [lst[1], lst[0]]
            for o in lst:
                if o.pre and cur.get(o.pre[0]) != o.pre[1]:
                    cur[o.pre[0]] = o.pre[1]; Lz.append(Op("S", o.pre[1], wr=[o.pre[0]]))
            wm = Op("WM", ""); wm.look = list(lst) + ([G[gi + 1].mfma] if gi + 1 < len(G) and G[gi + 1].mfma else [])
            Lz.append(wm)
            if g.bar:
                b = Op("B", "s_barrier"); Lz.append(b); wm.look.append(b)
            for spec in (wb.split(",") if wb else []):
                stp, who = spec.split(":")
                if gi == gB2.get(int(stp)) + 1:
                    lab = f"L_wb{stp}"
                    if who == "8":
                        Lz.append(S("s_lshl_b32 s15, s3, 8")); Lz.append(S("s_add_u32 s15, s15, s2")); Lz.append(S("s_cmp_lt_u32 s15, 8"))
                    elif who == "a":
                        Lz.append(S("s_cmp_eq_u32 s3, 0"))
                    Lz.append(S(f"s_cbranch_scc0 {lab}"))
                    Lz.append(S("buffer_wbl2 sc1"))
                    Lz.append(Op("L", lab + ":"))
            Lz += lst
    acc = [(k, o) for k, o in enumerate(Lz) if o.lds]
    bars = [k for k, o in enumerate(Lz) if o.kind == "B"]
    import bisect
    for y in range(len(acc)):
        ky, oy = acc[y]
        bi = bisect.bisect_left(bars, ky) - 1
        for x in range(y):
            kx, ox = acc[x]
            if ox.lds[0] == "r" and oy.lds[0] == "r": continue
            if ox.lds[0] == "w" and oy.lds[0] == "w": continue
            if ox.lds[3] and oy.lds[3]: continue
            if ox.lds[2] <= oy.lds[1] or oy.lds[2] <= ox.lds[1]: continue
            if drop and not (bi >= 0 and bars[bi] > kx): continue
            assert bi >= 0 and bars[bi] > kx, ("LDS race", ox.text, G[ox.gap].name, oy.text, G[oy.gap].name)
            Lz[bars[bi]].needs.append(ox)
    issued = {"VM": 0, "DS": 0}; done = {"VM": -1, "DS": -1}; CAP = {"VM": 63, "DS": 15}
    pendreg = {}
    out = []
    inl = 0
    def needs_of(o):
        n = {"VM": -1, "DS": -1}
        for r in o.rd + o.wr:
            if r in pendreg:
                q, i = pendreg[r]; n[q] = max(n[q], i)
        for x in o.needs:
            if hasattr(x, "qi"): n[x.kind] = max(n[x.kind], x.qi)
        return n
    def dowait(n):
        w = []
        for q, nm in (("VM", "vmcnt"), ("DS", "lgkmcnt")):
            if n[q] > done[q]:
                c = min(issued[q] - 1 - n[q], CAP[q])
                done[q] = issued[q] - 1 - c
                w.append(f"{nm}({c})")
        if w: out.append(Op("S", "s_waitcnt " + " ".join(w)))
        return bool(w)
    for o in Lz:
        if o.kind == "WM":
            n = {"VM": -1, "DS": -1}
            for x in o.look:
                m = needs_of(x)
                for q in n: n[q] = max(n[q], m[q])
            dowait(n); continue
        if dowait(needs_of(o)): inl += 1
        if o.kind in ("VM", "DS"):
            o.qi = issued[o.kind]; issued[o.kind] += 1
            for r in o.wr: pendreg[r] = (o.kind, o.qi)
        out.append(o)
    fin = []
    t = 0
    wV = {}; wM = {}; wS = {}
    nops = 0
    for o in out:
        need = 0
        if o.kind == "M":
            for r in o.rd: need = max(need, wV.get(r, -99) + 3 - t)
        elif o.kind in ("V", "DS", "VM"):
            for r in o.rd + o.wr: need = max(need, wM.get(r, -99) + 10 - t)
            if o.pre and o.pre[0] == "m0": need = max(need, wS.get("m0", -99) + 2 - t)
        if need > 0:
            fin.append(Op("S", f"s_nop {need-1}")); t += need; nops += 1
        if o.kind == "V":
            for r in o.wr: wV[r] = t
        elif o.kind == "M":
            for r in o.wr: wM[r] = t
        elif o.kind == "S":
            for r in o.wr: wS[r] = t
        fin.append(o)
        t += 2 if o.kind == "M" else 1
    if verbose:
        print("inline waits", inl, "nops", nops, "instr", len(fin), file=sys.stderr)
        for gi, g in enumerate(G):
            if g.free: print(gi, g.name, len(g.ops), file=sys.stderr)

    L = []
    A = L.append
    A("; @launch grid=(252,1,1) block=(256,1,1) lds=163840")
    A('.amdgcn_target "amdgcn-amd-amdhsa--gfx950"')
    A(".text"); A(f".globl {NAME}"); A(".p2align 8"); A(f".type {NAME},@function"); A(f"{NAME}:")
    for o in fin: A(o.text if o.kind == "L" else "  " + o.text)
    if stamps:
        A("  " + stamp_text()); A("  s_waitcnt vmcnt(0)"); A("  " + stamp_text()); A("  " + stamp_text(True))
        n = nst[0]
        if probe:
            C, Kf, idx, wg = map(int, probe.split(","))
            for x in ["s_waitcnt lgkmcnt(0)", "s_cmp_lg_u32 s3, 0", "s_cbranch_scc1 L_end"]: A("  " + x)
            if wg >= 0:
                A(f"  s_cmp_lg_u32 s2, {wg}"); A("  s_cbranch_scc1 L_end")
            rt = idx == 12
            b0 = STREGS[0 if rt else 1]
            for x in [f"s_sub_u32 s18, s{STREGS[idx]}, s{b0}", f"s_mul_i32 s18, s18, {Kf}", f"s_add_u32 s18, s18, {C}",
                      f"s_min_u32 s18, s18, {20000 if rt else 400000}"]: A("  " + x)
            A("L_spin:")
            for x in ["s_memrealtime s[20:21]" if rt else "s_memtime s[20:21]", "s_waitcnt lgkmcnt(0)", f"s_sub_u32 s19, s20, s{b0}", "s_cmp_lt_u32 s19, s18",
                      "s_cbranch_scc1 L_spin", "s_endpgm"]: A("  " + x)
        if dbg:
            for x in ["s_waitcnt lgkmcnt(0)", "s_cmp_lg_u32 s3, 0", "s_cbranch_scc1 L_end",
                      "s_lshr_b32 s18, s2, 6", "s_mul_i32 s19, s18, 65", "s_cmp_lg_u32 s19, s2", "s_cbranch_scc1 L_end",
                      "s_mov_b32 s20, s16", "s_and_b32 s21, s17, 0xffff", "s_mov_b32 s22, 256", "s_mov_b32 s23, 0x20000",
                      "s_lshl_b32 s18, s18, 4", "v_mov_b32 v2, s18", "s_mov_b64 exec, 1"]: A("  " + x)
            for j, k in enumerate((4, 5, 7, 11)):
                A(f"  s_sub_u32 s19, s{STREGS[k]}, s{STREGS[1]}"); A(f"  v_mov_b32 v{4+j}, s19")
            A("  buffer_store_dwordx4 v[4:7], v2, s[20:23], 0 offen"); A("  s_waitcnt vmcnt(0)"); A("  s_endpgm")
        for x in ["s_waitcnt lgkmcnt(0)", "s_cmp_lg_u32 s3, 0", "s_cbranch_scc1 L_end",
                  "s_mov_b32 s20, s16", "s_and_b32 s21, s17, 0xffff", "s_mov_b32 s22, 0x100000", "s_mov_b32 s23, 0x20000",
                  f"s_mul_i32 s18, s2, {n*8}", "v_mov_b32 v2, s18", "s_mov_b64 exec, 1"]: A("  " + x)
        for k in range(n):
            for x in [f"v_mov_b32 v4, s{STREGS[k]}", f"v_mov_b32 v5, s{STREGS[k]+1}",
                      f"buffer_store_dwordx2 v[4:5], v2, s[20:23], 0 offen offset:{8*k}", "s_nop 1"]: A("  " + x)
        A("  s_waitcnt vmcnt(0)")
    A("L_end:"); A("  s_endpgm")
    A('.section .rodata,"a"'); A(".p2align 6"); A(f".amdhsa_kernel {NAME}")
    A(f"  .amdhsa_next_free_vgpr {256 + A_FR + NA*4}")
    A("  .amdhsa_next_free_sgpr 102")
    A("  .amdhsa_accum_offset 256")
    A("  .amdhsa_group_segment_fixed_size 0")
    A("  .amdhsa_kernarg_size 56")
    A("  .amdhsa_user_sgpr_count 2")
    A("  .amdhsa_user_sgpr_kernarg_segment_ptr 1")
    A("  .amdhsa_system_sgpr_workgroup_id_x 1")
    A("  .amdhsa_float_denorm_mode_32 3")
    A(".end_amdhsa_kernel")
    return "\n".join(L) + "\n", nst[0]

if __name__ == "__main__":
    ap = argparse.ArgumentParser()
    ap.add_argument("-o", default="k2.s")
    for k, d in dict(R=8, rotA=4, rotB=2, D=3, NA=5, b1=8, bpos=20, nb1=2, vmsp=2, dmasp=4, nacc=3, recvd=5, p1per=1, w2all=0, w2sp=2, pk=0, cpf=0, dbg=0, nt0=0, rotC=0, pro=0, x0pos=0).items():
        ap.add_argument("--" + k, type=int, default=d)
    ap.add_argument("--stamps", action="store_true")
    ap.add_argument("-v", dest="verbose", action="store_true")
    for k in ("st", "lw", "lx", "lx2", "drop", "ta"): ap.add_argument("--" + k, default="")
    ap.add_argument("--tb", default="0000")
    ap.add_argument("--lw0", default="nt")
    ap.add_argument("--mix", default="1")
    ap.add_argument("--probe", default="")
    ap.add_argument("--wb", default="")
    a = vars(ap.parse_args())
    o = a.pop("o")
    s, n = gen(**a)
    open(o, "w").write(s)
    print(o, "lines", s.count("\n"), "stamps", n)
```

```python
import sys, argparse
NAME = "standalone__w4a16_gemm_dequant__prompt_kernel"
INF = 10 ** 9

def rl(p, b, n): return [f"{p}{b+i}" for i in range(n)]
def rg(p, b, n): return f"{p}[{b}:{b+n-1}]" if n > 1 else f"{p}{b}"

class Op:
    cnt = 0
    def __init__(s, kind, text, rd=(), wr=(), pre=None, lds=None, cls=None, e=0, dl=INF, prio=None, after=(), tag=None, grp=None):
        s.kind = kind; s.text = text; s.rd = list(rd); s.wr = list(wr); s.pre = pre; s.lds = lds; s.cls = cls
        s.e = e; s.dl = dl; s.prio = dl if prio is None else prio; s.after = list(after); s.tag = tag; s.grp = grp
        s.gap = None; s.needs = []; s.id = Op.cnt; Op.cnt += 1

class Gap:
    def __init__(s, mfma=None, free=None, bar=False, name=""):
        s.mfma = mfma; s.free = free; s.bar = bar; s.ops = []; s.name = name; s.stamp = False; s.label = None
        s.fragwait = False

def gen(R=8, rotA=4, rotB=2, D=3, NA=5, b1=8, bpos=20, nb1=2, vmsp=2, dmasp=4, stamps=False, st="", lw="", lx="", lx2="",
        nacc=3, skip18=True, verbose=False, recvd=5, p1per=1, w2all=0, w2sp=2, drop='', pk=0, ta='', tb='0000', mix='1', wb='', cpf=0, dbg=0, lw0='nt', nt0=0, probe='', rotC=0, pro=0, x0pos=0, H=0, w0=0, wend=200, wlat=24, nx0=2, p0=6, p1=7, xpre=0, rts=0):
    NT, NST = 19, 9
    NS = NT - R
    assert R % 2 == 0 and 4 <= R <= 10
    RING = 24576
    SLOT0 = 53248
    def ringbuf(s): return RING + (s % 3) * R * 2048
    def slot(n): return SLOT0 + ((n + 2) % 6) * 18432
    assert RING + 3 * R * 2048 <= slot(0)
    S_X, S_W, S_S, S_Z, S_O = 20, 24, 28, 32, 36
    S_WOFS, S_XOFS, S_P2, S_D1, S_D9 = 40, 48, 56, 66, 75
    S_M0X, S_M0W, S_C24, S_MSK, S_OS, S_NTL = 84, 85, 86, 87, 88, 89
    STREGS = [90, 92, 94, 96, 98, 100, 4, 6, 8, 10, 12, 14, 66, 68]
    V_W, V_X, V_X2, V_R, V_O0, V_O1, V_TR, V_TW, V_E, V_S = 2, 3, 4, 5, 8, 9, 10, 11, 12, 13
    V_SZ, V_RAW, V_F, V_T = 16, 32, 96, 240
    V_EW = 0
    def raw(p, j): return V_RAW + p * 32 + j * 4
    def F(i, u): return V_F + (i * 4 + u) * 4
    def acc1(t, u): return (t * 4 + u) * 4
    A_FR = 16 * R
    def fr(f): return A_FR + (f % NA) * 4
    def acc2(n, u): return V_RAW + (n % nacc) * 16 + u * 4
    V_RECV = V_RAW + 48
    nst = [0]
    def stamp_text(real=False):
        r = STREGS[nst[0]]; nst[0] += 1
        return f"s_memrealtime s[{r}:{r+1}]" if (real or rts) else f"s_memtime s[{r}:{r+1}]"

    G = []
    def S(t): return Op("S", t)
    def V(t, rd=(), wr=(), **k): return Op("V", t, rd, wr, **k)
    def fixed(ops, name="", bar=False):
        g = Gap(free="fixed", name=name, bar=bar); g.ops = list(ops)
        for o in g.ops: o.gap = len(G)
        G.append(g); return g
    def txt(lines):
        out = []
        for x in lines:
            out.append(Op("V" if x.startswith("v_") else "S", x))
        return out

    def ldW(i, j):
        r = raw(i & 1, j)
        so = "0" if j == 0 else f"s{S_WOFS+j}"
        return Op("VM", f"buffer_load_dwordx4 {rg('v',r,4)}, v{V_W}, s[{S_W}:{S_W+3}], {so} offen {lw0 if i < nt0 else lw}".rstrip(),
                  rd=[f"v{V_W}"], wr=rl("v", r, 4), cls="VM", tag=("W", i, j))
    def ldSZ(m):
        r = V_T + 4 * m
        return [Op("VM", f"buffer_load_dwordx2 {rg('v',r,2)}, v{V_S+m}, s[{S_S}:{S_S+3}], 0 offen", rd=[f"v{V_S+m}"], wr=rl("v", r, 2), cls="VM"),
                Op("VM", f"buffer_load_dwordx2 {rg('v',r+2,2)}, v{V_S+m}, s[{S_Z}:{S_Z+3}], 0 offen", rd=[f"v{V_S+m}"], wr=rl("v", r + 2, 2), cls="VM")]
    def ldX(s, e):
        so = f"s{S_XOFS+e}" if e else "0"
        b = ringbuf(s)
        return Op("VM", f"buffer_load_dwordx4 v{V_X}, s[{S_X}:{S_X+3}], {so} offen offset:{(e&3)*1024} {lx} lds".rstrip(),
                  rd=[f"v{V_X}"], pre=("m0", f"s_add_u32 m0, s{S_M0X}, {b + (e>>2)*4096}"), lds=("w", b, b + R * 2048, False),
                  cls="DMA", tag=("X", s, e), grp=("X", s))
    def ldP(p, e):
        b = slot(2 * p) + e * 4096
        return Op("VM", f"buffer_load_dwordx4 v{V_X2}, s[{S_X}:{S_X+3}], s{S_P2+e} offen {lx2} lds".rstrip(),
                  rd=[f"v{V_X2}"], pre=("m0", f"s_add_u32 m0, s{S_M0W}, {b}"), lds=("w", b, b + 4096, False),
                  cls="DMA", tag=("P", p, e), grp=("P", p))
    def advW(i): return V(f"v_lshl_add_u32 v{V_W}, s{S_D9+i}, 17, v{V_W}", [f"v{V_W}"], [f"v{V_W}"])
    def advX(i): return V(f"v_lshl_add_u32 v{V_X}, s{S_D1+i}, 7, v{V_X}", [f"v{V_X}"], [f"v{V_X}"])
    def prep(m, t):
        r = V_T + 4 * m
        o = []
        for h in range(2):
            o.append(V(f"v_lshlrev_b32 v{t+2*h}, 16, v{r+h}", [f"v{r+h}"], [f"v{t+2*h}"]))
            o.append(V(f"v_and_b32 v{t+2*h+1}, s{S_MSK}, v{r+h}", [f"v{r+h}"], [f"v{t+2*h+1}"]))
        for h in range(2):
            o.append(V(f"v_lshlrev_b32 v{t+4+2*h}, 16, v{r+2+h}", [f"v{r+2+h}"], [f"v{t+4+2*h}"]))
            o.append(V(f"v_and_b32 v{t+4+2*h+1}, s{S_MSK}, v{r+2+h}", [f"v{r+2+h}"], [f"v{t+4+2*h+1}"]))
        for u in range(4):
            o.append(V(f"v_mul_f32_e64 v{t+4+u}, -v{t+4+u}, v{t+u}", [f"v{t+4+u}", f"v{t+u}"], [f"v{t+4+u}"]))
        for u in range(4):
            o.append(V(f"v_mul_f32 v{t+u}, s{S_C24}, v{t+u}", [f"v{t+u}"], [f"v{t+u}"]))
        o.append(Op("DS", f"ds_write_b128 v{V_TW}, {rg('v',t,4)} offset:{m*2048}", rd=[f"v{V_TW}"] + rl("v", t, 4), lds=("w", 0, 24576, True)))
        o.append(Op("DS", f"ds_write_b128 v{V_TW}, {rg('v',t+4,4)} offset:{m*2048+256}", rd=[f"v{V_TW}"] + rl("v", t + 4, 4), lds=("w", 0, 24576, True)))
        return o
    def rdSZ(i):
        z = V_SZ + (i & 1) * 8
        return [Op("DS", f"ds_read_b128 {rg('v',z,4)}, v{V_TR} offset:{i*512}", rd=[f"v{V_TR}"], wr=rl("v", z, 4), lds=("r", 0, 24576, True)),
                Op("DS", f"ds_read_b128 {rg('v',z+4,4)}, v{V_TR} offset:{i*512+256}", rd=[f"v{V_TR}"], wr=rl("v", z + 4, 4), lds=("r", 0, 24576, True))]
    def deq(i, jj):
        p = i & 1; z = V_SZ + p * 8
        fm = []; cv = []
        for j in (2 * jj, 2 * jj + 1):
            for u in range(4):
                r = raw(p, j) + u
                fm.append(V(f"v_fma_mix_f32 v{r}, v{r}, v{z+u}, v{z+4+u} op_sel_hi:[1,0,0]", [f"v{r}", f"v{z+u}", f"v{z+4+u}"], [f"v{r}"]))
        for u in range(4):
            a, b = raw(p, 2 * jj) + u, raw(p, 2 * jj + 1) + u
            cv.append(V(f"v_cvt_pk_bf16_f32 v{F(i,u)+jj}, v{a}, v{b}", [f"v{a}", f"v{b}"], [f"v{F(i,u)+jj}"]))
        return fm, cv
    def rdF(f, addr):
        w, off = divmod(addr, 65536)
        a = fr(f)
        return Op("DS", f"ds_read_b128 {rg('a',a,4)}, v{V_R+w} offset:{off}", rd=[f"v{V_R+w}"], wr=rl("a", a, 4), lds=("r", addr, addr + 2048, False), tag=("F", f))
    def mfma(dp, d, f, fb, first):
        dd = rg(dp, d, 4)
        return Op("M", f"v_mfma_f32_16x16x32_bf16 {dd}, {rg('a',fr(f),4)}, {rg('v',fb,4)}, {'0' if first else dd}",
                  rd=rl("a", fr(f), 4) + rl("v", fb, 4) + ([] if first else rl(dp, d, 4)), wr=rl(dp, d, 4))

    if ta:
        A_ = sum(int(c) << (4 * i) for i, c in enumerate(ta)); B_ = sum(int(c) << (4 * i) for i, c in enumerate(tb))
        rot = ["s_lshl_b32 s40, s15, 2", f"s_lshr_b32 s40, {A_}, s40", "s_and_b32 s40, s40, 15",
               "s_and_b32 s41, s18, 3", "s_lshl_b32 s41, s41, 2", f"s_lshr_b32 s41, {B_}, s41", "s_and_b32 s41, s41, 15",
               "s_add_u32 s40, s40, s41"]
        if rotC: rot += [f"s_mul_i32 s41, s14, {rotC}", "s_add_u32 s40, s40, s41", "s_mul_i32 s41, s40, 57", "s_lshr_b32 s41, s41, 9",
                         "s_mul_i32 s41, s41, 9", "s_sub_u32 s19, s40, s41"]
        else: rot += ["s_sub_u32 s41, s40, 9", "s_min_u32 s19, s40, s41"]
    else:
        rot = [f"s_mul_i32 s40, s15, {rotA}", f"s_mul_i32 s41, s18, {rotB}", "s_add_u32 s40, s40, s41", "s_mul_i32 s41, s40, 57",
               "s_lshr_b32 s41, s41, 9", "s_mul_i32 s41, s41, 9", "s_sub_u32 s19, s40, s41"]
    P = []
    if stamps: P += [S(stamp_text(True)), S(stamp_text())]
    P += txt([
        "s_cmp_ge_u32 s2, 252",
        "s_cbranch_scc1 L_end",
        "s_load_dwordx8 s[4:11], s[0:1], 0",
        "s_load_dwordx2 s[12:13], s[0:1], 32"])
    if stamps: P += txt([f"s_load_dwordx2 s[16:17], s[0:1], {40 if dbg else 48}"])
    if cpf:
        P += txt(["s_getpc_b64 s[40:41]"]) + [Op("L", "L_pc:")] + txt(["s_and_b32 s41, s41, 0xffff", "s_mov_b32 s42, L_end-L_pc", "s_mov_b32 s43, 0x20000",
                  f"v_lshlrev_b32 v15, {cpf}, v0"])
        P += [Op("VM", "buffer_load_dword v255, v15, s[40:43], 0 offen", rd=["v15"], wr=["v14x"])]
        P += txt(["s_nop 4"])
    P += txt([
        "v_lshrrev_b32 v16, 6, v0",
        "v_and_b32 v1, 63, v0",
        "v_readfirstlane_b32 s3, v16",
        "s_and_b32 s14, s2, 7",
        "s_lshr_b32 s15, s2, 3",
        "s_lshl_b32 s18, s14, 2",
        "s_and_b32 s19, s15, 3",
        "s_add_u32 s18, s18, s19",
        "s_lshr_b32 s19, s15, 2",
        "s_and_b32 s40, s14, 3",
        "s_add_u32 s40, s40, 32",
        "s_and_b32 s41, s14, 4",
        "s_add_u32 s41, s41, s15",
        "s_sub_u32 s41, s41, 28",
        "s_cmp_ge_u32 s15, 28",
        "s_cselect_b32 s18, s40, s18",
        "s_cselect_b32 s15, s41, s19",
        *rot,
        "s_lshr_b32 s64, s3, 1",
        "s_and_b32 s65, s3, 1",
        "s_lshl_b32 s18, s18, 7",
        "s_lshl_b32 s40, s65, 6",
        "s_add_u32 s18, s18, s40",
        "v_and_b32 v16, 15, v1",
        "v_lshrrev_b32 v17, 4, v1",
        f"s_mov_b32 s{S_WOFS+1}, 18432",
        "s_mul_i32 s40, s64, 9216",
        "s_lshl1_add_u32 s40, s18, s40",
        "v_lshl_add_u32 v18, v16, 3, s40",
        "v_add_u32 v19, s19, v17",
        "v_add_u32 v20, -9, v19",
        "v_min_u32 v20, v19, v20",
        f"v_mad_u32_u24 v{V_S}, v20, s{S_WOFS+1}, v18",
        "s_mul_i32 s42, s19, 1179648",
        "s_mul_i32 s43, s64, 589824",
        "s_lshl2_add_u32 s43, s18, s43",
        "s_add_u32 s42, s42, s43",
        f"v_mul_u32_u24 v{V_W}, 147456, v17",
        f"v_lshl_add_u32 v{V_W}, v16, 4, v{V_W}",
        f"v_add_u32 v{V_W}, s42, v{V_W}",
        f"s_mov_b32 s{S_W+2}, {576*4608*4}",
        f"s_mov_b32 s{S_S+2}, {18*4608*2}",
        f"s_mov_b32 s{S_Z+2}, {18*4608*2}",
        f"s_mov_b32 s{S_W+3}, 0x20000",
        f"s_mov_b32 s{S_S+3}, 0x20000",
        f"s_mov_b32 s{S_Z+3}, 0x20000"])
    P += txt([f"s_mov_b32 s{S_WOFS+k}, {k*18432}" for k in range(2, 8)])
    P += txt([
        "s_mul_i32 s14, s15, 18",
        "s_min_u32 s40, s15, 2",
        "s_add_u32 s14, s14, s40",
        "s_cmp_lt_u32 s15, 2",
        f"s_cselect_b32 s{S_NTL}, 19, 18",
        "v_lshrrev_b32 v21, 3, v1",
        "v_lshrrev_b32 v22, 4, v1",
        "v_and_b32 v22, 2, v22",
        "v_lshrrev_b32 v23, 2, v1",
        "v_and_b32 v23, 4, v23",
        "v_and_b32 v24, 7, v1",
        "v_or3_b32 v22, v22, v23, 0",
        "v_xor_b32 v22, v22, v24",
        "v_mul_u32_u24 v21, 1152, v21",
        "v_lshl_add_u32 v21, v22, 4, v21",
        f"s_mul_i32 s40, s3, {(R//2)*9216}",
        "s_lshl_b32 s15, s19, 7",
        "s_add_u32 s40, s40, s15",
        f"v_add_u32 v{V_X}, s40, v21",
        f"s_mul_i32 s{S_M0X}, s3, {(R//2)*1024}",
        f"s_mul_i32 s{S_X+2}, s{S_NTL}, 18432",
        f"s_mov_b32 s{S_X+3}, 0x20000",
        "s_mul_i32 s15, s14, 18432",
        f"s_cmp_eq_u32 s19, 8",
        f"s_cselect_b32 s{S_D1+1}, -8, 1",
        f"s_cselect_b32 s{S_D9+1}, -72, 9"])
    P += txt([f"s_mov_b32 s{S_XOFS+e}, {e*9216-(e&3)*1024}" for e in range(1, R // 2)])
    P += txt([
        "s_waitcnt lgkmcnt(0)",
        f"s_mov_b32 s{S_S}, s8", f"s_and_b32 s{S_S+1}, s9, 0xffff",
        f"s_mov_b32 s{S_Z}, s10", f"s_and_b32 s{S_Z+1}, s11, 0xffff",
        f"s_mov_b32 s{S_W}, s6", f"s_and_b32 s{S_W+1}, s7, 0xffff"])
    szadr = lambda m: txt([f"v_add_u32 v19, 4, v19", "v_add_u32 v20, -9, v19", "v_min_u32 v20, v19, v20",
                           f"v_mad_u32_u24 v{V_S+m}, v20, s{S_WOFS+1}, v18"])
    xsrd = txt([f"s_add_u32 s{S_X}, s4, s15", f"s_addc_u32 s{S_X+1}, s5, 0", f"s_and_b32 s{S_X+1}, s{S_X+1}, 0xffff"])
    P += ldSZ(0)
    X0 = [ldX(0, e) for e in range(R // 2)]
    if H:
        P += [ldW(0, j) for j in range(8)] + [advW(1)] + [ldW(1, j) for j in range(8)] + xsrd
        for m in (1, 2):
            P += szadr(m) + ldSZ(m)
    elif pro and x0pos == 2:
        P += [ldW(0, j) for j in range(4)] + xsrd + X0 + [ldW(0, j) for j in range(4, 8)]
    else:
        P += [ldW(0, j) for j in range(8)]
        P += xsrd
        if pro and x0pos == 1: P += X0
    if not pro and not H:
        P += [ldX(0, e) for e in range(R // 2)]
        P += [advW(1), advX(1)]
        P += [ldW(1, j) for j in range(8)]
        P += [ldX(1, e) for e in range(R // 2)]
        for m in (1, 2):
            P += szadr(m) + ldSZ(m)
    if stamps: P += [S(stamp_text())]
    P += txt([
        "s_mul_i32 s15, s14, 147456",
        f"s_add_u32 s{S_O}, s12, s15", f"s_addc_u32 s{S_O+1}, s13, 0", f"s_and_b32 s{S_O+1}, s{S_O+1}, 0xffff",
        f"s_mul_i32 s{S_O+2}, s{S_NTL}, 147456",
        f"s_mov_b32 s{S_O+3}, 0x20000",
        f"s_mov_b32 s{S_C24}, 0x4b800000", f"s_mov_b32 s{S_MSK}, 0xffff0000",
        f"s_lshl_b32 s{S_M0W}, s3, 10",
        "s_mul_i32 s40, s3, 6144",
        f"v_lshl_add_u32 v{V_TR}, v16, 4, s40",
        f"v_lshl_add_u32 v{V_TW}, v17, 9, v{V_TR}",
        "s_mul_i32 s40, s65, 9216",
        f"s_add_u32 s40, s40, {R*18432}",
        f"v_add_u32 v{V_X2}, s40, v21",
        "s_mul_i32 s40, s64, 18432",
        "s_lshl1_add_u32 s40, s18, s40",
        f"v_mul_u32_u24 v{V_O0}, 36864, v17",
        f"v_lshl_add_u32 v{V_O0}, v16, 3, v{V_O0}",
        f"v_add_u32 v{V_O0}, s40, v{V_O0}",
        f"v_add_u32 v{V_O1}, 9216, v{V_O0}",
        f"s_xor_b32 s40, s{S_M0W}, 2048",
        f"v_lshl_add_u32 v{V_E}, v1, 2, s40",
        f"v_xor_b32 v{V_EW}, 0x800, v{V_E}",
        "s_lshl_b32 s40, s64, 1",
        "v_xor_b32 v22, s40, v16",
        "v_lshrrev_b32 v23, 1, v22",
        "v_and_b32 v23, 2, v23",
        "v_lshlrev_b32 v24, 1, v22",
        "v_and_b32 v24, 4, v24",
        "s_lshl_b32 s40, s64, 2",
        "v_add_u32 v25, s40, v17",
        "v_xor_b32 v23, v23, v24",
        "v_xor_b32 v23, v23, v25",
        "v_lshlrev_b32 v23, 4, v23",
        f"v_lshl_add_u32 v{V_R}, v22, 7, v23",
        f"v_add_u32 v{V_R+1}, 0x10000, v{V_R}",
        f"v_add_u32 v{V_R+2}, 0x20000, v{V_R}"])
    for i in range(2, NST):
        P += txt([f"s_cmp_eq_u32 s19, {9-i}", f"s_cselect_b32 s{S_D1+i}, -8, 1", f"s_cselect_b32 s{S_D9+i}, -72, 9"])
    P += txt(["s_add_u32 s14, s19, s64"])
    for e in range(9):
        r = S_P2 + e
        if e == 4:
            P += txt(["s_add_u32 s15, s19, 8", "s_sub_u32 s40, s19, 1", "s_min_u32 s15, s15, s40", "s_lshl_b32 s15, s15, 7",
                      "s_lshl_b32 s40, s19, 7", "s_add_u32 s40, s40, 18432", "s_cmp_eq_u32 s64, 0", f"s_cselect_b32 s{S_OS}, s15, s40"])
            continue
        c = 2 * e if e < 4 else 2 * e - 9
        P += txt([f"s_add_u32 s15, s14, {c}", f"s_sub_u32 s40, s15, 9", "s_min_u32 s15, s15, s40"])
        if e < 4: P += txt([f"s_lshl_b32 s{r}, s15, 7"])
        else: P += txt(["s_lshl_b32 s15, s15, 7", f"s_add_u32 s{r}, s15, 18432"])
    P += txt([f"s_mov_b32 s{S_P2+4}, s{S_OS}"])
    if pro:
        P += szadr(1) + szadr(2)
        P += (X0 if x0pos == 0 else []) + [advW(1), advX(1)]
    P += prep(0, F(8, 0))
    P += rdSZ(0) + rdSZ(1)
    if not pro and not H: P.append(advW(2))
    first = True
    lastW = None
    cvdone = {}
    if H:
        X1 = [advX(1)] + [ldX(1, e) for e in range(R // 2)]
        for i in range(H):
            if i + 2 < H: P.append(advW(i + 2))
            for jj in range(4):
                fm, cv = deq(i, jj)
                P += fm
                if first and stamps: P += [S(stamp_text())]
                first = False
                P += cv
                cvdone[(i, jj)] = cv[-1]
                if i + 2 < H:
                    P += [ldW(i + 2, 2 * jj), ldW(i + 2, 2 * jj + 1)]
                    lastW = P[-1]
                if i + 2 == H - xpre and jj == 0: P += X0
                if i + 2 == H - xpre and jj == 2: P += X1
            if i == 1: P += prep(1, F(7, 0)) + prep(2, F(6, 0))
            if i + 2 < NST and i + 2 <= H + 1: P += rdSZ(i + 2)
    for jj in range(4 if not H else 0):
        fm, cv = deq(0, jj)
        if pro:
            w1 = [ldW(1, 2 * jj), ldW(1, 2 * jj + 1)]
            P += fm[:1]
            if first and stamps: P += [S(stamp_text())]
            P += fm[1:5] + w1 + fm[5:] + cv
            lastW = w1[-1]
        else:
            P += fm
            if first and stamps: P += [S(stamp_text())]
            P += cv + [ldW(2, 2 * jj), ldW(2, 2 * jj + 1)]
            lastW = P[-1]
        first = False
    if pro:
        P += [ldX(1, e) for e in range(R // 2)] + ldSZ(1) + ldSZ(2)
    lastX = [o for o in P if o.tag == ("X", 1, R // 2 - 1)][0]
    fixed(P, "prologue")

    ops = []
    gB1 = {}; start = {}; flex = {}
    g = Gap(free="open", bar=True, name="B0"); gB1[0] = len(G); G.append(g)
    if stamps: g.stamp = True
    firstuse = {}; lastuse = {}; lastM = {}
    for s in range(NST):
        start[s] = len(G)
        for t in range(R):
            f = s * R + t
            for u in range(4):
                gp = Gap(mfma("a", acc1(t, u), f, F(s, u), s == 0), name=f"s{s}t{t}u{u}")
                gp.fragwait = (u == 3)
                if u == 0: firstuse[f] = len(G)
                lastuse[f] = len(G)
                lastM[("a", t, u)] = len(G)
                G.append(gp)
        if stamps and s in (4, 8): G[start[s]].stamp = True
        if s < NST - 1:
            flex[s] = len(G); G.append(Gap(free="flex", name=f"flex{s}"))
            gB1[s + 1] = flex[s] - b1
            G[gB1[s + 1]].bar = True
    st2 = {}; gB2 = {}
    for n in range(NS):
        st2[n] = len(G)
        for k in range(9):
            f = 9 * R + 9 * n + k
            for u in range(4):
                gp = Gap(mfma("v", acc2(n, u), f, F(k, u), k == 0), name=f"n{n}k{k}u{u}")
                gp.fragwait = (u == 3)
                if u == 0: firstuse[f] = len(G)
                lastuse[f] = len(G)
                lastM[("v", n, u)] = len(G)
                G.append(gp)
        gB2[n] = st2[n] + bpos
        G[gB2[n]].bar = True
    if stamps:
        G[st2[0]].stamp = True; G[st2[NS // 2]].stamp = True
    tail0 = len(G); G.append(Gap(free="open", name="tail0"))
    if stamps: G[tail0].stamp = True
    gB2[NS] = len(G); G.append(Gap(free="open", bar=True, name="tail1"))
    END = len(G) - 1

    NF = 9 * R + 9 * NS
    prevF = None
    for f in range(NF):
        if f < 9 * R:
            s, t = divmod(f, R); addr = ringbuf(s) + t * 2048; gb = gB1[s]
            nextb = gB1.get(s + 1, INF)
        else:
            n, k = divmod(f - 9 * R, 9); addr = slot(n) + k * 2048
            gb = gB1[8] if n == 0 else gB2[n - 1]
            nextb = INF
        o = rdF(f, addr)
        e = max(gb, firstuse[f] - 4 * D)
        if f >= NA: e = max(e, lastuse[f - NA])
        o.dl = min(firstuse[f] - 1, nextb - 3)
        if f < D: e = gb
        o.e = min(e, o.dl)
        assert f < NA or o.e >= lastuse[f - NA], (f, o.e, lastuse[f - NA])
        o.prio = -1000 + f
        if prevF: o.after.append((prevF, 0))
        prevF = o
        ops.append(o)
    tabw = []
    if H:
        g0 = start[0] + w0; g1 = start[0] + wend
        nW = 8 * (NST - H)
        szr = {}
        for i in range(H, NST):
            a = advW(i); a.after.append((lastW, 0)); a.e = g0 + (g1 - g0) * (8 * (i - H)) // nW - 1; a.dl = flex[i - 1]; a.prio = -300
            ops.append(a); prev = a
            wl = []
            for j in range(8):
                o = ldW(i, j); o.e = g0 + (g1 - g0) * (8 * (i - H) + j) // nW; o.dl = flex[i - 1]; o.prio = -300
                o.after += [(prev, 0), (cvdone[(i - 2, j // 2)], 0)]; prev = o
                ops.append(o); wl.append(o)
            lastW = prev
            prev = None
            for jj in range(4):
                fm, cv = deq(i, jj)
                for o in fm + cv:
                    o.e = start[0]; o.dl = flex[i - 1]; o.prio = o.dl
                    o.after.append((wl[2 * jj + 1], wlat))
                    if prev: o.after.append((prev, 0))
                    prev = o
                    for z in szr.get(i, []): o.after.append((z, 4))
                    ops.append(o)
                cvdone[(i, jj)] = cv[-1]
                lf = fm[-1]
            if i + 2 < NST:
                z = rdSZ(i + 2)
                for o in z:
                    o.e = start[0]; o.dl = flex[i + 1]; o.prio = -200; o.after.append((lf, 0))
                szr[i + 2] = z; ops += z
    for m, tmp in (((1, F(7, 0)), (2, F(6, 0))) if not H else ()):
        pp = prep(m, tmp)
        for k, o in enumerate(pp):
            o.e = start[m - 1] + (4 * R - 24); o.dl = flex[m - 1]; o.prio = o.dl + 0.5
            if k: o.after.append((pp[k - 1], 0))
        tabw.append(pp[-1]); ops += pp
    lastfm = {}
    szr = {}
    for i in range(1, NST if not H else 1):
        chain = []
        wi = 2 if (pro and i == 1) else i + 2
        if wi < NST:
            a = advW(wi); a.after.append((lastW, 0)); chain.append(a)
        cvl = []
        for jj in range(4):
            fm, cv = deq(i, jj)
            chain += fm + cv
            cvl.append(cv[-1])
            lastfm[i] = fm[-1]
            if wi < NST:
                chain += [ldW(wi, 2 * jj), ldW(wi, 2 * jj + 1)]
                lastW = chain[-1]
        prev = None
        for k, o in enumerate(chain):
            o.e = start[i - 1] + (pro - 1 if (pro and i == 1) else 0); o.dl = flex[i - 1]; o.prio = o.dl
            if o.kind == "VM":
                o.after.append((prev, 0)); o.prio = o.dl - 0.5
                if chain[k - 1].kind == "VM": o.after.append((chain[k - 1], 0))
            else:
                if prev: o.after.append((prev, 0))
                prev = o
            if i in szr and o.kind == "V":
                for z in szr[i]: o.after.append((z, 4))
        ops += chain
        if pro and i == 1:
            a = advW(3); a.after.append((lastW, 0)); a.e = start[0]; a.dl = flex[0]; a.prio = a.dl - 0.6
            ops.append(a); prev = a
            for j in range(8):
                o = ldW(3, j); o.e = start[0]; o.dl = flex[0]; o.prio = o.dl - 0.4
                o.after += [(prev, 0), (cvl[j // 2], 0)]; prev = o
                ops.append(o)
            lastW = prev
        if i + 1 < NST:
            z = rdSZ(i + 1)
            for o in z:
                o.e = start[i - 1] + 4; o.dl = flex[i - 1]; o.prio = start[i - 1] + 2 * R
                if i - 1 in lastfm: o.after.append((lastfm[i - 1], 0))
                if i + 1 >= 4: o.after.append((tabw[(i + 1) // 4 - 1], 0))
            szr[i + 1] = z; ops += z
    for s in range(2, NST):
        a = advX(s); a.e = gB1[s - 2] - 2; a.after.append((lastX, 0)); a.prio = -500; a.dl = gB1[s - 1]
        ops.append(a); prev = a
        for e in range(R // 2):
            o = ldX(s, e); o.e = gB1[s - 2]; o.dl = gB1[s - 1] - 1; o.prio = -500; o.after.append((prev, 0)); prev = o
            ops.append(o)
        lastX = prev
    NPAIR = (NS + 1) // 2
    prev = lastX
    for p in range(NPAIR):
        if p:
            a = V(f"v_add_u32 v{V_X2}, 36864, v{V_X2}", [f"v{V_X2}"], [f"v{V_X2}"]); a.after.append((prev, 0)); a.prio = -400
            ops.append(a); prev = a
        ne = 9 if 2 * p + 1 < NS else 5
        for e in range(ne):
            o = ldP(p, e)
            if p == 0: o.e = start[p0]
            elif p == 1: o.e = start[p1]
            else: o.e = gB2[max(0, 2 * p - 5 if e < 4 else 2 * p - 4)]
            need = 2 * p if e <= 4 else 2 * p + 1
            o.dl = (gB1[8] if need == 0 else gB2[need - 1]) - 1
            o.prio = o.e - 300
            o.after.append((prev, 0)); prev = o
            if e == 0 and p: ops[-1].e = o.e - 2
            ops.append(o)
    units = []
    t1 = 0
    for j in range(NS + 1):
        if j >= 1: units.append(("v", j - 1, j))
        k = nb1 if j == 0 else p1per
        for _ in range(k):
            if t1 < R: units.append(("a", t1, j)); t1 += 1
    assert t1 == R
    rdone = {}; lastcv = {}; lastadd = {}; lastst = {}
    na = 0
    for q, (kp, idx, j) in enumerate(units):
        EB = (q % 6) * 8192
        base = acc1(idx, 0) if kp == "a" else acc2(idx, 0)
        tile = idx if kp == "a" else R + idx
        snd = []
        w2 = (kp == "a") or w2all
        for k in range(0, 8, 2 if w2 else 1):
            u, r = k >> 1, 2 + (k & 1)
            off = EB + (k >> 2) * 4096 + (k & 3) * 256
            ld = ("w", EB + (k >> 2) * 4096, EB + (k >> 2) * 4096 + 4096, False)
            x = base + 4 * u + r
            if w2:
                o = Op("DS", f"ds_write2st64_b32 v{V_EW}, {kp}{x}, {kp}{x+1} offset0:{off//256} offset1:{off//256+1}", rd=[f"v{V_EW}"] + rl(kp, x, 2),
                       lds=ld, cls="AT", grp=("E", q))
            else:
                o = Op("DS", f"ds_write_addtid_b32 {kp}{x} offset:{off}", rd=[f"{kp}{x}"], pre=("m0", f"s_mov_b32 m0, s{S_M0W}"),
                       lds=ld, cls="AT", grp=("E", q))
            o.e = max(lastM[(kp, idx, u)] + 4, gB1[8] if j == 0 else gB2[j - 1])
            o.e = min(o.e, tail0)
            o.dl = gB2[j] - (1 if j == NS else 2); o.prio = o.dl - 100 + (0 if kp == "v" else 1)
            if snd: o.after.append((snd[-1], w2sp if w2 else 0))
            snd.append(o)
        ops += snd
        rv = V_RECV + (q & 1) * 8
        dlf = st2.get(idx + nacc, END + 1) - 1 if kp == "v" else END
        dlf = min(dlf, gB2.get(j + 2, END))
        rcv = []
        for k in range(0, 8, 2):
            o0 = (EB + (k >> 2) * 4096 + (k & 3) * 256) // 256
            o = Op("DS", f"ds_read2st64_b32 {rg('v',rv+k,2)}, v{V_E} offset0:{o0} offset1:{o0+1}", rd=[f"v{V_E}"], wr=rl("v", rv + k, 2),
                   lds=("r", EB + (k >> 2) * 4096, EB + (k >> 2) * 4096 + 4096, False))
            o.e = gB2[j]; o.dl = min(dlf, gB2.get(j + 1, END + 3) - 3); o.prio = gB2[j] + q * 0.01
            if q - 2 in lastcv: o.after.append((lastcv[q - 2], 0))
            rcv.append(o)
        ops += rcv
        kept = []
        if kp == "a":
            kb = V_SZ + (na & 1) * 8
            for u in range(4):
                for r in range(2):
                    o = V(f"v_accvgpr_read_b32 v{kb+2*u+r}, a{base+4*u+r}", [f"a{base+4*u+r}"], [f"v{kb+2*u+r}"])
                    o.e = max(lastM[(kp, idx, u)] + 4, gB2[j] - 12); o.dl = dlf; o.prio = gB2[j] + 2 + q * 0.01
                    if ("a", na - 2) in lastadd: o.after.append((lastadd[("a", na - 2)], 0))
                    kept.append(o)
            ops += kept
        adds = []
        for u in range(4):
            src = V_SZ + (na & 1) * 8 + 2 * u if kp == "a" else base + 4 * u
            if pk:
                lst = [V(f"v_pk_add_f32 {rg('v',rv+2*u,2)}, {rg('v',src,2)}, {rg('v',rv+2*u,2)}", rl("v", src, 2) + rl("v", rv + 2 * u, 2), rl("v", rv + 2 * u, 2))]
            else:
                lst = [V(f"v_add_f32 v{rv+2*u+r}, v{src+r}, v{rv+2*u+r}", [f"v{src+r}", f"v{rv+2*u+r}"], [f"v{rv+2*u+r}"]) for r in range(2)]
            for o in lst:
                o.e = gB2[j]; o.dl = dlf; o.prio = gB2[j] + 4 + q * 0.01
                o.after.append((rcv[u], recvd))
                if kp == "a": o.after += [(kept[2 * u], 0), (kept[2 * u + 1], 0)]
                if adds: o.after.append((adds[-1], 0))
                adds.append(o)
        ops += adds
        if not pk: adds = adds[1::2]
        if kp == "a":
            lastadd[("a", na)] = adds[-1]; na += 1
        ob = V_T + (q & 3) * 4
        prev = None
        for rho in range(2):
            cvs = []
            for h in range(2):
                a, b = rv + 4 * h + rho, rv + 4 * h + 2 + rho
                o = V(f"v_cvt_pk_bf16_f32 v{ob+2*rho+h}, v{a}, v{b}", [f"v{a}", f"v{b}"], [f"v{ob+2*rho+h}"])
                o.e = gB2[j]; o.dl = END; o.prio = gB2[j] + 6 + q * 0.01
                o.after += [(adds[2 * h], 0), (adds[2 * h + 1], 0)]
                if q - 4 in lastst: o.after.append((lastst[q - 4], 1))
                if prev: o.after.append((prev, 0))
                prev = o
                cvs.append(o)
            lastcv[q] = cvs[-1]
            vo = V_O1 if rho else V_O0
            o = Op("VM", f"buffer_store_dwordx2 {rg('v',ob+2*rho,2)}, v{vo}, s[{S_O}:{S_O+3}], s{S_OS} offen {st if mix[q % len(mix)] == '1' else ''}".rstrip(),
                   rd=rl("v", ob + 2 * rho, 2) + [f"v{vo}"], pre=(f"s{S_OS}", f"s_mov_b32 s{S_OS}, {tile*147456}"), cls="ST", tag=("O", tile))
            o.e = gB2[j]; o.dl = END; o.prio = gB2[j] + 7 + q * 0.01
            o.after += [(c, 0) for c in cvs]
            if rho: o.after.append((lastst[q], 0))
            elif q - 1 in lastst: o.after.append((lastst[q - 1], 0))
            lastst[q] = o
            ops += cvs + [o]

    pend = sorted(ops, key=lambda o: (o.prio, o.id))
    cur = {}
    for o in G[0].ops:
        if o.pre: cur[o.pre[0]] = o.pre[1]
    lastvm = -99; lastdma = -99
    for gi, g in enumerate(G):
        if g.free == "fixed": continue
        room = 2
        sc_used = g.fragwait or g.bar
        if g.bar and not g.free: room -= 1
        m0user = None; nat = 0; osuser = None
        while True:
            pick = None
            for o in pend:
                if o.e > gi: continue
                if g.free:
                    if g.free == "flex" and o.dl > gi: continue
                    if any(a.gap is None for a, d in o.after): continue
                    if g.name == "B0" and not (o.tag and o.tag[0] == "F" and o.tag[1] < D) and o.prio > -400: continue
                    pick = o; break
                if any(a.gap is None or a.gap + d > gi for a, d in o.after): continue
                cost = 1
                chg = o.pre and cur.get(o.pre[0]) != o.pre[1]
                if chg and sc_used: cost = 2
                if cost > room: continue
                if o.pre and o.pre[0] == "m0" and m0user is not None and (chg or True) and m0user != o.pre[1]: continue
                if o.pre and o.pre[0] != "m0" and osuser is not None and osuser != o.pre[1]: continue
                urgent = o.dl - gi <= 2
                if o.cls == "AT" and nat >= 1 and not urgent: continue
                if o.kind == "VM" and gi - lastvm < vmsp and not urgent: continue
                if o.cls == "DMA" and gi >= st2[0] and gi - lastdma < dmasp and not urgent: continue
                pick = o; break
            if pick is None: break
            o = pick
            pend.remove(o); o.gap = gi; g.ops.append(o)
            chg = o.pre and cur.get(o.pre[0]) != o.pre[1]
            if o.pre:
                cur[o.pre[0]] = o.pre[1]
                if o.pre[0] == "m0": m0user = o.pre[1]
                else: osuser = o.pre[1]
            if not g.free:
                room -= 1
                if chg:
                    if sc_used: room -= 1
                    sc_used = True
            if o.cls == "AT": nat += 1
            if o.kind == "VM": lastvm = gi
            if o.cls == "DMA": lastdma = gi
            if room <= 0 and not g.free: break
    assert not pend, [(o.text, o.e, o.dl) for o in pend[:10]]
    late = [o for o in ops if o.gap > o.dl]
    assert not late, [(o.text, o.gap, o.dl, G[o.gap].name) for o in late[:10]]

    def dropped(o):
        if "s" in drop and o.cls == "ST": return True
        if "d" in drop and o.tag and o.tag[0] == "P" and o.tag[1] >= 2: return True
        if "x" in drop and (o.cls == "AT" or o.text.startswith("ds_read2st64")): return True
        if "v" in drop and o.kind == "V" and o.gap >= st2[0]: return True
        if "f" in drop and o.tag and o.tag[0] == "F" and o.gap >= st2[0]: return True
        if "W" in drop and o.tag and o.tag[0] == "W" and o.tag[1] >= 3: return True
        if "X" in drop and o.tag and o.tag[0] == "X" and o.tag[1] >= 3: return True
        if "q" in drop and o.kind == "V" and start[0] <= o.gap < st2[0]: return True
        return False
    for gi, g in enumerate(G):
        g.ops = [o for o in g.ops if not dropped(o)]
        if "b" in drop and gi >= st2[0] and g.mfma: g.bar = False
        if "B" in drop and gi < st2[0] and g.mfma: g.bar = False
    Lz = []
    cur = {}
    for gi, g in enumerate(G):
        if g.label: Lz.append(Op("L", g.label))
        if g.mfma: Lz.append(g.mfma)
        if g.stamp: Lz.append(S(stamp_text()))
        if g.free:
            if g.bar: Lz.append(Op("B", "s_barrier"))
            for o in g.ops:
                if o.pre and cur.get(o.pre[0]) != o.pre[1]:
                    cur[o.pre[0]] = o.pre[1]; Lz.append(Op("S", o.pre[1], wr=[o.pre[0]]))
                Lz.append(o)
        else:
            lst = g.ops
            if len(lst) == 2 and lst[0].pre and lst[0].pre[0] == "m0" and not lst[1].pre and not any(a is lst[0] for a, d in lst[1].after) \
               and not (lst[0].kind == lst[1].kind) and not (set(lst[0].rd) & set(lst[1].wr)):
                lst = [lst[1], lst[0]]
            for o in lst:
                if o.pre and cur.get(o.pre[0]) != o.pre[1]:
                    cur[o.pre[0]] = o.pre[1]; Lz.append(Op("S", o.pre[1], wr=[o.pre[0]]))
            wm = Op("WM", ""); wm.look = list(lst) + ([G[gi + 1].mfma] if gi + 1 < len(G) and G[gi + 1].mfma else [])
            Lz.append(wm)
            if g.bar:
                b = Op("B", "s_barrier"); Lz.append(b); wm.look.append(b)
            for spec in (wb.split(",") if wb else []):
                stp, who = spec.split(":")
                if gi == gB2.get(int(stp)) + 1:
                    lab = f"L_wb{stp}"
                    if who == "8":
                        Lz.append(S("s_lshl_b32 s15, s3, 8")); Lz.append(S("s_add_u32 s15, s15, s2")); Lz.append(S("s_cmp_lt_u32 s15, 8"))
                    elif who == "a":
                        Lz.append(S("s_cmp_eq_u32 s3, 0"))
                    Lz.append(S(f"s_cbranch_scc0 {lab}"))
                    Lz.append(S("buffer_wbl2 sc1"))
                    Lz.append(Op("L", lab + ":"))
            Lz += lst
    acc = [(k, o) for k, o in enumerate(Lz) if o.lds]
    bars = [k for k, o in enumerate(Lz) if o.kind == "B"]
    import bisect
    for y in range(len(acc)):
        ky, oy = acc[y]
        bi = bisect.bisect_left(bars, ky) - 1
        for x in range(y):
            kx, ox = acc[x]
            if ox.lds[0] == "r" and oy.lds[0] == "r": continue
            if ox.lds[0] == "w" and oy.lds[0] == "w": continue
            if ox.lds[3] and oy.lds[3]: continue
            if ox.lds[2] <= oy.lds[1] or oy.lds[2] <= ox.lds[1]: continue
            if drop and not (bi >= 0 and bars[bi] > kx): continue
            assert bi >= 0 and bars[bi] > kx, ("LDS race", ox.text, G[ox.gap].name, oy.text, G[oy.gap].name)
            Lz[bars[bi]].needs.append(ox)
    issued = {"VM": 0, "DS": 0}; done = {"VM": -1, "DS": -1}; CAP = {"VM": 63, "DS": 15}
    pendreg = {}
    out = []
    inl = 0
    def needs_of(o):
        n = {"VM": -1, "DS": -1}
        for r in o.rd + o.wr:
            if r in pendreg:
                q, i = pendreg[r]; n[q] = max(n[q], i)
        for x in o.needs:
            if hasattr(x, "qi"): n[x.kind] = max(n[x.kind], x.qi)
        return n
    def dowait(n):
        w = []
        for q, nm in (("VM", "vmcnt"), ("DS", "lgkmcnt")):
            if n[q] > done[q]:
                c = min(issued[q] - 1 - n[q], CAP[q])
                done[q] = issued[q] - 1 - c
                w.append(f"{nm}({c})")
        if w: out.append(Op("S", "s_waitcnt " + " ".join(w)))
        return bool(w)
    for o in Lz:
        if o.kind == "WM":
            n = {"VM": -1, "DS": -1}
            for x in o.look:
                m = needs_of(x)
                for q in n: n[q] = max(n[q], m[q])
            dowait(n); continue
        if dowait(needs_of(o)): inl += 1
        if o.kind in ("VM", "DS"):
            o.qi = issued[o.kind]; issued[o.kind] += 1
            for r in o.wr: pendreg[r] = (o.kind, o.qi)
        out.append(o)
    fin = []
    t = 0
    wV = {}; wM = {}; wS = {}
    nops = 0
    for o in out:
        need = 0
        if o.kind == "M":
            for r in o.rd: need = max(need, wV.get(r, -99) + 3 - t)
        elif o.kind in ("V", "DS", "VM"):
            for r in o.rd + o.wr: need = max(need, wM.get(r, -99) + 10 - t)
            if o.pre and o.pre[0] == "m0": need = max(need, wS.get("m0", -99) + 2 - t)
        if need > 0:
            fin.append(Op("S", f"s_nop {need-1}")); t += need; nops += 1
        if o.kind == "V":
            for r in o.wr: wV[r] = t
        elif o.kind == "M":
            for r in o.wr: wM[r] = t
        elif o.kind == "S":
            for r in o.wr: wS[r] = t
        fin.append(o)
        t += 2 if o.kind == "M" else 1
    if verbose:
        print("inline waits", inl, "nops", nops, "instr", len(fin), file=sys.stderr)
        for gi, g in enumerate(G):
            if g.free: print(gi, g.name, len(g.ops), file=sys.stderr)

    L = []
    A = L.append
    A("; @launch grid=(252,1,1) block=(256,1,1) lds=163840")
    A('.amdgcn_target "amdgcn-amd-amdhsa--gfx950"')
    A(".text"); A(f".globl {NAME}"); A(".p2align 8"); A(f".type {NAME},@function"); A(f"{NAME}:")
    guard = False
    for o in fin:
        if o.cls == "ST" and o.tag == ("O", NT - 1) and not guard and not stamps:
            guard = True
            A(f"  s_cmp_eq_u32 s{S_NTL}, 18"); A("  s_cbranch_scc1 L_end")
        A(o.text if o.kind == "L" else "  " + o.text)
    if stamps:
        A("  " + stamp_text()); A("  s_waitcnt vmcnt(0)"); A("  " + stamp_text()); A("  " + stamp_text(True))
        n = nst[0]
        if probe:
            C, Kf, idx, wg = map(int, probe.split(","))
            for x in ["s_waitcnt lgkmcnt(0)", "s_cmp_lg_u32 s3, 0", "s_cbranch_scc1 L_end"]: A("  " + x)
            if wg >= 0:
                A(f"  s_cmp_lg_u32 s2, {wg}"); A("  s_cbranch_scc1 L_end")
            rt = idx == 12
            b0 = STREGS[0 if rt else 1]
            for x in [f"s_sub_u32 s18, s{STREGS[idx]}, s{b0}", f"s_mul_i32 s18, s18, {Kf}", f"s_add_u32 s18, s18, {C}",
                      f"s_min_u32 s18, s18, {20000 if rt else 400000}"]: A("  " + x)
            A("L_spin:")
            for x in ["s_memrealtime s[20:21]" if rt else "s_memtime s[20:21]", "s_waitcnt lgkmcnt(0)", f"s_sub_u32 s19, s20, s{b0}", "s_cmp_lt_u32 s19, s18",
                      "s_cbranch_scc1 L_spin", "s_endpgm"]: A("  " + x)
        if dbg:
            for x in ["s_waitcnt lgkmcnt(0)", "s_cmp_lg_u32 s3, 0", "s_cbranch_scc1 L_end",
                      "s_lshr_b32 s18, s2, 6", "s_mul_i32 s19, s18, 65", "s_cmp_lg_u32 s19, s2", "s_cbranch_scc1 L_end",
                      "s_mov_b32 s20, s16", "s_and_b32 s21, s17, 0xffff", "s_mov_b32 s22, 256", "s_mov_b32 s23, 0x20000",
                      "s_lshl_b32 s18, s18, 4", "v_mov_b32 v2, s18", "s_mov_b64 exec, 1"]: A("  " + x)
            for j, k in enumerate((4, 5, 7, 11)):
                A(f"  s_sub_u32 s19, s{STREGS[k]}, s{STREGS[1]}"); A(f"  v_mov_b32 v{4+j}, s19")
            A("  buffer_store_dwordx4 v[4:7], v2, s[20:23], 0 offen"); A("  s_waitcnt vmcnt(0)"); A("  s_endpgm")
        for x in ["s_waitcnt lgkmcnt(0)", "s_cmp_lg_u32 s3, 0", "s_cbranch_scc1 L_end",
                  "s_mov_b32 s20, s16", "s_and_b32 s21, s17, 0xffff", "s_mov_b32 s22, 0x100000", "s_mov_b32 s23, 0x20000",
                  f"s_mul_i32 s18, s2, {n*8}", "v_mov_b32 v2, s18", "s_mov_b64 exec, 1"]: A("  " + x)
        for k in range(n):
            for x in [f"v_mov_b32 v4, s{STREGS[k]}", f"v_mov_b32 v5, s{STREGS[k]+1}",
                      f"buffer_store_dwordx2 v[4:5], v2, s[20:23], 0 offen offset:{8*k}", "s_nop 1"]: A("  " + x)
        A("  s_waitcnt vmcnt(0)")
    A("L_end:"); A("  s_endpgm")
    A('.section .rodata,"a"'); A(".p2align 6"); A(f".amdhsa_kernel {NAME}")
    A(f"  .amdhsa_next_free_vgpr {256 + A_FR + NA*4}")
    A("  .amdhsa_next_free_sgpr 102")
    A("  .amdhsa_accum_offset 256")
    A("  .amdhsa_group_segment_fixed_size 0")
    A("  .amdhsa_kernarg_size 56")
    A("  .amdhsa_user_sgpr_count 2")
    A("  .amdhsa_user_sgpr_kernarg_segment_ptr 1")
    A("  .amdhsa_system_sgpr_workgroup_id_x 1")
    A("  .amdhsa_float_denorm_mode_32 3")
    A(".end_amdhsa_kernel")
    return "\n".join(L) + "\n", nst[0]

if __name__ == "__main__":
    ap = argparse.ArgumentParser()
    ap.add_argument("-o", default="k2.s")
    for k, d in dict(R=8, rotA=4, rotB=2, D=3, NA=5, b1=8, bpos=20, nb1=2, vmsp=2, dmasp=4, nacc=3, recvd=5, p1per=1, w2all=0, w2sp=2, pk=0, cpf=0, dbg=0, nt0=0, rotC=0, pro=0, x0pos=0, H=0, w0=0, wend=200, wlat=24, nx0=2, p0=6, p1=7, xpre=0, rts=0).items():
        ap.add_argument("--" + k, type=int, default=d)
    ap.add_argument("--stamps", action="store_true")
    ap.add_argument("-v", dest="verbose", action="store_true")
    for k in ("st", "lw", "lx", "lx2", "drop", "ta"): ap.add_argument("--" + k, default="")
    ap.add_argument("--tb", default="0000")
    ap.add_argument("--lw0", default="nt")
    ap.add_argument("--mix", default="1")
    ap.add_argument("--probe", default="")
    ap.add_argument("--wb", default="")
    a = vars(ap.parse_args())
    o = a.pop("o")
    s, n = gen(**a)
    open(o, "w").write(s)
    print(o, "lines", s.count("\n"), "stamps", n)
```

```python
import sys, argparse, bisect
NAME = "standalone__w4a16_gemm_dequant__prompt_kernel"
INF = 10 ** 9

def rl(p, b, n): return [f"{p}{b+i}" for i in range(n)]
def rg(p, b, n): return f"{p}[{b}:{b+n-1}]" if n > 1 else f"{p}{b}"

class Op:
    cnt = 0
    def __init__(s, kind, text, rd=(), wr=(), pre=None, lds=None, cls=None, e=0, dl=INF, prio=None, after=(), tag=None):
        s.kind = kind; s.text = text; s.rd = list(rd); s.wr = list(wr); s.pre = pre; s.lds = lds; s.cls = cls
        s.e = e; s.dl = dl; s.prio = dl if prio is None else prio; s.after = list(after); s.tag = tag
        s.gap = None; s.needs = []; s.id = Op.cnt; Op.cnt += 1; s.alt = None

class Gap:
    def __init__(s, mfma=None, free=None, bar=False, name=""):
        s.mfma = mfma; s.free = free; s.bar = bar; s.ops = []; s.name = name; s.stamp = False; s.label = None
        s.fragwait = False

def gen(H=9, Q=0, D=3, NA=6, vmsp=3, dmasp=3, stamps=False, st="", lw="", lx="", verbose=False, drop='', ta='0360360', tb='0000',
        cpf=7, rotC=1, rts=0, xo="", skew=0, wlat=24, bgap=2, fl0=6, dma0=1, ebar=12, bstep=1, xlead=0, probe='', order="B", dbg='', stsp=0, QF=0, mlag='22234567', x2='8:9', g2=8, xl=2, dsp='', fq='', sst=0, pp=0, xpre='', xpost='', bpos=1, mrat=2, xsl='', m0='556677889', m1='556677999', exw=1, bsl=7, szs=5, w2=0):
    NST = 9; NS = 9
    EXB = 0; TAB = 32768
    PS = [16384, 53248, 90112, 126976]
    if QF: Q = QF; assert H == 9 and Q <= 2
    TS = 4608 if QF else 6144
    def ps(n): return ([2, 3, 1, 0] if QF else [2, 3, 0, 1])[n % 4]
    S_X, S_W, S_S, S_Z, S_O = 20, 24, 28, 32, 36
    S_WOFS, S_XK, S_D9 = 40, 48, 57
    S_M0, S_C24, S_MSK, S_OS, S_NTL, S_MH = 66, 67, 68, 69, 70, 71
    STREGS = [72, 74, 76, 78, 80, 82, 84, 86, 88, 90, 92, 94, 96, 98]
    V_W, V_X, V_O, V_TR, V_TW, V_EW, V_ER, V_S, V_OH = 2, 3, 4, 5, 6, 7, 8, 9, 0
    V_R = 12
    V_SZ, V_RAW, V_F, V_T = 16, 32, 96, 240
    def raw(p, j): return V_RAW + p * 32 + j * 4
    def F(i, u): return V_F + (i * 4 + u) * 4
    def AF(i, u): return (i * 4 + u) * 4
    A_ACC = 144; A_FR = 144 + 16 * Q
    def fr(f): return A_FR + (f % NA) * 4
    def acc(n): return ("a", A_ACC + 16 * n) if n < Q else ("v", V_RAW + (n % 3) * 16)
    V_OUT = V_RAW + 48
    nst = [0]
    def stamp_text(real=False):
        r = STREGS[nst[0]]; nst[0] += 1
        return f"s_memrealtime s[{r}:{r+1}]" if (real or rts) else f"s_memtime s[{r}:{r+1}]"

    G = []
    def S(t): return Op("S", t)
    def V(t, rd=(), wr=(), **k): return Op("V", t, rd, wr, **k)
    def BAR(): return Op("B", "s_barrier")
    def txt(lines): return [Op("V" if x.startswith("v_") else "S", x) for x in lines]

    def ldW(i, j):
        r = raw(i & 1, j)
        so = "0" if j == 0 else f"s{S_WOFS+j}"
        return Op("VM", f"buffer_load_dwordx4 {rg('v',r,4)}, v{V_W}, s[{S_W}:{S_W+3}], {so} offen {lw}".rstrip(),
                  rd=[f"v{V_W}"], wr=rl("v", r, 4), cls="VM", tag=("W", i, j))
    def ldSZ(m):
        r = V_T + 4 * m
        return [Op("VM", f"buffer_load_dwordx2 {rg('v',r,2)}, v{V_S+m}, s[{S_S}:{S_S+3}], 0 offen", rd=[f"v{V_S+m}"], wr=rl("v", r, 2), cls="VM"),
                Op("VM", f"buffer_load_dwordx2 {rg('v',r+2,2)}, v{V_S+m}, s[{S_Z}:{S_Z+3}], 0 offen", rd=[f"v{V_S+m}"], wr=rl("v", r + 2, 2), cls="VM")]
    V_X1 = 1; V_X2 = 252
    def ldX(p, i):
        b = PS[ps(p)] + i * 2048
        vx = V_X1 if p == 1 else (V_X2 if (p == 2 and QF == 2) else V_X)
        lds = [("w", b, b + 2048, False), ("w", b + 18432, b + 18432 + 2048, False)]
        return Op("VM", f"buffer_load_dwordx4 v{vx}, s[{S_X}:{S_X+3}], s{S_XK+i} offen {lx} lds".rstrip().replace("  ", " "),
                  rd=[f"v{vx}"], pre=("m0", f"s_add_u32 m0, s{S_M0}, {b}"), lds=lds, cls="DMA", tag=("X", p, i))
    def advW(i): return V(f"v_lshl_add_u32 v{V_W}, s{S_D9+i}, 17, v{V_W}", [f"v{V_W}"], [f"v{V_W}"])
    tabl = lambda k: [(k, TAB, TAB + 4 * TS, True)]
    def prep(m, t):
        r = V_T + 4 * m
        o = []
        for h in range(2):
            o.append(V(f"v_lshlrev_b32 v{t+2*h}, 16, v{r+h}", [f"v{r+h}"], [f"v{t+2*h}"]))
            o.append(V(f"v_and_b32 v{t+2*h+1}, s{S_MSK}, v{r+h}", [f"v{r+h}"], [f"v{t+2*h+1}"]))
        for h in range(2):
            o.append(V(f"v_lshlrev_b32 v{t+4+2*h}, 16, v{r+2+h}", [f"v{r+2+h}"], [f"v{t+4+2*h}"]))
            o.append(V(f"v_and_b32 v{t+4+2*h+1}, s{S_MSK}, v{r+2+h}", [f"v{r+2+h}"], [f"v{t+4+2*h+1}"]))
        for u in range(4):
            o.append(V(f"v_mul_f32_e64 v{t+4+u}, -v{t+4+u}, v{t+u}", [f"v{t+4+u}", f"v{t+u}"], [f"v{t+4+u}"]))
        for u in range(4):
            o.append(V(f"v_mul_f32 v{t+u}, s{S_C24}, v{t+u}", [f"v{t+u}"], [f"v{t+u}"]))
        if m == 2 and QF: o.append(S("s_mov_b64 exec, 0xffff"))
        o.append(Op("DS", f"ds_write_b128 v{V_TW}, {rg('v',t,4)} offset:{m*2048}", rd=[f"v{V_TW}"] + rl("v", t, 4), lds=tabl("w")))
        o.append(Op("DS", f"ds_write_b128 v{V_TW}, {rg('v',t+4,4)} offset:{m*2048+256}", rd=[f"v{V_TW}"] + rl("v", t + 4, 4), lds=tabl("w")))
        if m == 2 and QF: o.append(S("s_mov_b64 exec, -1"))
        return o
    def rdSZ(i):
        z = V_SZ + (i & 1) * 8
        return [Op("DS", f"ds_read_b128 {rg('v',z,4)}, v{V_TR} offset:{i*512}", rd=[f"v{V_TR}"], wr=rl("v", z, 4), lds=tabl("r")),
                Op("DS", f"ds_read_b128 {rg('v',z+4,4)}, v{V_TR} offset:{i*512+256}", rd=[f"v{V_TR}"], wr=rl("v", z + 4, 4), lds=tabl("r"))]
    def deq(i, jj):
        p = i & 1; z = V_SZ + p * 8
        fm = []; cv = []
        for j in (2 * jj, 2 * jj + 1):
            for u in range(4):
                r = raw(p, j) + u
                fm.append(V(f"v_fma_mix_f32 v{r}, v{r}, v{z+u}, v{z+4+u} op_sel_hi:[1,0,0]", [f"v{r}", f"v{z+u}", f"v{z+4+u}"], [f"v{r}"]))
        for u in range(4):
            a, b = raw(p, 2 * jj) + u, raw(p, 2 * jj + 1) + u
            cv.append(V(f"v_cvt_pk_bf16_f32 v{F(i,u)+jj}, v{a}, v{b}", [f"v{a}", f"v{b}"], [f"v{F(i,u)+jj}"]))
        return fm, cv
    def exW(i):
        b = EXB + (i & 1) * 16384
        return [Op("DS", f"ds_write_b128 v{V_EW}, {rg('v',F(i,u),4)} offset:{b+u*1024}", rd=[f"v{V_EW}"] + rl("v", F(i, u), 4),
                   lds=[("w", b, b + 16384, False)], cls="AT") for u in range(4)]
    def exR(i):
        b = EXB + (i & 1) * 16384
        return [Op("DS", f"ds_read_b128 {rg('a',AF(i,u),4)}, v{V_ER} offset:{b+u*1024}", rd=[f"v{V_ER}"], wr=rl("a", AF(i, u), 4),
                   lds=[("r", b, b + 16384, False)]) for u in range(4)]
    def rdF(f, n, i, h):
        p = ps(n)
        if n == NS: vr = V_R + h; off = PS[p] - PS[2] + i * 2048
        else: vr = V_R + 2 * (p >> 1) + h; off = (p & 1) * 36864 + i * 2048
        a = fr(f); b = PS[p] + i * 2048
        lds = [("r", b, b + 2048, False), ("r", b + 18432, b + 18432 + 2048, False)]
        return Op("DS", f"ds_read_b128 {rg('a',a,4)}, v{vr} offset:{off}", rd=[f"v{vr}"], wr=rl("a", a, 4), lds=lds, tag=("F", f))
    def mfma(n, u, f, i, h, first, uw=None):
        dp, d = acc(n); d += 4 * u
        dd = rg(dp, d, 4)
        def t(uw):
            w = rg('v', F(i, uw), 4) if h == 0 else rg('a', AF(i, uw), 4)
            x = rg('a', fr(f), 4)
            ab = f"{w}, {x}" if order == "A" else f"{x}, {w}"
            return f"v_mfma_f32_16x16x32_bf16 {dd}, {ab}, {'0' if first else dd}"
        wr_ = (rl("v", F(i, u), 4) if h == 0 else rl("a", AF(i, u), 4))
        o = Op("M", t(u), rd=rl("a", fr(f), 4) + wr_ + ([] if first else rl(dp, d, 4)), wr=rl(dp, d, 4))
        if n == NS: o.alt = t(u + 2)
        return o

    A_ = sum(int(c) << (4 * i) for i, c in enumerate(ta)); B_ = sum(int(c) << (4 * i) for i, c in enumerate(tb))
    rot = ["s_lshl_b32 s40, s15, 2", f"s_lshr_b32 s40, {A_}, s40", "s_and_b32 s40, s40, 15"]
    if B_: rot += ["s_and_b32 s41, s18, 3", "s_lshl_b32 s41, s41, 2", f"s_lshr_b32 s41, {B_}, s41", "s_and_b32 s41, s41, 15", "s_add_u32 s40, s40, s41"]
    if rotC == 1: rot += ["s_add_u32 s40, s40, s14"]
    elif rotC: rot += [f"s_mul_i32 s41, s14, {rotC}", "s_add_u32 s40, s40, s41"]
    if rotC > 1 or (rotC and B_): rot += ["s_mul_i32 s41, s40, 57", "s_lshr_b32 s41, s41, 9", "s_mul_i32 s41, s41, 9", "s_sub_u32 s19, s40, s41"]
    else: rot += ["s_sub_u32 s41, s40, 9", "s_min_u32 s19, s40, s41"]
    P = []
    VQ = 26 if order == "A" else 16
    if stamps: P += [S(stamp_text(True)), S(stamp_text())]
    P += txt(["s_cmp_ge_u32 s2, 252", "s_cbranch_scc1 L_end", "s_load_dwordx8 s[4:11], s[0:1], 0", "s_load_dwordx2 s[12:13], s[0:1], 32"])
    if stamps: P += txt([f"s_load_dwordx2 s[16:17], s[0:1], 48"])
    if cpf:
        P += txt(["s_getpc_b64 s[40:41]"]) + [Op("L", "L_pc:")] + txt(["s_and_b32 s41, s41, 0xffff", "s_mov_b32 s42, L_end-L_pc", "s_mov_b32 s43, 0x20000",
                  f"v_lshlrev_b32 v15, {cpf}, v0"])
        P += [Op("VM", "buffer_load_dword v255, v15, s[40:43], 0 offen", rd=["v15"], wr=["v14x"])]
        P += txt(["s_nop 4"])
    P += txt([
        "v_lshrrev_b32 v16, 6, v0", "v_and_b32 v1, 63, v0", "v_readfirstlane_b32 s3, v16",
        "s_and_b32 s14, s2, 7", "s_lshr_b32 s15, s2, 3", "s_lshl_b32 s18, s14, 2", "s_and_b32 s19, s15, 3", "s_add_u32 s18, s18, s19",
        "s_lshr_b32 s19, s15, 2", "s_and_b32 s40, s14, 3", "s_add_u32 s40, s40, 32", "s_and_b32 s41, s14, 4", "s_add_u32 s41, s41, s15",
        "s_sub_u32 s41, s41, 28", "s_cmp_ge_u32 s15, 28", "s_cselect_b32 s18, s40, s18", "s_cselect_b32 s15, s41, s19",
        *rot,
        f"s_lshr_b32 s{S_MH}, s3, 1", "s_and_b32 s65, s3, 1",
        "s_lshl_b32 s18, s18, 7", "s_lshl_b32 s40, s65, 6", "s_add_u32 s18, s18, s40",
        "v_and_b32 v16, 15, v1", "v_lshrrev_b32 v17, 4, v1",
        *(["v_and_b32 v26, 1, v1", "v_bfe_u32 v27, v1, 2, 2", "v_lshl_or_b32 v26, v27, 1, v26",
        "v_and_b32 v27, 2, v1", "v_lshl_or_b32 v26, v27, 2, v26"] if order == "A" else []),
        f"s_mov_b32 s{S_WOFS+1}, 18432",
        f"s_mul_i32 s40, s{S_MH}, 9216", "s_lshl1_add_u32 s40, s18, s40",
        f"v_lshl_add_u32 v18, v{VQ}, 3, s40",
        "v_add_u32 v19, s19, v17", "v_add_u32 v20, -9, v19", "v_min_u32 v20, v19, v20",
        f"v_mad_u32_u24 v{V_S}, v20, s{S_WOFS+1}, v18",
        "s_mul_i32 s42, s19, 1179648", f"s_mul_i32 s43, s{S_MH}, 589824", "s_lshl2_add_u32 s43, s18, s43", "s_add_u32 s42, s42, s43",
        f"v_mul_u32_u24 v{V_W}, 147456, v17", f"v_lshl_add_u32 v{V_W}, v{VQ}, 4, v{V_W}", f"v_add_u32 v{V_W}, s42, v{V_W}",
        f"s_mov_b32 s{S_W+2}, {576*4608*4}", f"s_mov_b32 s{S_S+2}, {18*4608*2}", f"s_mov_b32 s{S_Z+2}, {18*4608*2}",
        f"s_mov_b32 s{S_W+3}, 0x20000", f"s_mov_b32 s{S_S+3}, 0x20000", f"s_mov_b32 s{S_Z+3}, 0x20000"])
    P += txt([f"s_mov_b32 s{S_WOFS+k}, {k*18432}" for k in range(2, 8)])
    P += txt(["s_cmp_eq_u32 s19, 8", f"s_cselect_b32 s{S_D9+1}, -72, 9",
        "s_waitcnt lgkmcnt(0)",
        f"s_mov_b32 s{S_S}, s8", f"s_and_b32 s{S_S+1}, s9, 0xffff",
        f"s_mov_b32 s{S_Z}, s10", f"s_and_b32 s{S_Z+1}, s11, 0xffff",
        f"s_mov_b32 s{S_W}, s6", f"s_and_b32 s{S_W+1}, s7, 0xffff"])
    szadr = lambda m: txt([f"v_add_u32 v19, 4, v19", "v_add_u32 v20, -9, v19", "v_min_u32 v20, v19, v20",
                           f"v_mad_u32_u24 v{V_S+m}, v20, s{S_WOFS+1}, v18"])
    P += ldSZ(0) + [ldW(0, j) for j in range(8)]
    if stamps and not sst: P += [S(stamp_text())]
    P += [advW(1)] + [ldW(1, j) for j in range(8)]
    for m in (1, 2): P += szadr(m) + ldSZ(m)
    P += txt([
        "s_mul_i32 s14, s15, 18", "s_min_u32 s40, s15, 2", "s_add_u32 s14, s14, s40",
        "s_cmp_lt_u32 s15, 2", f"s_cselect_b32 s{S_NTL}, 19, 18",
        f"s_mul_i32 s15, s14, {0 if 'x' in dbg else 18432}",
        f"s_add_u32 s{S_X}, s4, s15", f"s_addc_u32 s{S_X+1}, s5, 0", f"s_and_b32 s{S_X+1}, s{S_X+1}, 0xffff",
        f"s_mul_i32 s{S_X+2}, s{S_NTL}, 18432", f"s_mov_b32 s{S_X+3}, 0x20000",
        f"s_mul_i32 s15, s14, {0 if 'o' in dbg else 147456}",
        f"s_add_u32 s{S_O}, s12, s15", f"s_addc_u32 s{S_O+1}, s13, 0", f"s_and_b32 s{S_O+1}, s{S_O+1}, 0xffff",
        f"s_mul_i32 s{S_O+2}, s{S_NTL}, 147456", f"s_mov_b32 s{S_O+3}, 0x20000",
        f"s_mov_b32 s{S_C24}, 0x4b800000", f"s_mov_b32 s{S_MSK}, 0xffff0000",
        f"s_mul_i32 s40, s3, {TS}", f"s_add_u32 s40, s40, {TAB}",
        f"v_lshl_add_u32 v{V_TR}, v16, 4, s40", f"v_lshl_add_u32 v{V_TW}, v17, 9, v{V_TR}",
        "s_lshl_b32 s40, s3, 12", f"v_lshl_add_u32 v{V_EW}, v1, 4, s40", f"v_xor_b32 v{V_ER}, 0x2000, v{V_EW}",
        "v_lshrrev_b32 v21, 3, v1", "v_lshrrev_b32 v22, 4, v1", "v_and_b32 v22, 2, v22", "v_lshrrev_b32 v23, 2, v1", "v_and_b32 v23, 4, v23",
        "v_and_b32 v24, 7, v1", "v_or3_b32 v22, v22, v23, 0", "v_xor_b32 v22, v22, v24",
        "v_mul_u32_u24 v21, 1152, v21", "v_lshl_add_u32 v21, v22, 4, v21",
        f"s_mul_i32 s57, s{S_MH}, 18432", "s_mul_i32 s40, s65, 9216", "s_add_u32 s40, s40, s57",
        f"v_add_u32 v{V_X}, s40, v21", f"v_add_u32 v{V_X1}, 36864, v{V_X}", *([f"v_add_u32 v{V_X2}, 73728, v{V_X}"] if QF else []),
        "s_lshl_b32 s40, s65, 10", f"s_add_u32 s{S_M0}, s40, s57",
        f"s_mul_i32 s40, s{S_MH}, 147456", "s_lshl1_add_u32 s40, s18, s40",
        *([f"v_mul_u32_u24 v{V_O}, 9216, v16", f"v_lshl_add_u32 v{V_O}, v17, 4, v{V_O}"] if order == "A" else
          [f"v_mul_u32_u24 v{V_O}, 36864, v17", f"v_lshl_add_u32 v{V_O}, v16, 3, v{V_O}"]), f"v_add_u32 v{V_O}, s40, v{V_O}",
        f"s_mul_i32 s40, s{S_MH}, {4-147456}", f"v_add_u32 v{V_OH}, s40, v{V_O}",
        "v_lshrrev_b32 v23, 1, v16", "v_and_b32 v23, 2, v23", "v_lshlrev_b32 v24, 1, v16", "v_and_b32 v24, 4, v24",
        f"s_lshl_b32 s40, s{S_MH}, 2", "v_add_u32 v25, s40, v17", "v_xor_b32 v23, v23, v24", "v_xor_b32 v23, v23, v25",
        "v_lshlrev_b32 v23, 4, v23", f"v_lshl_add_u32 v23, v16, 7, v23",
        f"s_add_u32 s40, s57, {PS[0]}",
        f"v_add_u32 v{V_R}, s40, v23", f"v_xor_b32 v{V_R+1}, 64, v{V_R}",
        f"v_add_u32 v{V_R+2}, {PS[2]-PS[0]}, v{V_R}", f"v_add_u32 v{V_R+3}, {PS[2]-PS[0]}, v{V_R+1}"])
    for i in range(2, NST):
        P += txt([f"s_cmp_eq_u32 s19, {9-i}", f"s_cselect_b32 s{S_D9+i}, -72, 9"])
    P += txt([f"s_lshl_b32 s{S_XK}, s19, 7"])
    for i in range(1, NST):
        P += txt([f"s_add_u32 s15, s19, {i}", f"s_sub_u32 s40, s15, 9", "s_min_u32 s15, s15, s40", f"s_lshl_b32 s{S_XK+i}, s15, 7"])
    P += prep(0, F(8, 0)) + rdSZ(0) + rdSZ(1)
    xunits = []
    if Q == 2: xunits = [(p, i) for i in range(9) for p in (0, 1)]
    else: xunits = [(p, i) for p in (0, 1) for i in range(9)]
    xafter = {}
    if not xo: xo = "8:18"
    for t in xo.split(","):
        k, n = map(int, t.split(":")); xafter[k] = n
    assert sum(xafter.values()) <= 18
    xq = list(xunits)
    cvdone = {}; first = True; lastVM = None
    def takeX(k):
        r = [ldX(*xq.pop(0)) for _ in range(xafter.get(k, 0))]
        return r
    F0 = 0; seenM = set()
    if QF:
        xq = []; xafter = {}
        x2q = [(Q, i) for i in range(9)]
        x2after = dict(map(int, t.split(":")) for t in x2.split(","))
        def Mblock(k, ex):
            nonlocal F0
            fs = [(n, h) for h in range(2) for n in range(Q)]
            rd = [rdF(F0 + j, n, k, h) for j, (n, h) in enumerate(fs)]
            r = rd[:Q] + ex + rd[Q:]
            for j, (n, h) in enumerate(fs):
                r += [mfma(n, u, F0 + j, k, h, k == 0 and h == 0) for u in range(4)]
            F0 += len(fs)
            if "M" in drop: r = ex
            return r
        if not pp:
            for k in range(xl): P += [ldX(p, k) for p in range(Q)]
    left = [(8, 0), (8, 1)]
    if pp == 2:
        xq = [(p, i) for i in range(9) for p in range(Q)] + [(Q, i) for i in range(9)] if QF else [(p, i) for p in (0, 1) for i in range(9)]
        x2q = []
        NT = 74
        SL = [dict(a=[], v=[], c=[], l=[], x=[], w=[], b=[], r=[], m=[]) for _ in range(NT + 16)]
        for i in range(NST):
            for jj in range(4):
                fm, cv = deq(i, jj)
                if w2 and i >= w2: fm[0].rd = fm[0].rd + fm[4].rd
                SL[8 * i + 2 * jj]["v"] += fm[:4]; SL[8 * i + 2 * jj + 1]["v"] += fm[4:]
                SL[8 * i + 2 * jj + 2]["c"] += cv
                if i + 2 < NST:
                    SL[8 * i + 2 * jj + 2]["l"].append(ldW(i + 2, 2 * jj)); SL[8 * i + 2 * jj + 3]["l"].append(ldW(i + 2, 2 * jj + 1))
            if i + 2 < NST:
                SL[8 * i + 2]["a"].append(advW(i + 2))
                z = rdSZ(i + 2); SL[8 * (i + 1) + szs]["r"].append(z[0]); SL[8 * (i + 1) + szs + 1]["r"].append(z[1])
            for u, o in enumerate(exW(i)): SL[(8 * (i + 1) + exw + u) if i < 8 else 72]["w"].append(o)
            if i < 8:
                SL[8 * (i + 1) + bsl]["b"].append(BAR())
                if stamps and (sst or (QF and i == 4)): SL[8 * (i + 1) + bsl]["b"].append(S(stamp_text()))
                for u, o in enumerate(exR(i)): SL[min(8 * (i + 1) + bsl + 1 + u, 72 if i == 7 else 99)]["r"].append(o)
        SL[8 + 3]["w"] += prep(1, F(7, 0)); SL[8 + 6]["w"] += prep(2, F(6, 0))
        for t in (xsl.split(",") if xsl else []):
            a, b, c = map(int, t.split(":"))
            for k in range(c): SL[a + b * k]["x"].append(None)
        for sl in SL:
            sl["x"] = [ldX(*xq.pop(0)) for _ in sl["x"]]
        if QF:
            left = []
            for stg in range(1, 10):
                kh = sorted([(k, 0) for k in range(9) if int(m0[k]) == stg] + [(k, 1) for k in range(9) if int(m1[k]) == stg],
                            key=lambda t: (t[0] + t[1] * 1.5 if t[0] + t[1] + 1 >= stg else t[0] + t[1] * 0.5))
                if stg == 9: left = kh; break
                if "M" in drop: continue
                fs = [(k, n, h) for (k, h) in kh for n in range(Q)]
                for (k, n, h) in fs: assert stg >= k + 1 + h
                if not fs: continue
                t0 = 8 * stg + bsl + 1 - 8
                rd = [rdF(F0 + j, n, k, h) for j, (k, n, h) in enumerate(fs)]
                SL[t0]["r"] = rd[:2] + SL[t0]["r"]
                M = []
                for j, (k, n, h) in enumerate(fs):
                    g4 = [mfma(n, u, F0 + j, k, h, (n not in seenM)) for u in range(4)]
                    seenM.add(n)
                    if j + 2 < len(fs): g4.insert(1, rd[j + 2])
                    M.append(g4)
                F0 += len(fs)
                for j, g4 in enumerate(M): SL[t0 + 1 + (j * 7) // len(M)]["m"] += g4
        for t, sl in enumerate(SL):
            if t == 0 and stamps and not sst: sl["v"].insert(4, S(stamp_text()))
            T = sl["a"] + sl["v"] + sl["c"] + sl["l"][:1] + sl["r"] + sl["w"] + sl["l"][1:] + sl["x"]
            M = sl["m"]
            c = 0
            while T:
                P.append(T.pop(0)); c += 1
                if c % mrat == 0 and M:
                    P.append(M.pop(0))
                    if M and M[0].kind == "DS": P.append(M.pop(0))
            P += M + sl["b"]
    elif pp:
        assert H == 9
        xq = [(p, i) for i in range(9) for p in range(Q)] + [(Q, i) for i in range(9)] if QF else [(p, i) for p in (0, 1) for i in range(9)]
        x2q = []
        dd = lambda t: dict(map(int, u.split(":")) for u in t.split(",")) if t else {}
        xa, xb = dd(xpre), dd(xpost)
        popx = lambda n: [ldX(*xq.pop(0)) for _ in range(n)]
        for i in range(NST):
            P += popx(xa.get(i, 0))
            if i + 2 < NST: P.append(advW(i + 2))
            grp = []
            for jj in range(4):
                fm, cv = deq(i, jj)
                gq = list(fm)
                if first and stamps and not sst: gq += [S(stamp_text())]
                first = False
                gq += cv
                if i + 2 < NST: gq += [ldW(i + 2, 2 * jj), ldW(i + 2, 2 * jj + 1)]
                grp.append(gq)
            for gq in grp[:bpos]: P += gq
            T = sum(grp[bpos:], [])
            M = []
            if i >= 1:
                P += [BAR()]
                if stamps and (sst or (QF and i == 5)): P += [S(stamp_text())]
                ex = exR(i - 1)
                fs = [(k, n, h) for k in range(8) if QF and int(mlag[k]) == i and "M" not in drop for h in range(2) for n in range(Q)]
                for (k, n, h) in fs: assert k < i
                rd = [rdF(F0 + j, n, k, h) for j, (k, n, h) in enumerate(fs)]
                nl = Q if (fs and fs[0][0] == i - 1) else min(NA, len(fs))
                P += rd[:nl] + ex + rd[nl:NA]
                for j, (k, n, h) in enumerate(fs):
                    M += [mfma(n, u, F0 + j, k, h, k == 0 and h == 0) for u in range(4)]
                    if j + NA < len(fs): M.append(rd[j + NA])
                F0 += len(fs)
            c = 0
            while T:
                P.append(T.pop(0)); c += 1
                if c % mrat == 0 and M:
                    P.append(M.pop(0))
                    if M and M[0].kind == "DS": P.append(M.pop(0))
            P += exW(i)
            P += popx(xb.get(i, 0))
            if i == 1: P += prep(1, F(7, 0)) + prep(2, F(6, 0))
            if i + 2 < NST: P += rdSZ(i + 2)
            P += M
    else: P += takeX(1)
    for i in range(0 if pp else H):
        if QF and i + xl < NST: P += [ldX(p, i + xl) for p in range(Q)]
        if i + 2 < NST: P.append(advW(i + 2))
        for jj in range(4):
            fm, cv = deq(i, jj)
            P += fm
            if first and stamps and not sst: P += [S(stamp_text())]
            first = False
            P += cv
            cvdone[(i, jj)] = cv[-1]
            if i + 2 < NST: P += [ldW(i + 2, 2 * jj), ldW(i + 2, 2 * jj + 1)]
        P += exW(i)
        if i + 2 < NST: P += takeX(i + 2)
        if i == 1: P += prep(1, F(7, 0)) + prep(2, F(6, 0))
        if i + 2 < NST: P += rdSZ(i + 2)
        if QF:
            P += [ldX(*x2q.pop(0)) for _ in range(x2after.get(i + 2, 0))]
            if i < H - 1:
                P += [BAR()]
                if stamps and (i == 4 or sst): P += [S(stamp_text())]
                ex = exR(i)
                for k in range(8):
                    if int(mlag[k]) == i:
                        if k == i: P += Mblock(k, ex); ex = []
                        else: P += Mblock(k, [])
                P += ex
        elif i < H - 1: P += [BAR()] + ([S(stamp_text())] if sst and stamps else []) + exR(i)
    lastVM = [o for o in P if o.kind == "VM"][-1]
    g = Gap(free="fixed", name="prologue"); g.ops = P
    for o in P: o.gap = 0
    G.append(g)

    ops = []
    g = Gap(free="open", bar=True, name="B0"); B0 = len(G); G.append(g)
    if stamps: g.stamp = True
    seq = []
    if QF:
        assert not x2q
        seq = [(n, k, h) for (k, h) in left for n in range(Q)]
    elif Q:
        order1 = []
        for i in range(NST + skew):
            if i < NST: order1.append((i, 0))
            if 0 <= i - skew: order1.append((i - skew, 1))
        for (i, h) in order1:
            for n in range(Q): seq.append((n, i, h))
    for n in range(Q, NS + 1):
        for i in range(NST):
            for h in range(2): seq.append((n, i, h))
    firstuse = {}; lastuse = {}; lastM = {}; st0 = {}; fu = {}
    seen = set(range(QF))
    for f, (n, i, h) in enumerate(seq, F0):
        if n not in st0: st0[n] = len(G)
        nu = 2 if n == NS else 4
        for u in range(nu):
            gp = Gap(mfma(n, u, f, i, h, n not in seen), name=f"n{n}i{i}h{h}u{u}")
            gp.fragwait = (u == nu - 1)
            if u == 0:
                firstuse[f] = len(G); fu.setdefault((i, h), len(G))
            lastuse[f] = len(G); lastM[(n, u)] = len(G)
            G.append(gp)
        seen.add(n)
    HALF = st0[NS]
    tail = len(G); G.append(Gap(free="open", name="tail"))
    END = tail
    bars = [B0]
    gB = {}
    for n in range(max(Q, 1), NS + 1):
        gB[n] = st0[n] - 4 * D - bgap
        if QF and n == Q: gB[n] = st0[n] - g2
        bars.append(gB[n])
    if Q and not QF:
        for i in range(bstep, NST, bstep):
            b = fu[(i, 0)] - 4 * D - bgap
            if b > B0 + 2: bars.append(b)
    bars = sorted(set(bars))
    for b in bars: G[b].bar = True
    def barle(g): return bars[bisect.bisect_right(bars, g) - 1]
    for n in range(0, max(Q, 1)): gB[n] = B0
    if stamps and not sst:
        for n in ((max(Q, 1), 3, 6, NS) if not QF else (Q, 6, NS)): G[st0[n]].stamp = True
    for o in exR(H - 1):
        o.e = B0; o.dl = fu[(H - 1, 1)] - 6; o.prio = o.dl - 50; ops.append(o)
    prevF = None
    newR = []
    for f, (n, i, h) in enumerate(seq, F0):
        o = rdF(f, n, i, h)
        if n == NS: d4 = 2 * (D + 1)
        else: d4 = 4 * D
        e = firstuse[f] - d4
        gb = gB[n] if (n >= Q or QF) else barle(fu[(i, 0)] - 4 * D)
        e = max(e, gb)
        if f - NA >= F0: e = max(e, lastuse[f - NA])
        o.dl = firstuse[f] - 1
        o.e = min(e, o.dl); o.prio = -1000 + f
        if prevF: o.after.append((prevF, 0))
        if n == NS - 2 and i == NST - 1 and h == 1: lastA = o
        if n == NS and not newR:
            for hh in range(2):
                a = V(f"v_xor_b32 v{V_R+hh}, v{V_R+2+hh}, v{V_T}", [f"v{V_R+2+hh}", f"v{V_T}"], [f"v{V_R+hh}"])
                newR.append(a)
        if n == NS: o.after += [(a, 0) for a in newR]
        prevF = o
        ops.append(o)
    for hh, a in enumerate(newR):
        a.text = f"v_subrev_u32 v{V_R+hh}, s57, v{V_R+2+hh}"; a.rd = [f"v{V_R+2+hh}"]
        a.e = st0[NS - 1]; a.dl = gB[NS]; a.prio = 0; a.after.append((lastA, 0)); ops.append(a)
    prev = lastVM
    szr = {}
    stream = []
    for i in range(H, NST):
        wl = None
        if i >= H + 2:
            a = advW(i); a.after.append((prev, 0)); a.e = B0 + 1; a.dl = fu[(i, 0)]; a.prio = -300; ops.append(a); prev = a
            wl = []
            for j in range(8):
                o = ldW(i, j); o.e = B0 + 1; o.dl = fu[(i, 0)]; o.prio = -300
                o.after += [(prev, 0), (cvdone[(i - 2, j // 2)], 0)]; prev = o
                ops.append(o); wl.append(o)
            for o in takeX(i):
                o.e = B0 + 1; o.prio = -300; o.after.append((prev, 0)); prev = o
                p_, i_ = o.tag[1:]
                o.dl = (barle(fu[(i_, 0)] - 4 * D) if p_ < Q else gB[p_]) - 1
                ops.append(o)
        pv = None
        eb = barle(fu[(i, 1)] - ebar)
        for jj in range(4):
            fm, cv = deq(i, jj)
            for o in fm + cv:
                o.e = B0 + 1 + (xlead if i == H else 0); o.dl = min(fu[(i, 0)] - 2, eb - 6); o.prio = o.dl
                if wl: o.after.append((wl[2 * jj + 1], wlat))
                if pv: o.after.append((pv, 0))
                pv = o
                for z in szr.get(i, []): o.after.append((z, 4))
                ops.append(o)
            cvdone[(i, jj)] = cv[-1]; lf = fm[-1]
        ew = exW(i)
        for k, o in enumerate(ew):
            o.e = B0 + 1; o.dl = eb - 1; o.prio = o.dl - 20; o.after.append((pv, 0))
            if k: o.after.append((ew[k - 1], 1))
            o.after.append((exr2[i - 2] if i - 2 >= H else None, 0)) if False else None
        ops += ew
        er = exR(i)
        for o in er:
            o.e = eb; o.dl = fu[(i, 1)] - 4; o.prio = o.dl - 50
        ops += er
        if i + 2 < NST:
            z = rdSZ(i + 2)
            for o in z:
                o.e = B0 + 1; o.dl = fu[(i + 2, 0)]; o.prio = -200; o.after.append((lf, 0))
            szr[i + 2] = z; ops += z
    for (p_, i_) in xq:
        o = ldX(p_, i_); o.e = B0 + 1; o.prio = -300; o.after.append((prev, 0)); prev = o
        o.dl = (barle(fu[(i_, 0)] - 4 * D) if p_ < Q else gB[p_]) - 1
        ops.append(o)
    for p in range((QF + 1) if QF else 2, NS + 1):
        inc = 73728 if p == 2 else 36864
        if QF:
            if p == 3 and QF == 2: inc = 3 * 36864
            eg = B0 if p == Q + 1 else gB[p - 2]
        elif p <= 3:
            eg = B0 if H == NST and p == 2 else None
            if eg is None:
                last = max([B0] + [barle(fu[(i, 1)] - ebar) for i in range(H, NST)])
                later = [b for b in bars if b > last]
                eg = later[0] if (H < NST or p == 3) else last
                eg = max(eg, gB[p - 2])
        else:
            eg = gB[max(p - 2, Q if p - 4 < Q else 0)]
            if p - 4 < Q: eg = gB[Q + 1] if p - 2 <= Q else eg
        a = V(f"v_add_u32 v{V_X}, {inc}, v{V_X}", [f"v{V_X}"], [f"v{V_X}"]); a.after.append((prev, 0)); a.prio = -400; a.e = eg - 2
        ops.append(a); prev = a
        for i in range(9):
            o = ldX(p, i); o.e = eg + dma0; o.dl = gB[p] - 1; o.prio = o.e - 300
            o.after.append((prev, 0)); prev = o
            ops.append(o)
    lastst = None; lastcv = {}
    def flush(n, e0, dl, sched=True):
        kp, base = acc(n)
        ob = V_OUT + obs[n] * 8
        res = []
        src = lambda u, j: base + 4 * u + j
        rds = {}
        if kp == "a":
            for u in range(4):
                for j in range(4):
                    o = V(f"v_accvgpr_read_b32 v{V_SZ+4*u+j}, a{base+4*u+j}", [f"a{base+4*u+j}"], [f"v{V_SZ+4*u+j}"])
                    rds[(u, j)] = o; res.append(o)
            src = lambda u, j: V_SZ + 4 * u + j
        for j in (range(4) if order == "B" else []):
            for k in range(2):
                a, b = src(2 * k, j), src(2 * k + 1, j)
                res.append(V(f"v_cvt_pk_bf16_f32 v{ob+2*j+k}, v{a}, v{b}", [f"v{a}", f"v{b}"], [f"v{ob+2*j+k}"]))
            res.append(Op("VM", f"buffer_store_dwordx2 {rg('v',ob+2*j,2)}, v{V_O}, s[{S_O}:{S_O+3}], s{S_OS} offen {st}".rstrip(),
                    rd=rl("v", ob + 2 * j, 2) + [f"v{V_O}"], pre=(f"s{S_OS}", f"s_mov_b32 s{S_OS}, {n*294912+j*9216}"), cls="ST", tag=("O", n)))
        for h in (range(2) if order == "A" else []):
            cvs = []
            for k in range(4):
                j = 2 * h + (k >> 1); u = 2 * (k & 1)
                a, b = src(u, j), src(u + 1, j)
                o = V(f"v_cvt_pk_bf16_f32 v{ob+4*h+k}, v{a}, v{b}", [f"v{a}", f"v{b}"], [f"v{ob+4*h+k}"])
                cvs.append(o)
            s_ = Op("VM", f"buffer_store_dwordx4 {rg('v',ob+4*h,4)}, v{V_O}, s[{S_O}:{S_O+3}], s{S_OS} offen offset:{64*h} {st}".rstrip(),
                    rd=rl("v", ob + 4 * h, 4) + [f"v{V_O}"], pre=(f"s{S_OS}", f"s_mov_b32 s{S_OS}, {n*294912}"), cls="ST", tag=("O", n))
            res += cvs + [s_]
        for k, o in enumerate(res):
            o.e = e0; o.dl = dl; o.prio = e0 + k * 0.01
            if k: o.after.append((res[k - 1], 0))
        return res
    pf = None
    forder = list(range(NS))
    fqs = [int(t) for t in fq.split(",")] if fq else []
    for n, stp in enumerate(fqs):
        forder.remove(n); forder.insert(forder.index(stp - 1) + 1, n)
    obs = {n: k & 1 for k, n in enumerate(forder)}; obs[NS] = NS & 1
    assert obs[NS - 1] != obs[NS]
    for n in forder:
        e0 = lastM[(n, 3)] + fl0
        if n < len(fqs): e0 = st0[fqs[n]] + fl0
        elif n < Q: e0 += n * 20
        nx = n + 3 if n >= Q else INF
        dl = (st0[nx] - 1) if nx in st0 else END
        if n == NS - 1: e0 = HALF + fl0
        else: dl = min(dl, HALF - 1)
        fl = flush(n, e0, dl)
        if pf: fl[0].after.append((pf[-1], 2))
        pf = fl
        ops += fl
    kp, base = acc(NS)
    ob = V_OUT + (NS & 1) * 8
    res = []
    for j in range(4):
        res.append(V(f"v_cvt_pk_bf16_f32 v{ob+j}, v{base+j}, v{base+4+j}", [f"v{base+j}", f"v{base+4+j}"], [f"v{ob+j}"]))
    for j in range(4):
        of = 64 * (j >> 1) + 8 * (j & 1) if order == "A" else 0
        so = NS * 294912 + (0 if order == "A" else j * 9216)
        res.append(Op("VM", f"buffer_store_dword v{ob+j}, v{V_OH}, s[{S_O}:{S_O+3}], s{S_OS} offen offset:{of} {st}".rstrip(),
                      rd=[f"v{ob+j}", f"v{V_OH}"], pre=(f"s{S_OS}", f"s_mov_b32 s{S_OS}, {so}"), cls="ST", tag=("O", NS)))
    for k, o in enumerate(res):
        o.e = tail; o.dl = END; o.prio = tail + k * 0.01; o.after.append(((res[k - 1] if k else pf[-1]), 0))
    ops += res
    tailA = flush(NS - 1, 0, 0)

    pend = sorted(ops, key=lambda o: (o.prio, o.id))
    cur = {}
    for o in G[0].ops:
        if o.pre: cur[o.pre[0]] = o.pre[1]
    lastvm = -99; lastdma = -99; lastst = -99
    dspm = dict(map(int, t.split(':')) for t in dsp.split(',')) if dsp else {}
    for gi, g in enumerate(G):
        if g.free == "fixed": continue
        room = 2
        sc_used = g.fragwait or g.bar
        if g.bar and not g.free: room -= 1
        m0user = None; nat = 0; osuser = None
        while True:
            pick = None
            for o in pend:
                if o.e > gi: continue
                if g.free:
                    if any(a.gap is None for a, d in o.after): continue
                    pick = o; break
                if any(a.gap is None or a.gap + d > gi for a, d in o.after): continue
                cost = 1
                chg = o.pre and cur.get(o.pre[0]) != o.pre[1]
                if chg and sc_used: cost = 2
                if cost > room: continue
                if o.pre and o.pre[0] == "m0" and m0user is not None and m0user != o.pre[1]: continue
                if o.pre and o.pre[0] != "m0" and osuser is not None and osuser != o.pre[1]: continue
                urgent = o.dl - gi <= 2
                if o.cls == "AT" and nat >= 1 and not urgent: continue
                if o.kind == "VM" and gi - lastvm < vmsp and not urgent: continue
                if o.cls == "DMA" and gi - lastdma < dspm.get(o.tag[1], dmasp) and not urgent: continue
                if o.cls == "ST" and gi - lastst < stsp and not urgent: continue
                pick = o; break
            if pick is None: break
            o = pick
            pend.remove(o); o.gap = gi; g.ops.append(o)
            chg = o.pre and cur.get(o.pre[0]) != o.pre[1]
            if o.pre:
                cur[o.pre[0]] = o.pre[1]
                if o.pre[0] == "m0": m0user = o.pre[1]
                else: osuser = o.pre[1]
            if not g.free:
                room -= 1
                if chg:
                    if sc_used: room -= 1
                    sc_used = True
            if o.cls == "AT": nat += 1
            if o.kind == "VM": lastvm = gi
            if o.cls == "DMA": lastdma = gi
            if o.cls == "ST": lastst = gi
            if room <= 0 and not g.free: break
    assert not pend, [(o.text, o.e, o.dl) for o in pend[:10]]
    late = [o for o in ops if o.gap > o.dl]
    assert not late, [(o.text, o.gap, o.dl, G[o.gap].name) for o in late[:10]]

    def dropped(o):
        if "s" in drop and o.cls == "ST": return True
        if "d" in drop and o.tag and o.tag[0] == "X" and o.tag[1] >= 2: return True
        if "X" in drop and o.tag and o.tag[0] == "X" and o.gap == 0: return True
        if "v" in drop and o.kind == "V" and o.gap > B0: return True
        if "f" in drop and o.tag and o.tag[0] == "F": return True
        return False
    for gi, g in enumerate(G):
        g.ops = [o for o in g.ops if not dropped(o)]
        if "b" in drop and gi > B0: g.bar = False
    Lz = []
    cur = {}
    for gi, g in enumerate(G):
        if gi == HALF: Lz.append(Op("H", ""))
        if g.mfma: Lz.append(g.mfma)
        if g.stamp: Lz.append(S(stamp_text()))
        if g.free:
            if g.bar: Lz.append(BAR())
            for o in g.ops:
                if o.pre and cur.get(o.pre[0]) != o.pre[1]:
                    cur[o.pre[0]] = o.pre[1]; Lz.append(Op("S", o.pre[1], wr=[o.pre[0]]))
                Lz.append(o)
        else:
            lst = g.ops
            if len(lst) == 2 and lst[0].pre and lst[0].pre[0] == "m0" and not lst[1].pre and not any(a is lst[0] for a, d in lst[1].after) \
               and not (lst[0].kind == lst[1].kind) and not (set(lst[0].rd) & set(lst[1].wr)):
                lst = [lst[1], lst[0]]
            for o in lst:
                if o.pre and cur.get(o.pre[0]) != o.pre[1]:
                    cur[o.pre[0]] = o.pre[1]; Lz.append(Op("S", o.pre[1], wr=[o.pre[0]]))
            wm = Op("WM", ""); wm.look = list(lst) + ([G[gi + 1].mfma] if gi + 1 < len(G) and G[gi + 1].mfma else [])
            Lz.append(wm)
            if g.bar:
                b = BAR(); Lz.append(b); wm.look.append(b)
            Lz += lst
    accs = [(k, o) for k, o in enumerate(Lz) if o.lds]
    barp = [k for k, o in enumerate(Lz) if o.kind == "B"]
    for y in range(len(accs)):
        ky, oy = accs[y]
        bi = bisect.bisect_left(barp, ky) - 1
        for x in range(y):
            kx, ox = accs[x]
            conf = False
            for lx_ in ox.lds:
                for ly in oy.lds:
                    if lx_[0] == ly[0]: continue
                    if lx_[3] and ly[3]: continue
                    if lx_[2] <= ly[1] or ly[2] <= lx_[1]: continue
                    conf = True
            if not conf: continue
            if drop and not (bi >= 0 and barp[bi] > kx): continue
            assert bi >= 0 and barp[bi] > kx, ("LDS race", ox.text, G[ox.gap].name, oy.text, G[oy.gap].name)
            Lz[barp[bi]].needs.append(ox)
    issued = {"VM": 0, "DS": 0}; done = {"VM": -1, "DS": -1}; CAP = {"VM": 63, "DS": 15}
    pendreg = {}
    out = []
    inl = 0
    def needs_of(o):
        n = {"VM": -1, "DS": -1}
        for r in o.rd + o.wr:
            if r in pendreg:
                q, i = pendreg[r]; n[q] = max(n[q], i)
        for x in o.needs:
            if hasattr(x, "qi"): n[x.kind] = max(n[x.kind], x.qi)
        return n
    def dowait(n):
        w = []
        for q, nm in (("VM", "vmcnt"), ("DS", "lgkmcnt")):
            if n[q] > done[q]:
                c = min(issued[q] - 1 - n[q], CAP[q])
                done[q] = issued[q] - 1 - c
                w.append(f"{nm}({c})")
        if w: out.append(Op("S", "s_waitcnt " + " ".join(w)))
        return bool(w)
    for o in Lz:
        if o.kind == "WM":
            n = {"VM": -1, "DS": -1}
            for x in o.look:
                m = needs_of(x)
                for q in n: n[q] = max(n[q], m[q])
            dowait(n); continue
        if dowait(needs_of(o)): inl += 1
        if o.kind in ("VM", "DS"):
            o.qi = issued[o.kind]; issued[o.kind] += 1
            for r in o.wr: pendreg[r] = (o.kind, o.qi)
        out.append(o)
    fin = []
    t = 0
    wV = {}; wM = {}; wS = {}
    nops = 0
    for o in out:
        need = 0
        if o.kind == "M":
            for r in o.rd: need = max(need, wV.get(r, -99) + 3 - t)
        elif o.kind in ("V", "DS", "VM"):
            for r in o.rd + o.wr: need = max(need, wM.get(r, -99) + 10 - t)
            if o.pre and o.pre[0] == "m0": need = max(need, wS.get("m0", -99) + 2 - t)
        if need > 0:
            fin.append(Op("S", f"s_nop {need-1}")); t += need; nops += 1
        if o.kind == "V":
            for r in o.wr: wV[r] = t
        elif o.kind == "M":
            for r in o.wr: wM[r] = t
        elif o.kind == "S":
            for r in o.wr: wS[r] = t
        fin.append(o)
        t += 2 if o.kind == "M" else (0 if o.kind == "H" else 1)
    if verbose:
        print("inline waits", inl, "nops", nops, "instr", len(fin), "bars", bars, "gB", gB, "st0", st0, file=sys.stderr)
        for gi, g in enumerate(G):
            if g.free: print(gi, g.name, len(g.ops), file=sys.stderr)

    L = []
    A = L.append
    A("; @launch grid=(252,1,1) block=(256,1,1) lds=163840")
    A('.amdgcn_target "amdgcn-amd-amdhsa--gfx950"')
    A(".text"); A(f".globl {NAME}"); A(".p2align 8"); A(f".type {NAME},@function"); A(f"{NAME}:")
    hi = [k for k, o in enumerate(fin) if o.kind == "H"][0]
    fini = "  s_branch L_fin" if stamps else "  s_endpgm"
    for o in fin[:hi]: A(o.text if o.kind == "L" else "  " + o.text)
    A(f"  s_cmp_eq_u32 s{S_NTL}, 18"); A("  s_cbranch_scc1 L_tail18")
    A(f"  s_cmp_eq_u32 s{S_MH}, 1"); A("  s_cbranch_scc1 L_half1")
    for o in fin[hi + 1:]: A("  " + o.text)
    A(fini)
    A("L_half1:")
    for o in fin[hi + 1:]: A("  " + (o.alt or o.text))
    A(fini)
    A("L_tail18:")
    if stamps and not sst: A("  " + [o.text for o in fin[hi + 1:] if "s_mem" in o.text][0])
    A("  s_nop 7")
    for o in tailA:
        if o.pre: A("  " + o.pre[1])
        if not dropped(Op("V", "", cls=o.cls, tag=o.tag)) if o.cls == "ST" else True: A("  " + o.text)
    if stamps:
        A("L_fin:")
        A("  " + stamp_text()); A("  s_waitcnt vmcnt(0)"); A("  " + stamp_text()); A("  " + stamp_text(True))
        n = nst[0]
        if probe:
            C, Kf, idx, wg = map(int, probe.split(","))
            for x in ["s_waitcnt lgkmcnt(0)", "s_cmp_lg_u32 s3, 0", "s_cbranch_scc1 L_end"]: A("  " + x)
            if wg >= 0:
                A(f"  s_cmp_lg_u32 s2, {wg}"); A("  s_cbranch_scc1 L_end")
            rt = idx == n - 1
            b0 = STREGS[0 if rt else 1]
            for x in [f"s_sub_u32 s18, s{STREGS[idx]}, s{b0}", f"s_mul_i32 s18, s18, {Kf}", f"s_add_u32 s18, s18, {C}",
                      f"s_min_u32 s18, s18, {20000 if rt else 400000}"]: A("  " + x)
            A("L_spin:")
            for x in ["s_memrealtime s[20:21]" if rt else "s_memtime s[20:21]", "s_waitcnt lgkmcnt(0)", f"s_sub_u32 s19, s20, s{b0}", "s_cmp_lt_u32 s19, s18",
                      "s_cbranch_scc1 L_spin", "s_endpgm"]: A("  " + x)
        for x in ["s_waitcnt lgkmcnt(0)", "s_cmp_lg_u32 s3, 0", "s_cbranch_scc1 L_end",
                  "s_mov_b32 s20, s16", "s_and_b32 s21, s17, 0xffff", "s_mov_b32 s22, 0x100000", "s_mov_b32 s23, 0x20000",
                  f"s_mul_i32 s18, s2, {n*8}", "v_mov_b32 v2, s18", "s_mov_b64 exec, 1"]: A("  " + x)
        for k in range(n):
            for x in [f"v_mov_b32 v4, s{STREGS[k]}", f"v_mov_b32 v5, s{STREGS[k]+1}",
                      f"buffer_store_dwordx2 v[4:5], v2, s[20:23], 0 offen offset:{8*k}", "s_nop 1"]: A("  " + x)
        A("  s_waitcnt vmcnt(0)")
    A("L_end:"); A("  s_endpgm")
    A('.section .rodata,"a"'); A(".p2align 6"); A(f".amdhsa_kernel {NAME}")
    A(f"  .amdhsa_next_free_vgpr {256 + A_FR + NA*4}")
    A("  .amdhsa_next_free_sgpr 102")
    A("  .amdhsa_accum_offset 256")
    A("  .amdhsa_group_segment_fixed_size 0")
    A("  .amdhsa_kernarg_size 56")
    A("  .amdhsa_user_sgpr_count 2")
    A("  .amdhsa_user_sgpr_kernarg_segment_ptr 1")
    A("  .amdhsa_system_sgpr_workgroup_id_x 1")
    A("  .amdhsa_float_denorm_mode_32 3")
    A(".end_amdhsa_kernel")
    return "\n".join(L) + "\n", nst[0]

if __name__ == "__main__":
    ap = argparse.ArgumentParser()
    ap.add_argument("-o", default="k4.s")
    for k, d in dict(H=9, Q=0, D=3, NA=6, vmsp=3, dmasp=3, cpf=7, rotC=1, rts=0, skew=0, wlat=24, bgap=2, fl0=6, dma0=1, ebar=12, bstep=1, xlead=0, stsp=0, QF=0, g2=8, xl=2, sst=0, pp=0, bpos=1, mrat=2, exw=1, bsl=7, szs=5, w2=0).items():
        ap.add_argument("--" + k, type=int, default=d)
    ap.add_argument("--stamps", action="store_true")
    ap.add_argument("-v", dest="verbose", action="store_true")
    for k, d in dict(st="", lw="", lx="", drop="", ta="0360360", tb="0000", xo="", probe="", order="B", dbg="", mlag="22234567", x2="8:9", dsp="", fq="", xpre="", xpost="", xsl="", m0="556677889", m1="556677999").items(): ap.add_argument("--" + k, default=d)
    a = vars(ap.parse_args())
    o = a.pop("o")
    s, n = gen(**a)
    open(o, "w").write(s)
    print(o, "lines", s.count("\n"), "stamps", n)
```

```python
import sys, argparse, bisect
NAME = "standalone__w4a16_gemm_dequant__prompt_kernel"
INF = 10 ** 9

def rl(p, b, n): return [f"{p}{b+i}" for i in range(n)]
def rg(p, b, n): return f"{p}[{b}:{b+n-1}]" if n > 1 else f"{p}{b}"

class Op:
    cnt = 0
    def __init__(s, kind, text, rd=(), wr=(), pre=None, lds=None, cls=None, e=0, dl=INF, prio=None, after=(), tag=None):
        s.kind = kind; s.text = text; s.rd = list(rd); s.wr = list(wr); s.pre = pre; s.lds = lds; s.cls = cls
        s.e = e; s.dl = dl; s.prio = dl if prio is None else prio; s.after = list(after); s.tag = tag
        s.gap = None; s.needs = []; s.id = Op.cnt; Op.cnt += 1; s.alt = None

class Gap:
    def __init__(s, mfma=None, free=None, bar=False, name=""):
        s.mfma = mfma; s.free = free; s.bar = bar; s.ops = []; s.name = name; s.stamp = False; s.label = None
        s.fragwait = False; s.scal = False; s.hoisted = None

def gen(H=9, Q=0, D=3, NA=6, vmsp=3, dmasp=3, stamps=False, st="", lw="", lx="", verbose=False, drop='', ta='0360360', tb='0000',
        cpf=7, rotC=1, rts=0, xo="", skew=0, wlat=24, bgap=2, fl0=6, dma0=1, ebar=12, bstep=1, xlead=0, probe='', order="B", dbg='', stsp=0, QF=0, mlag='22234567', x2='8:9', g2=8, xl=2, dsp='', fq='', sst=0, pp=0, xpre='', xpost='', bpos=1, mrat=2, xsl='', m0='556677889', m1='556677999', exw=1, bsl=7, szs=5, w2=0, early=0, warm=0, al12=0, wd=0, hoist=0, alone=0, cpm=0, cpp=0, tch=0, tsx=14, tso=16, zc=0, szp=0, pw='', pk=0):
    NST = 9; NS = 9
    EXB = 0; TAB = 32768
    PS = [16384, 53248, 90112, 126976]
    if QF: Q = QF; assert H == 9 and Q <= 2
    TS = 4608 if QF else 6144
    def ps(n): return ([2, 3, 1, 0] if QF else [2, 3, 0, 1])[n % 4]
    S_X, S_W, S_S, S_Z, S_O = 20, 24, 28, 32, 36
    S_WOFS, S_XK, S_D9 = 40, 48, 57
    S_M0, S_C24, S_MSK, S_OS, S_NTL, S_MH = 66, 67, 68, 69, 70, 71
    S_RS = 34
    if pk: assert zc and order == "B"
    STREGS = [72, 74, 76, 78, 80, 82, 84, 86, 88, 90, 92, 94, 96, 98]
    V_W, V_X, V_O, V_TR, V_TW, V_EW, V_ER, V_S, V_OH = 2, 3, 4, 5, 6, 7, 8, 9, 0
    V_R = 12
    V_SZ, V_RAW, V_F, V_T = 16, 32, 96, 240
    def raw(p, j): return V_RAW + p * 32 + j * 4
    def F(i, u): return V_F + (i * 4 + u) * 4
    def AF(i, u): return (i * 4 + u) * 4
    A_ACC = 144; A_FR = 144 + 16 * Q
    def fr(f): return A_FR + (f % NA) * 4
    def acc(n): return ("a", A_ACC + 16 * n) if n < Q else ("v", V_RAW + (n % 3) * 16)
    V_OUT = V_RAW + 48
    nst = [0]
    def stamp_text(real=False):
        r = STREGS[nst[0]]; nst[0] += 1
        return f"s_memrealtime s[{r}:{r+1}]" if (real or rts) else f"s_memtime s[{r}:{r+1}]"

    G = []
    def S(t): return Op("S", t)
    def V(t, rd=(), wr=(), **k): return Op("V", t, rd, wr, **k)
    def BAR(): return Op("B", "s_barrier")
    def txt(lines): return [Op("V" if x.startswith("v_") else "S", x) for x in lines]

    def ldW(i, j):
        r = raw(i & 1, j)
        so = "0" if j == 0 else f"s{S_WOFS+j}"
        return Op("VM", f"buffer_load_dwordx4 {rg('v',r,4)}, v{V_W}, s[{S_W}:{S_W+3}], {so} offen {lw}".rstrip(),
                  rd=[f"v{V_W}"], wr=rl("v", r, 4), cls="VM", tag=("W", i, j))
    def ldSZ(m):
        r = V_T + 4 * m
        return [Op("VM", f"buffer_load_dwordx2 {rg('v',r,2)}, v{V_S+m}, s[{S_S}:{S_S+3}], 0 offen", rd=[f"v{V_S+m}"], wr=rl("v", r, 2), cls="VM"),
                Op("VM", f"buffer_load_dwordx2 {rg('v',r+2,2)}, v{V_S+m}, s[{S_Z}:{S_Z+3}], 0 offen", rd=[f"v{V_S+m}"], wr=rl("v", r + 2, 2), cls="VM")][:1 if zc else 2]
    V_X1 = 1; V_X2 = 252
    def ldX(p, i):
        b = PS[ps(p)] + i * 2048
        vx = V_X1 if p == 1 else (V_X2 if (p == 2 and QF == 2) else V_X)
        lds = [("w", b, b + 2048, False), ("w", b + 18432, b + 18432 + 2048, False)]
        return Op("VM", f"buffer_load_dwordx4 v{vx}, s[{S_X}:{S_X+3}], s{S_XK+i} offen {lx} lds".rstrip().replace("  ", " "),
                  rd=[f"v{vx}"], pre=("m0", f"s_add_u32 m0, s{S_M0}, {b}"), lds=lds, cls="DMA", tag=("X", p, i))
    def advW(i): return V(f"v_lshl_add_u32 v{V_W}, s{S_D9+i}, 17, v{V_W}", [f"v{V_W}"], [f"v{V_W}"])
    tabl = lambda k: [(k, TAB, TAB + 4 * TS, True)]
    def prep(m, t):
        r = V_T + 4 * m
        o = []
        for h in range(2):
            o.append(V(f"v_lshlrev_b32 v{t+2*h}, 16, v{r+h}", [f"v{r+h}"], [f"v{t+2*h}"]))
            o.append(V(f"v_and_b32 v{t+2*h+1}, s{S_MSK}, v{r+h}", [f"v{r+h}"], [f"v{t+2*h+1}"]))
        for h in range(0 if zc else 2):
            o.append(V(f"v_lshlrev_b32 v{t+4+2*h}, 16, v{r+2+h}", [f"v{r+2+h}"], [f"v{t+4+2*h}"]))
            o.append(V(f"v_and_b32 v{t+4+2*h+1}, s{S_MSK}, v{r+2+h}", [f"v{r+2+h}"], [f"v{t+4+2*h+1}"]))
        for u in range(4):
            if zc: o.append(V(f"v_mul_f32 v{t+4+u}, {'0xb2000000' if pk else '0xc1000000'}, v{t+u}", [f"v{t+u}"], [f"v{t+4+u}"]))
            else: o.append(V(f"v_mul_f32_e64 v{t+4+u}, -v{t+4+u}, v{t+u}", [f"v{t+4+u}", f"v{t+u}"], [f"v{t+4+u}"]))
        for u in range(4):
            o.append(V(f"v_mul_f32 v{t+u}, s{S_C24}, v{t+u}", [f"v{t+u}"], [f"v{t+u}"]))
        if m == 2 and QF: o.append(S("s_mov_b64 exec, 0xffff"))
        o.append(Op("DS", f"ds_write_b128 v{V_TW}, {rg('v',t,4)} offset:{m*2048}", rd=[f"v{V_TW}"] + rl("v", t, 4), lds=tabl("w")))
        o.append(Op("DS", f"ds_write_b128 v{V_TW}, {rg('v',t+4,4)} offset:{m*2048+256}", rd=[f"v{V_TW}"] + rl("v", t + 4, 4), lds=tabl("w")))
        if m == 2 and QF: o.append(S("s_mov_b64 exec, -1"))
        return o
    def rdSZ(i):
        z = V_SZ + (i & 1) * 8
        return [Op("DS", f"ds_read_b128 {rg('v',z,4)}, v{V_TR} offset:{i*512}", rd=[f"v{V_TR}"], wr=rl("v", z, 4), lds=tabl("r")),
                Op("DS", f"ds_read_b128 {rg('v',z+4,4)}, v{V_TR} offset:{i*512+256}", rd=[f"v{V_TR}"], wr=rl("v", z + 4, 4), lds=tabl("r"))]
    def deq(i, jj):
        p = i & 1; z = V_SZ + p * 8
        fm = []; cv = []
        for j in (2 * jj, 2 * jj + 1):
            for u in (range(0, 4, 2) if pk else []):
                r = raw(p, j) + u
                fm.append(V(f"v_pk_fma_f32 {rg('v',r,2)}, {rg('v',r,2)}, {rg('v',z+u,2)}, {rg('v',z+4+u,2)}",
                            rl("v", r, 2) + rl("v", z + u, 2) + rl("v", z + 4 + u, 2), rl("v", r, 2)))
            for u in ([] if pk else range(4)):
                r = raw(p, j) + u
                fm.append(V(f"v_fma_mix_f32 v{r}, v{r}, v{z+u}, v{z+4+u} op_sel_hi:[1,0,0]", [f"v{r}", f"v{z+u}", f"v{z+4+u}"], [f"v{r}"]))
        for u in range(4):
            a, b = raw(p, 2 * jj) + u, raw(p, 2 * jj + 1) + u
            cv.append(V(f"v_cvt_pk_bf16_f32 v{F(i,u)+jj}, v{a}, v{b}", [f"v{a}", f"v{b}"], [f"v{F(i,u)+jj}"]))
        return fm, cv
    def exW(i):
        b = EXB + (i & 1) * 16384
        return [Op("DS", f"ds_write_b128 v{V_EW}, {rg('v',F(i,u),4)} offset:{b+u*1024}", rd=[f"v{V_EW}"] + rl("v", F(i, u), 4),
                   lds=[("w", b, b + 16384, False)], cls="AT") for u in range(4)]
    def exR(i):
        b = EXB + (i & 1) * 16384
        return [Op("DS", f"ds_read_b128 {rg('a',AF(i,u),4)}, v{V_ER} offset:{b+u*1024}", rd=[f"v{V_ER}"], wr=rl("a", AF(i, u), 4),
                   lds=[("r", b, b + 16384, False)]) for u in range(4)]
    def rdF(f, n, i, h):
        p = ps(n)
        if n == NS: vr = V_R + h; off = PS[p] - PS[2] + i * 2048
        else: vr = V_R + 2 * (p >> 1) + h; off = (p & 1) * 36864 + i * 2048
        a = fr(f); b = PS[p] + i * 2048
        lds = [("r", b, b + 2048, False), ("r", b + 18432, b + 18432 + 2048, False)]
        return Op("DS", f"ds_read_b128 {rg('a',a,4)}, v{vr} offset:{off}", rd=[f"v{vr}"], wr=rl("a", a, 4), lds=lds, tag=("F", f))
    def mfma(n, u, f, i, h, first, uw=None):
        dp, d = acc(n); d += 4 * u
        dd = rg(dp, d, 4)
        def t(uw):
            w = rg('v', F(i, uw), 4) if h == 0 else rg('a', AF(i, uw), 4)
            x = rg('a', fr(f), 4)
            ab = f"{w}, {x}" if order == "A" else f"{x}, {w}"
            return f"v_mfma_f32_16x16x32_bf16 {dd}, {ab}, {'0' if first else dd}"
        wr_ = (rl("v", F(i, u), 4) if h == 0 else rl("a", AF(i, u), 4))
        o = Op("M", t(u), rd=rl("a", fr(f), 4) + wr_ + ([] if first else rl(dp, d, 4)), wr=rl(dp, d, 4))
        if n == NS: o.alt = t(u + 2)
        return o

    A_ = sum(int(c) << (4 * i) for i, c in enumerate(ta)); B_ = sum(int(c) << (4 * i) for i, c in enumerate(tb))
    rot = ["s_lshl_b32 s40, s15, 2", f"s_lshr_b32 s40, {A_}, s40", "s_and_b32 s40, s40, 15"]
    if B_: rot += ["s_and_b32 s41, s18, 3", "s_lshl_b32 s41, s41, 2", f"s_lshr_b32 s41, {B_}, s41", "s_and_b32 s41, s41, 15", "s_add_u32 s40, s40, s41"]
    if rotC == 1: rot += ["s_add_u32 s40, s40, s14"]
    elif rotC: rot += [f"s_mul_i32 s41, s14, {rotC}", "s_add_u32 s40, s40, s41"]
    if rotC > 1 or (rotC and B_): rot += ["s_mul_i32 s41, s40, 57", "s_lshr_b32 s41, s41, 9", "s_mul_i32 s41, s41, 9", "s_sub_u32 s19, s40, s41"]
    else: rot += ["s_sub_u32 s41, s40, 9", "s_min_u32 s19, s40, s41"]
    P = []
    VQ = 26 if order == "A" else 16
    if stamps: P += [S(stamp_text(True)), S(stamp_text())]
    P += txt(["s_cmp_ge_u32 s2, 252", "s_cbranch_scc1 L_end", "s_load_dwordx8 s[4:11], s[0:1], 0", "s_load_dwordx2 s[12:13], s[0:1], 32"])
    if stamps: P += txt([f"s_load_dwordx2 s[16:17], s[0:1], 48"])
    CP = []
    if cpf:
        cs = 40 if not cpp else 92 if not stamps else 36
        CP0 = txt([f"s_getpc_b64 s[{cs}:{cs+1}]"]) + [Op("L", "L_pc:")] + txt([f"s_and_b32 s{cs+1}, s{cs+1}, 0xffff", f"s_mov_b32 s{cs+2}, L_end-L_pc", f"s_mov_b32 s{cs+3}, 0x20000",
                  *([f"v_lshlrev_b32 v15, {cpf}, v0"] if not cpm else ["s_lshr_b32 s15, s2, 3", "s_lshl_b32 s15, s15, 7", "v_lshl_add_u32 v15, v0, 12, s15"])])
        CP = [Op("VM", f"buffer_load_dword v255, v15, s[{cs}:{cs+3}], 0 offen", rd=["v15"], wr=["v14x"])]
        P += CP0
        if not cpp: P += CP + txt(["s_nop 4"])
    P += txt([
        "v_lshrrev_b32 v16, 6, v0", "v_and_b32 v1, 63, v0", "v_readfirstlane_b32 s3, v16",
        "s_and_b32 s14, s2, 7", "s_lshr_b32 s15, s2, 3", "s_lshl_b32 s18, s14, 2", "s_and_b32 s19, s15, 3", "s_add_u32 s18, s18, s19",
        "s_lshr_b32 s19, s15, 2", "s_and_b32 s40, s14, 3", "s_add_u32 s40, s40, 32", "s_and_b32 s41, s14, 4", "s_add_u32 s41, s41, s15",
        "s_sub_u32 s41, s41, 28", "s_cmp_ge_u32 s15, 28", "s_cselect_b32 s18, s40, s18", "s_cselect_b32 s15, s41, s19",
        *rot,
        f"s_lshr_b32 s{S_MH}, s3, 1", "s_and_b32 s65, s3, 1",
        "s_lshl_b32 s18, s18, 7", "s_lshl_b32 s40, s65, 6", "s_add_u32 s18, s18, s40",
        "v_and_b32 v16, 15, v1", "v_lshrrev_b32 v17, 4, v1",
        *(["v_and_b32 v26, 1, v1", "v_bfe_u32 v27, v1, 2, 2", "v_lshl_or_b32 v26, v27, 1, v26",
        "v_and_b32 v27, 2, v1", "v_lshl_or_b32 v26, v27, 2, v26"] if order == "A" else []),
        f"s_mov_b32 s{S_WOFS+1}, 18432",
        f"s_mul_i32 s40, s{S_MH}, 9216", "s_lshl1_add_u32 s40, s18, s40",
        f"v_lshl_add_u32 v18, v{VQ}, 3, s40",
        "v_add_u32 v19, s19, v17", "v_add_u32 v20, -9, v19", "v_min_u32 v20, v19, v20",
        f"v_mad_u32_u24 v{V_S}, v20, s{S_WOFS+1}, v18",
        "s_mul_i32 s42, s19, 1179648", f"s_mul_i32 s43, s{S_MH}, 589824", "s_lshl2_add_u32 s43, s18, s43", "s_add_u32 s42, s42, s43",
        f"v_mul_u32_u24 v{V_W}, 147456, v17", f"v_lshl_add_u32 v{V_W}, v{VQ}, 4, v{V_W}", f"v_add_u32 v{V_W}, s42, v{V_W}",
        f"s_mov_b32 s{S_W+2}, {576*4608*4}", f"s_mov_b32 s{S_S+2}, {18*4608*2}", *([] if zc else [f"s_mov_b32 s{S_Z+2}, {18*4608*2}", f"s_mov_b32 s{S_Z+3}, 0x20000"]),
        f"s_mov_b32 s{S_W+3}, 0x20000", f"s_mov_b32 s{S_S+3}, 0x20000"])
    P += txt([f"s_mov_b32 s{S_WOFS+k}, {k*18432}" for k in range(2, 8)])
    P += txt(["s_cmp_eq_u32 s19, 8", f"s_cselect_b32 s{S_D9+1}, -72, 9",
        *(["s_mul_i32 s14, s15, 18", "s_min_u32 s40, s15, 2", "s_add_u32 s14, s14, s40", "s_mul_i32 s100, s14, 18432", "s_mul_i32 s101, s14, 147456"] if pw else []),
        "s_waitcnt lgkmcnt(0)",
        *(["s_load_dword vcc_lo, s[8:9], 0"] if "s" in pw else []),
        *(["s_load_dword vcc_lo, s[4:5], s100"] if "x" in pw else []),
        *(["s_load_dword vcc_lo, s[12:13], s101"] if "o" in pw else []),
        *(["s_load_dword vcc_lo, s[10:11], 0"] if "z" in pw else []),
        f"s_mov_b32 s{S_S}, s8", f"s_and_b32 s{S_S+1}, s9, 0xffff",
        *([] if zc else [f"s_mov_b32 s{S_Z}, s10", f"s_and_b32 s{S_Z+1}, s11, 0xffff"]),
        f"s_mov_b32 s{S_W}, s6", f"s_and_b32 s{S_W+1}, s7, 0xffff"])
    szadr = lambda m: txt([f"v_add_u32 v19, 4, v19", "v_add_u32 v20, -9, v19", "v_min_u32 v20, v19, v20",
                           f"v_mad_u32_u24 v{V_S+m}, v20, s{S_WOFS+1}, v18"])
    XO = txt([
        "s_mul_i32 s14, s15, 18", "s_min_u32 s40, s15, 2", "s_add_u32 s14, s14, s40",
        "s_cmp_lt_u32 s15, 2", f"s_cselect_b32 s{S_NTL}, 19, 18",
        f"s_mul_i32 s15, s14, {0 if 'x' in dbg else 18432}",
        f"s_add_u32 s{S_X}, s4, s15", f"s_addc_u32 s{S_X+1}, s5, 0", f"s_and_b32 s{S_X+1}, s{S_X+1}, 0xffff",
        f"s_mul_i32 s{S_X+2}, s{S_NTL}, 18432", f"s_mov_b32 s{S_X+3}, 0x20000",
        f"s_mul_i32 s15, s14, {0 if 'o' in dbg else 147456}",
        f"s_add_u32 s{S_O}, s12, s15", f"s_addc_u32 s{S_O+1}, s13, 0", f"s_and_b32 s{S_O+1}, s{S_O+1}, 0xffff",
        f"s_mul_i32 s{S_O+2}, s{S_NTL}, 147456", f"s_mov_b32 s{S_O+3}, 0x20000",
        ])
    if tch:
        P += XO + txt([f"v_lshlrev_b32 v21, {tsx}, v0", f"v_lshlrev_b32 v22, {tso}, v0"])
        if tch & 1: P += [Op("VM", f"buffer_load_dword v254, v21, s[{S_X}:{S_X+3}], 0 offen", rd=["v21"], wr=["v14y"])]
        if tch & 2: P += [Op("VM", f"buffer_load_dword v253, v22, s[{S_O}:{S_O+3}], 0 offen", rd=["v22"], wr=["v14z"])]
    W0 = [ldW(0, j) for j in range(8)]
    P += W0[:szp] + ldSZ(0) + (CP if cpp == 3 else []) + W0[szp:]
    if stamps and not sst: P += [S(stamp_text())]
    if cpp == 1: P += CP
    P += [advW(1)] + [ldW(1, j) for j in range(8)]
    if cpp == 2: P += CP
    for m in (1, 2): P += szadr(m) + ldSZ(m)
    if not tch: P += XO
    P += txt([
        f"s_mov_b32 s{S_C24}, {'0x7b000000' if pk else '0x4b800000'}", *([f"s_mov_b32 s{S_RS}, 0x4e800000", f"s_mov_b32 s{S_RS+1}, 0x4e800000"] if pk else []), f"s_mov_b32 s{S_MSK}, 0xffff0000",
        f"s_mul_i32 s40, s3, {TS}", f"s_add_u32 s40, s40, {TAB}",
        f"v_lshl_add_u32 v{V_TR}, v16, 4, s40", f"v_lshl_add_u32 v{V_TW}, v17, 9, v{V_TR}",
        "s_lshl_b32 s40, s3, 12", f"v_lshl_add_u32 v{V_EW}, v1, 4, s40", f"v_xor_b32 v{V_ER}, 0x2000, v{V_EW}",
        "v_lshrrev_b32 v21, 3, v1", "v_lshrrev_b32 v22, 4, v1", "v_and_b32 v22, 2, v22", "v_lshrrev_b32 v23, 2, v1", "v_and_b32 v23, 4, v23",
        "v_and_b32 v24, 7, v1", "v_or3_b32 v22, v22, v23, 0", "v_xor_b32 v22, v22, v24",
        "v_mul_u32_u24 v21, 1152, v21", "v_lshl_add_u32 v21, v22, 4, v21",
        f"s_mul_i32 s57, s{S_MH}, 18432", "s_mul_i32 s40, s65, 9216", "s_add_u32 s40, s40, s57",
        f"v_add_u32 v{V_X}, s40, v21", f"v_add_u32 v{V_X1}, 36864, v{V_X}", *([f"v_add_u32 v{V_X2}, 73728, v{V_X}"] if QF else []),
        "s_lshl_b32 s40, s65, 10", f"s_add_u32 s{S_M0}, s40, s57",
        f"s_mul_i32 s40, s{S_MH}, 147456", "s_lshl1_add_u32 s40, s18, s40",
        *([f"v_mul_u32_u24 v{V_O}, 9216, v16", f"v_lshl_add_u32 v{V_O}, v17, 4, v{V_O}"] if order == "A" else
          [f"v_mul_u32_u24 v{V_O}, 36864, v17", f"v_lshl_add_u32 v{V_O}, v16, 3, v{V_O}"]), f"v_add_u32 v{V_O}, s40, v{V_O}",
        f"s_mul_i32 s40, s{S_MH}, {4-147456}", f"v_add_u32 v{V_OH}, s40, v{V_O}",
        "v_lshrrev_b32 v23, 1, v16", "v_and_b32 v23, 2, v23", "v_lshlrev_b32 v24, 1, v16", "v_and_b32 v24, 4, v24",
        f"s_lshl_b32 s40, s{S_MH}, 2", "v_add_u32 v25, s40, v17", "v_xor_b32 v23, v23, v24", "v_xor_b32 v23, v23, v25",
        "v_lshlrev_b32 v23, 4, v23", f"v_lshl_add_u32 v23, v16, 7, v23",
        f"s_add_u32 s40, s57, {PS[0]}",
        f"v_add_u32 v{V_R}, s40, v23", f"v_xor_b32 v{V_R+1}, 64, v{V_R}",
        f"v_add_u32 v{V_R+2}, {PS[2]-PS[0]}, v{V_R}", f"v_add_u32 v{V_R+3}, {PS[2]-PS[0]}, v{V_R+1}"])
    for i in range(2, NST):
        P += txt([f"s_cmp_eq_u32 s19, {9-i}", f"s_cselect_b32 s{S_D9+i}, -72, 9"])
    P += txt([f"s_lshl_b32 s{S_XK}, s19, 7"])
    for i in range(1, NST):
        P += txt([f"s_add_u32 s15, s19, {i}", f"s_sub_u32 s40, s15, 9", "s_min_u32 s15, s15, s40", f"s_lshl_b32 s{S_XK+i}, s15, 7"])
    if warm:
        P += txt(["s_mov_b64 exec, 0", "s_cmp_eq_u32 s3, 0", "s_cbranch_scc1 L_w1", "s_cmp_eq_u32 s3, 1", "s_cbranch_scc1 L_w2",
                  "s_cmp_eq_u32 s3, 2", "s_cbranch_scc1 L_w3", "s_branch L_w4"]) + [Op("L", "L_wret:")] + txt(["s_mov_b64 exec, -1"])
    P += prep(0, F(8, 0)) + rdSZ(0) + rdSZ(1)
    xunits = []
    if Q == 2: xunits = [(p, i) for i in range(9) for p in (0, 1)]
    else: xunits = [(p, i) for p in (0, 1) for i in range(9)]
    xafter = {}
    if not xo: xo = "8:18"
    for t in xo.split(","):
        k, n = map(int, t.split(":")); xafter[k] = n
    assert sum(xafter.values()) <= 18
    xq = list(xunits)
    cvdone = {}; first = True; lastVM = None
    def takeX(k):
        r = [ldX(*xq.pop(0)) for _ in range(xafter.get(k, 0))]
        return r
    F0 = 0; seenM = set()
    if QF:
        xq = []; xafter = {}
        x2q = [(Q, i) for i in range(9)]
        x2after = dict(map(int, t.split(":")) for t in x2.split(","))
        def Mblock(k, ex):
            nonlocal F0
            fs = [(n, h) for h in range(2) for n in range(Q)]
            rd = [rdF(F0 + j, n, k, h) for j, (n, h) in enumerate(fs)]
            r = rd[:Q] + ex + rd[Q:]
            for j, (n, h) in enumerate(fs):
                r += [mfma(n, u, F0 + j, k, h, k == 0 and h == 0) for u in range(4)]
            F0 += len(fs)
            if "M" in drop: r = ex
            return r
        if not pp:
            for k in range(xl): P += [ldX(p, k) for p in range(Q)]
    left = [(8, 0), (8, 1)]
    if pp == 2:
        xq = [(p, i) for i in range(9) for p in range(Q)] + [(Q, i) for i in range(9)] if QF else [(p, i) for p in (0, 1) for i in range(9)]
        x2q = []
        NT = 74
        st1 = S(stamp_text()) if stamps and not sst else None
        SL = [dict(a=[], v=[], c=[], l=[], x=[], w=[], b=[], r=[], m=[]) for _ in range(NT + 16)]
        for i in range(NST):
            for jj in range(4):
                fm, cv = deq(i, jj)
                hf = len(fm) // 2
                if w2 and i >= w2: fm[0].rd = fm[0].rd + fm[hf].rd
                SL[8 * i + 2 * jj]["v"] += fm[:hf]; SL[8 * i + 2 * jj + 1]["v"] += fm[hf:]
                SL[8 * i + 2 * jj + 2]["c"] += cv
                if i + 2 < NST:
                    SL[8 * i + 2 * jj + 2]["l"].append(ldW(i + 2, 2 * jj)); SL[8 * i + 2 * jj + 3]["l"].append(ldW(i + 2, 2 * jj + 1))
            if i + 2 < NST:
                SL[8 * i + 2]["a"].append(advW(i + 2))
                z = rdSZ(i + 2); SL[8 * (i + 1) + szs]["r"].append(z[0]); SL[8 * (i + 1) + szs + 1]["r"].append(z[1])
            for u, o in enumerate(exW(i)): SL[(8 * (i + 1) + exw + u) if i < 8 else 72]["w"].append(o)
            if i < 8:
                SL[8 * (i + 1) + bsl]["b"].append(BAR())
                if stamps and (sst == 1 or (QF and i == 4 and not sst)): SL[8 * (i + 1) + bsl]["b"].append(S(stamp_text()))
                for u, o in enumerate(exR(i)): SL[min(8 * (i + 1) + bsl + 1 + u, 72 if i == 7 else 99)]["r"].append(o)
        SL[8 + 3]["w"] += prep(1, F(7, 0)); SL[8 + 6]["w"] += prep(2, F(6, 0))
        for t in (xsl.split(",") if xsl else []):
            a, b, c = map(int, t.split(":"))
            for k in range(c): SL[a + b * k]["x"].append(None)
        for sl in SL:
            sl["x"] = [ldX(*xq.pop(0)) for _ in sl["x"]]
        if QF:
            left = []
            for stg in range(1, 10):
                kh = sorted([(k, 0) for k in range(9) if int(m0[k]) == stg] + [(k, 1) for k in range(9) if int(m1[k]) == stg],
                            key=lambda t: (t[0] + t[1] * 1.5 if t[0] + t[1] + 1 >= stg else t[0] + t[1] * 0.5))
                if stg == 9: left = kh; break
                if "M" in drop: continue
                fs = [(k, n, h) for (k, h) in kh for n in range(Q)]
                for (k, n, h) in fs: assert stg >= k + 1 + h
                if not fs: continue
                t0 = 8 * stg + bsl + 1 - 8
                rd = [rdF(F0 + j, n, k, h) for j, (k, n, h) in enumerate(fs)]
                SL[t0]["r"] = rd[:2] + SL[t0]["r"]
                M = []
                for j, (k, n, h) in enumerate(fs):
                    g4 = [mfma(n, u, F0 + j, k, h, (n not in seenM)) for u in range(4)]
                    seenM.add(n)
                    if j + 2 < len(fs): g4.insert(1, rd[j + 2])
                    M.append(g4)
                F0 += len(fs)
                for j, g4 in enumerate(M): SL[t0 + 1 + (j * 7) // len(M)]["m"] += g4
        for t, sl in enumerate(SL):
            if t == 0 and stamps and not sst: sl["v"].append(st1)
            T = sl["a"] + sl["v"] + sl["c"] + sl["l"][:1] + sl["r"] + sl["w"] + sl["l"][1:] + sl["x"]
            if hoist and sl["x"] and len(T) > len(sl["x"]) + 1:
                hp = Op("S", sl["x"][0].pre[1], wr=["m0"]); hp.sets = sl["x"][0].pre
                T.insert(len(T) - len(sl["x"]) - 1, hp)
            M = sl["m"]
            c = 0
            while T:
                P.append(T.pop(0)); c += 1
                if c % mrat == 0 and M:
                    P.append(M.pop(0))
                    if M and M[0].kind == "DS": P.append(M.pop(0))
            P += M + sl["b"]
    elif pp:
        assert H == 9
        xq = [(p, i) for i in range(9) for p in range(Q)] + [(Q, i) for i in range(9)] if QF else [(p, i) for p in (0, 1) for i in range(9)]
        x2q = []
        dd = lambda t: dict(map(int, u.split(":")) for u in t.split(",")) if t else {}
        xa, xb = dd(xpre), dd(xpost)
        popx = lambda n: [ldX(*xq.pop(0)) for _ in range(n)]
        for i in range(NST):
            P += popx(xa.get(i, 0))
            if i + 2 < NST: P.append(advW(i + 2))
            grp = []
            for jj in range(4):
                fm, cv = deq(i, jj)
                gq = list(fm)
                if first and stamps and not sst: gq += [S(stamp_text())]
                first = False
                gq += cv
                if i + 2 < NST: gq += [ldW(i + 2, 2 * jj), ldW(i + 2, 2 * jj + 1)]
                grp.append(gq)
            for gq in grp[:bpos]: P += gq
            T = sum(grp[bpos:], [])
            M = []
            if i >= 1:
                P += [BAR()]
                if stamps and (sst or (QF and i == 5)): P += [S(stamp_text())]
                ex = exR(i - 1)
                fs = [(k, n, h) for k in range(8) if QF and int(mlag[k]) == i and "M" not in drop for h in range(2) for n in range(Q)]
                for (k, n, h) in fs: assert k < i
                rd = [rdF(F0 + j, n, k, h) for j, (k, n, h) in enumerate(fs)]
                nl = Q if (fs and fs[0][0] == i - 1) else min(NA, len(fs))
                P += rd[:nl] + ex + rd[nl:NA]
                for j, (k, n, h) in enumerate(fs):
                    M += [mfma(n, u, F0 + j, k, h, k == 0 and h == 0) for u in range(4)]
                    if j + NA < len(fs): M.append(rd[j + NA])
                F0 += len(fs)
            c = 0
            while T:
                P.append(T.pop(0)); c += 1
                if c % mrat == 0 and M:
                    P.append(M.pop(0))
                    if M and M[0].kind == "DS": P.append(M.pop(0))
            P += exW(i)
            P += popx(xb.get(i, 0))
            if i == 1: P += prep(1, F(7, 0)) + prep(2, F(6, 0))
            if i + 2 < NST: P += rdSZ(i + 2)
            P += M
    else: P += takeX(1)
    for i in range(0 if pp else H):
        if QF and i + xl < NST: P += [ldX(p, i + xl) for p in range(Q)]
        if i + 2 < NST: P.append(advW(i + 2))
        for jj in range(4):
            fm, cv = deq(i, jj)
            P += fm
            if first and stamps and not sst: P += [S(stamp_text())]
            first = False
            P += cv
            cvdone[(i, jj)] = cv[-1]
            if i + 2 < NST: P += [ldW(i + 2, 2 * jj), ldW(i + 2, 2 * jj + 1)]
        P += exW(i)
        if i + 2 < NST: P += takeX(i + 2)
        if i == 1: P += prep(1, F(7, 0)) + prep(2, F(6, 0))
        if i + 2 < NST: P += rdSZ(i + 2)
        if QF:
            P += [ldX(*x2q.pop(0)) for _ in range(x2after.get(i + 2, 0))]
            if i < H - 1:
                P += [BAR()]
                if stamps and (i == 4 or sst): P += [S(stamp_text())]
                ex = exR(i)
                for k in range(8):
                    if int(mlag[k]) == i:
                        if k == i: P += Mblock(k, ex); ex = []
                        else: P += Mblock(k, [])
                P += ex
        elif i < H - 1: P += [BAR()] + ([S(stamp_text())] if sst and stamps else []) + exR(i)
    lastVM = [o for o in P if o.kind == "VM"][-1]
    g = Gap(free="fixed", name="prologue"); g.ops = P
    for o in P: o.gap = 0
    G.append(g)

    ops = []
    g = Gap(free="open", bar=True, name="B0"); B0 = len(G); G.append(g)
    if stamps: g.stamp = True
    seq = []
    if QF:
        assert not x2q
        seq = [(n, k, h) for (k, h) in left for n in range(Q)]
    elif Q:
        order1 = []
        for i in range(NST + skew):
            if i < NST: order1.append((i, 0))
            if 0 <= i - skew: order1.append((i - skew, 1))
        for (i, h) in order1:
            for n in range(Q): seq.append((n, i, h))
    for n in range(Q, NS + 1):
        for i in range(NST):
            for h in range(2): seq.append((n, i, h))
    firstuse = {}; lastuse = {}; lastM = {}; st0 = {}; fu = {}
    seen = set(range(QF))
    for f, (n, i, h) in enumerate(seq, F0):
        if n not in st0: st0[n] = len(G)
        nu = 2 if n == NS else 4
        for u in range(nu):
            gp = Gap(mfma(n, u, f, i, h, n not in seen), name=f"n{n}i{i}h{h}u{u}")
            gp.fragwait = (u == nu - 1)
            if u == 0:
                firstuse[f] = len(G); fu.setdefault((i, h), len(G))
            lastuse[f] = len(G); lastM[(n, u)] = len(G)
            G.append(gp)
        seen.add(n)
    HALF = st0[NS]
    tail = len(G); G.append(Gap(free="open", name="tail"))
    END = tail
    bars = [B0]
    gB = {}
    for n in range(max(Q, 1), NS + 1):
        gB[n] = st0[n] - 4 * D - bgap
        if QF and n == Q: gB[n] = st0[n] - g2
        bars.append(gB[n])
    if Q and not QF:
        for i in range(bstep, NST, bstep):
            b = fu[(i, 0)] - 4 * D - bgap
            if b > B0 + 2: bars.append(b)
    bars = sorted(set(bars))
    for b in bars: G[b].bar = True
    def barle(g): return bars[bisect.bisect_right(bars, g) - 1]
    for n in range(0, max(Q, 1)): gB[n] = B0
    if stamps and not sst:
        for n in ((max(Q, 1), 3, 6, NS) if not QF else (Q, 6, NS)): G[st0[n]].stamp = True
    if stamps and sst == 2:
        for n in range(2, NS + 1): G[st0[n]].stamp = True
    for o in exR(H - 1):
        o.e = B0; o.dl = fu[(H - 1, 1)] - 6; o.prio = o.dl - 50; ops.append(o)
    prevF = None
    newR = []
    for f, (n, i, h) in enumerate(seq, F0):
        o = rdF(f, n, i, h)
        if n == NS: d4 = 2 * (D + 1)
        else: d4 = 4 * D
        e = firstuse[f] - d4
        gb = gB[n] if (n >= Q or QF) else barle(fu[(i, 0)] - 4 * D)
        e = max(e, gb)
        if f - NA >= F0: e = max(e, lastuse[f - NA])
        o.dl = firstuse[f] - 1
        o.e = min(e, o.dl); o.prio = -1000 + f
        if prevF: o.after.append((prevF, 0))
        if n == NS - 2 and i == NST - 1 and h == 1: lastA = o
        if n == NS and not newR:
            for hh in range(2):
                a = V(f"v_xor_b32 v{V_R+hh}, v{V_R+2+hh}, v{V_T}", [f"v{V_R+2+hh}", f"v{V_T}"], [f"v{V_R+hh}"])
                newR.append(a)
        if n == NS: o.after += [(a, 0) for a in newR]
        prevF = o
        ops.append(o)
    for hh, a in enumerate(newR):
        a.text = f"v_subrev_u32 v{V_R+hh}, s57, v{V_R+2+hh}"; a.rd = [f"v{V_R+2+hh}"]
        a.e = st0[NS - 1]; a.dl = gB[NS]; a.prio = 0; a.after.append((lastA, 0)); ops.append(a)
    prev = lastVM
    szr = {}
    stream = []
    for i in range(H, NST):
        wl = None
        if i >= H + 2:
            a = advW(i); a.after.append((prev, 0)); a.e = B0 + 1; a.dl = fu[(i, 0)]; a.prio = -300; ops.append(a); prev = a
            wl = []
            for j in range(8):
                o = ldW(i, j); o.e = B0 + 1; o.dl = fu[(i, 0)]; o.prio = -300
                o.after += [(prev, 0), (cvdone[(i - 2, j // 2)], 0)]; prev = o
                ops.append(o); wl.append(o)
            for o in takeX(i):
                o.e = B0 + 1; o.prio = -300; o.after.append((prev, 0)); prev = o
                p_, i_ = o.tag[1:]
                o.dl = (barle(fu[(i_, 0)] - 4 * D) if p_ < Q else gB[p_]) - 1
                ops.append(o)
        pv = None
        eb = barle(fu[(i, 1)] - ebar)
        for jj in range(4):
            fm, cv = deq(i, jj)
            for o in fm + cv:
                o.e = B0 + 1 + (xlead if i == H else 0); o.dl = min(fu[(i, 0)] - 2, eb - 6); o.prio = o.dl
                if wl: o.after.append((wl[2 * jj + 1], wlat))
                if pv: o.after.append((pv, 0))
                pv = o
                for z in szr.get(i, []): o.after.append((z, 4))
                ops.append(o)
            cvdone[(i, jj)] = cv[-1]; lf = fm[-1]
        ew = exW(i)
        for k, o in enumerate(ew):
            o.e = B0 + 1; o.dl = eb - 1; o.prio = o.dl - 20; o.after.append((pv, 0))
            if k: o.after.append((ew[k - 1], 1))
            o.after.append((exr2[i - 2] if i - 2 >= H else None, 0)) if False else None
        ops += ew
        er = exR(i)
        for o in er:
            o.e = eb; o.dl = fu[(i, 1)] - 4; o.prio = o.dl - 50
        ops += er
        if i + 2 < NST:
            z = rdSZ(i + 2)
            for o in z:
                o.e = B0 + 1; o.dl = fu[(i + 2, 0)]; o.prio = -200; o.after.append((lf, 0))
            szr[i + 2] = z; ops += z
    for (p_, i_) in xq:
        o = ldX(p_, i_); o.e = B0 + 1; o.prio = -300; o.after.append((prev, 0)); prev = o
        o.dl = (barle(fu[(i_, 0)] - 4 * D) if p_ < Q else gB[p_]) - 1
        ops.append(o)
    for p in range((QF + 1) if QF else 2, NS + 1):
        inc = 73728 if p == 2 else 36864
        if QF:
            if p == 3 and QF == 2: inc = 3 * 36864
            eg = B0 if p == Q + 1 else gB[p - 2]
        elif p <= 3:
            eg = B0 if H == NST and p == 2 else None
            if eg is None:
                last = max([B0] + [barle(fu[(i, 1)] - ebar) for i in range(H, NST)])
                later = [b for b in bars if b > last]
                eg = later[0] if (H < NST or p == 3) else last
                eg = max(eg, gB[p - 2])
        else:
            eg = gB[max(p - 2, Q if p - 4 < Q else 0)]
            if p - 4 < Q: eg = gB[Q + 1] if p - 2 <= Q else eg
        a = V(f"v_add_u32 v{V_X}, {inc}, v{V_X}", [f"v{V_X}"], [f"v{V_X}"]); a.after.append((prev, 0)); a.prio = -400; a.e = eg - 2
        ops.append(a); prev = a
        eg2 = eg
        if early and QF and p - 3 >= Q: eg = gB[p - 3]; a.e = eg - 2
        for i in range(9):
            o = ldX(p, i); o.e = (eg if i < early else eg2) + dma0; o.dl = gB[p] - 1; o.prio = o.e - 300
            o.after.append((prev, 0)); prev = o
            ops.append(o)
    lastst = None; lastcv = {}
    def flush(n, e0, dl, sched=True):
        kp, base = acc(n)
        ob = V_OUT + obs[n] * 8
        res = []
        src = lambda u, j: base + 4 * u + j
        rds = {}
        if kp == "a":
            for u in range(4):
                for j in range(4):
                    o = V(f"v_accvgpr_read_b32 v{V_SZ+4*u+j}, a{base+4*u+j}", [f"a{base+4*u+j}"], [f"v{V_SZ+4*u+j}"])
                    rds[(u, j)] = o; res.append(o)
            src = lambda u, j: V_SZ + 4 * u + j
        def rescale(r): return V(f"v_pk_mul_f32 {rg('v',r,2)}, {rg('v',r,2)}, s[{S_RS}:{S_RS+1}]", rl("v", r, 2), rl("v", r, 2))
        for j in (range(4) if order == "B" else []):
            if pk and j % 2 == 0: res += [rescale(src(u, j)) for u in range(4)]
            for k in range(2):
                a, b = src(2 * k, j), src(2 * k + 1, j)
                res.append(V(f"v_cvt_pk_bf16_f32 v{ob+2*j+k}, v{a}, v{b}", [f"v{a}", f"v{b}"], [f"v{ob+2*j+k}"]))
            res.append(Op("VM", f"buffer_store_dwordx2 {rg('v',ob+2*j,2)}, v{V_O}, s[{S_O}:{S_O+3}], s{S_OS} offen {st}".rstrip(),
                    rd=rl("v", ob + 2 * j, 2) + [f"v{V_O}"], pre=(f"s{S_OS}", f"s_mov_b32 s{S_OS}, {n*294912+j*9216}"), cls="ST", tag=("O", n)))
        for h in (range(2) if order == "A" else []):
            cvs = []
            for k in range(4):
                j = 2 * h + (k >> 1); u = 2 * (k & 1)
                a, b = src(u, j), src(u + 1, j)
                o = V(f"v_cvt_pk_bf16_f32 v{ob+4*h+k}, v{a}, v{b}", [f"v{a}", f"v{b}"], [f"v{ob+4*h+k}"])
                cvs.append(o)
            s_ = Op("VM", f"buffer_store_dwordx4 {rg('v',ob+4*h,4)}, v{V_O}, s[{S_O}:{S_O+3}], s{S_OS} offen offset:{64*h} {st}".rstrip(),
                    rd=rl("v", ob + 4 * h, 4) + [f"v{V_O}"], pre=(f"s{S_OS}", f"s_mov_b32 s{S_OS}, {n*294912}"), cls="ST", tag=("O", n))
            res += cvs + [s_]
        for k, o in enumerate(res):
            o.e = e0; o.dl = dl; o.prio = e0 + k * 0.01
            if k: o.after.append((res[k - 1], 0))
        return res
    pf = None
    forder = list(range(NS))
    fqs = [int(t) for t in fq.split(",")] if fq else []
    for n, stp in enumerate(fqs):
        forder.remove(n); forder.insert(forder.index(stp - 1) + 1, n)
    obs = {n: k & 1 for k, n in enumerate(forder)}; obs[NS] = NS & 1
    assert obs[NS - 1] != obs[NS]
    for n in forder:
        e0 = lastM[(n, 3)] + fl0
        if n < len(fqs): e0 = st0[fqs[n]] + fl0
        elif n < Q: e0 += n * 20
        nx = n + 3 if n >= Q else INF
        dl = (st0[nx] - 1) if nx in st0 else END
        if n == NS - 1: e0 = HALF + fl0
        else: dl = min(dl, HALF - 1)
        fl = flush(n, e0, dl)
        if pf: fl[0].after.append((pf[-1], 2))
        pf = fl
        ops += fl
    kp, base = acc(NS)
    ob = V_OUT + (NS & 1) * 8
    res = []
    if pk: res += [V(f"v_pk_mul_f32 {rg('v',base+r,2)}, {rg('v',base+r,2)}, s[{S_RS}:{S_RS+1}]", rl("v", base + r, 2), rl("v", base + r, 2)) for r in (0, 4, 2, 6)]
    for j in range(4):
        res.append(V(f"v_cvt_pk_bf16_f32 v{ob+j}, v{base+j}, v{base+4+j}", [f"v{base+j}", f"v{base+4+j}"], [f"v{ob+j}"]))
    for j in range(4):
        of = 64 * (j >> 1) + 8 * (j & 1) if order == "A" else 0
        so = NS * 294912 + (0 if order == "A" else j * 9216)
        res.append(Op("VM", f"buffer_store_dword v{ob+j}, v{V_OH}, s[{S_O}:{S_O+3}], s{S_OS} offen offset:{of} {st}".rstrip(),
                      rd=[f"v{ob+j}", f"v{V_OH}"], pre=(f"s{S_OS}", f"s_mov_b32 s{S_OS}, {so}"), cls="ST", tag=("O", NS)))
    for k, o in enumerate(res):
        o.e = tail; o.dl = END; o.prio = tail + k * 0.01; o.after.append(((res[k - 1] if k else pf[-1]), 0))
    ops += res
    tailA = flush(NS - 1, 0, 0)

    pend = sorted(ops, key=lambda o: (o.prio, o.id))
    cur = {}
    for o in G[0].ops:
        if o.pre: cur[o.pre[0]] = o.pre[1]
    lastvm = -99; lastdma = -99; lastst = -99
    dspm = dict(map(int, t.split(':')) for t in dsp.split(',')) if dsp else {}
    lastuser = {}
    def urgent0(o, gi): return o.dl - gi <= 2
    def hoistgap(o, gi):
        if not hoist or not o.pre: return None
        for k in range(gi - 1, max(lastuser.get(o.pre[0], B0), B0, gi - 8), -1):
            x = G[k]
            if x.free or k == HALF - 1 or gi >= HALF > k: break
            if x.fragwait or x.bar or x.scal or x.hoisted or x.stamp: continue
            if len(x.ops) >= 2 and hoist == 2: continue
            return k
        return None
    for gi, g in enumerate(G):
        if g.free == "fixed": continue
        room = 2
        sc_used = g.fragwait or g.bar
        if g.bar and not g.free: room -= 1
        m0user = None; nat = 0; osuser = None
        while True:
            pick = None
            for o in pend:
                if o.e > gi: continue
                if g.free:
                    if any(a.gap is None for a, d in o.after): continue
                    pick = o; break
                if any(a.gap is None or a.gap + d > gi for a, d in o.after): continue
                cost = 1
                chg = o.pre and cur.get(o.pre[0]) != o.pre[1] and hoistgap(o, gi) is None
                if chg and sc_used: cost = 2
                if cost > room: continue
                if alone and o.kind == "VM" and not urgent0(o, gi) and (g.ops or g.fragwait or g.bar or g.name.endswith("u0")): continue
                if alone and any(x.kind == "VM" for x in g.ops) and not urgent0(o, gi): continue
                if o.pre and o.pre[0] == "m0" and m0user is not None and m0user != o.pre[1]: continue
                if o.pre and o.pre[0] != "m0" and osuser is not None and osuser != o.pre[1]: continue
                urgent = o.dl - gi <= 2
                if o.cls == "AT" and nat >= 1 and not urgent: continue
                if o.kind == "VM" and gi - lastvm < vmsp and not urgent: continue
                if o.cls == "DMA" and gi - lastdma < dspm.get(o.tag[1], dmasp) and not urgent: continue
                if o.cls == "ST" and gi - lastst < stsp and not urgent: continue
                pick = o; break
            if pick is None: break
            o = pick
            pend.remove(o); o.gap = gi; g.ops.append(o)
            chg = o.pre and cur.get(o.pre[0]) != o.pre[1]
            if chg and not g.free:
                hg = hoistgap(o, gi)
                if hg is not None:
                    G[hg].hoisted = o.pre; chg = False
            if o.pre:
                lastuser[o.pre[0]] = gi
                cur[o.pre[0]] = o.pre[1]
                if o.pre[0] == "m0": m0user = o.pre[1]
                else: osuser = o.pre[1]
            if not g.free:
                room -= 1
                if chg:
                    if sc_used: room -= 1
                    sc_used = True; g.scal = True
            if o.cls == "AT": nat += 1
            if o.kind == "VM": lastvm = gi
            if o.cls == "DMA": lastdma = gi
            if o.cls == "ST": lastst = gi
            if room <= 0 and not g.free: break
    assert not pend, [(o.text, o.e, o.dl) for o in pend[:10]]
    late = [o for o in ops if o.gap > o.dl]
    assert not late, [(o.text, o.gap, o.dl, G[o.gap].name) for o in late[:10]]

    def dropped(o):
        if "s" in drop and o.cls == "ST": return True
        if "d" in drop and o.tag and o.tag[0] == "X" and o.tag[1] >= 2: return True
        if "X" in drop and o.tag and o.tag[0] == "X" and o.gap == 0: return True
        if "v" in drop and o.kind == "V" and o.gap > B0: return True
        if "f" in drop and o.tag and o.tag[0] == "F": return True
        return False
    for gi, g in enumerate(G):
        g.ops = [o for o in g.ops if not dropped(o)]
        if "b" in drop and gi > B0: g.bar = False
    Lz = []
    cur = {}
    for gi, g in enumerate(G):
        if gi == HALF: Lz.append(Op("H", ""))
        if g.mfma: Lz.append(g.mfma)
        if g.stamp: Lz.append(S(stamp_text()))
        if g.free:
            if g.bar: Lz.append(BAR())
            for o in g.ops:
                if hasattr(o, "sets"): cur[o.sets[0]] = o.sets[1]
                if o.pre and cur.get(o.pre[0]) != o.pre[1]:
                    cur[o.pre[0]] = o.pre[1]; Lz.append(Op("S", o.pre[1], wr=[o.pre[0]]))
                Lz.append(o)
        else:
            lst = g.ops
            if len(lst) == 2 and lst[0].pre and lst[0].pre[0] == "m0" and not lst[1].pre and not any(a is lst[0] for a, d in lst[1].after) \
               and not (lst[0].kind == lst[1].kind) and not (set(lst[0].rd) & set(lst[1].wr)):
                lst = [lst[1], lst[0]]
            for o in lst:
                if o.pre and cur.get(o.pre[0]) != o.pre[1]:
                    cur[o.pre[0]] = o.pre[1]; Lz.append(Op("S", o.pre[1], wr=[o.pre[0]]))
            wm = Op("WM", ""); wm.look = list(lst) + ([G[gi + 1].mfma] if gi + 1 < len(G) and G[gi + 1].mfma else [])
            Lz.append(wm)
            if g.bar:
                b = BAR(); Lz.append(b); wm.look.append(b)
            Lz += lst
            if g.hoisted:
                cur[g.hoisted[0]] = g.hoisted[1]; Lz.append(Op("S", g.hoisted[1], wr=[g.hoisted[0]]))
    accs = [(k, o) for k, o in enumerate(Lz) if o.lds]
    barp = [k for k, o in enumerate(Lz) if o.kind == "B"]
    for y in range(len(accs)):
        ky, oy = accs[y]
        bi = bisect.bisect_left(barp, ky) - 1
        for x in range(y):
            kx, ox = accs[x]
            conf = False
            for lx_ in ox.lds:
                for ly in oy.lds:
                    if lx_[0] == ly[0]: continue
                    if lx_[3] and ly[3]: continue
                    if lx_[2] <= ly[1] or ly[2] <= lx_[1]: continue
                    conf = True
            if not conf: continue
            if drop and not (bi >= 0 and barp[bi] > kx): continue
            assert bi >= 0 and barp[bi] > kx, ("LDS race", ox.text, G[ox.gap].name, oy.text, G[oy.gap].name)
            Lz[barp[bi]].needs.append(ox)
    issued = {"VM": 0, "DS": 0}; done = {"VM": -1, "DS": -1}; CAP = {"VM": 63, "DS": 15}
    pendreg = {}
    out = []
    inl = 0
    def needs_of(o):
        n = {"VM": -1, "DS": -1}
        for r in o.rd + o.wr:
            if r in pendreg:
                q, i = pendreg[r]; n[q] = max(n[q], i)
        for x in o.needs:
            if hasattr(x, "qi"): n[x.kind] = max(n[x.kind], x.qi)
        return n
    def dowait(n):
        w = []
        for q, nm in (("VM", "vmcnt"), ("DS", "lgkmcnt")):
            if n[q] > done[q]:
                c = min(issued[q] - 1 - n[q], CAP[q])
                done[q] = issued[q] - 1 - c
                w.append(f"{nm}({c})")
        if w: out.append(Op("S", "s_waitcnt " + " ".join(w)))
        return bool(w)
    for o in Lz:
        if o.kind == "WM":
            n = {"VM": -1, "DS": -1}
            for x in o.look:
                m = needs_of(x)
                for q in n: n[q] = max(n[q], m[q])
            dowait(n); continue
        if dowait(needs_of(o)): inl += 1
        if o.kind in ("VM", "DS"):
            o.qi = issued[o.kind]; issued[o.kind] += 1
            for r in o.wr: pendreg[r] = (o.kind, o.qi)
        out.append(o)
    fin = []
    t = 0
    wV = {}; wM = {}; wS = {}
    nops = 0
    for o in out:
        need = 0
        if o.kind == "M":
            for r in o.rd: need = max(need, wV.get(r, -99) + 3 - t)
        elif o.kind in ("V", "DS", "VM"):
            for r in o.rd + o.wr: need = max(need, wM.get(r, -99) + 10 - t)
            if o.pre and o.pre[0] == "m0": need = max(need, wS.get("m0", -99) + 2 - t)
        if need > 0:
            fin.append(Op("S", f"s_nop {need-1}")); t += need; nops += 1
        if o.kind == "V":
            for r in o.wr: wV[r] = t
        elif o.kind == "M":
            for r in o.wr: wM[r] = t
        elif o.kind == "S":
            for r in o.wr: wS[r] = t
        fin.append(o)
        t += 2 if o.kind == "M" else (0 if o.kind == "H" else 1)
    if verbose:
        print("inline waits", inl, "nops", nops, "instr", len(fin), "bars", bars, "gB", gB, "st0", st0, file=sys.stderr)
        for gi, g in enumerate(G):
            if g.free: print(gi, g.name, len(g.ops), file=sys.stderr)

    L = []
    A = L.append
    A("; @launch grid=(252,1,1) block=(256,1,1) lds=163840")
    A('.amdgcn_target "amdgcn-amd-amdhsa--gfx950"')
    A(".text"); A(f".globl {NAME}")
    if al12: A(".p2align 12")
    A(".p2align 8"); A(f".type {NAME},@function"); A(f"{NAME}:")
    hi = [k for k, o in enumerate(fin) if o.kind == "H"][0]
    fini = "  s_branch L_fin" if stamps else "  s_endpgm"
    for o in fin[:hi]: A(o.text if o.kind == "L" else "  " + o.text)
    A(f"  s_cmp_eq_u32 s{S_NTL}, 18"); A("  s_cbranch_scc1 L_tail18")
    A(f"  s_cmp_eq_u32 s{S_MH}, 1"); A("  s_cbranch_scc1 L_half1")
    for o in fin[hi + 1:]: A("  " + o.text)
    A(fini)
    A("L_half1:")
    if warm == 2: A("  s_cbranch_execz L_wret")
    for o in fin[hi + 1:]: A("  " + (o.alt or o.text))
    A(fini)
    A("L_tail18:")
    if warm == 2: A("  s_cbranch_execz L_wret")
    if stamps and sst != 1: A("  " + [o.text for o in fin[hi + 1:] if "s_mem" in o.text][0])
    A("  s_nop 7")
    for o in tailA:
        if o.pre: A("  " + o.pre[1])
        if not dropped(Op("V", "", cls=o.cls, tag=o.tag)) if o.cls == "ST" else True: A("  " + o.text)
    if stamps:
        A("L_fin:")
        A("  " + stamp_text()); A("  s_waitcnt vmcnt(0)"); A("  " + stamp_text()); A("  " + stamp_text(True))
        n = nst[0]
        if probe:
            C, Kf, idx, wg = map(int, probe.split(","))
            for x in ["s_waitcnt lgkmcnt(0)", "s_cmp_lg_u32 s3, 0", "s_cbranch_scc1 L_end"]: A("  " + x)
            if wg >= 0:
                A(f"  s_cmp_lg_u32 s2, {wg}"); A("  s_cbranch_scc1 L_end")
            rt = idx == n - 1
            b0 = STREGS[0 if rt else 1]
            for x in [f"s_sub_u32 s18, s{STREGS[idx]}, s{b0}", f"s_mul_i32 s18, s18, {Kf}", f"s_add_u32 s18, s18, {C}",
                      f"s_min_u32 s18, s18, {20000 if rt else 400000}"]: A("  " + x)
            A("L_spin:")
            for x in ["s_memrealtime s[20:21]" if rt else "s_memtime s[20:21]", "s_waitcnt lgkmcnt(0)", f"s_sub_u32 s19, s20, s{b0}", "s_cmp_lt_u32 s19, s18",
                      "s_cbranch_scc1 L_spin", "s_endpgm"]: A("  " + x)
        for x in ["s_waitcnt lgkmcnt(0)", "s_cmp_lg_u32 s3, 0", "s_cbranch_scc1 L_end",
                  "s_mov_b32 s20, s16", "s_and_b32 s21, s17, 0xffff", "s_mov_b32 s22, 0x100000", "s_mov_b32 s23, 0x20000",
                  f"s_mul_i32 s18, s2, {n*8}", "v_mov_b32 v2, s18", "s_mov_b64 exec, 1"]: A("  " + x)
        for k in range(n):
            for x in [f"v_mov_b32 v4, s{STREGS[k]}", f"v_mov_b32 v5, s{STREGS[k]+1}",
                      f"buffer_store_dwordx2 v[4:5], v2, s[20:23], 0 offen offset:{8*k}", "s_nop 1"]: A("  " + x)
        A("  s_waitcnt vmcnt(0)")
    A("L_end:"); A("  s_endpgm")
    A('.section .rodata,"a"'); A(".p2align 6"); A(f".amdhsa_kernel {NAME}")
    A(f"  .amdhsa_next_free_vgpr {256 + A_FR + NA*4}")
    A("  .amdhsa_next_free_sgpr 102")
    A("  .amdhsa_accum_offset 256")
    A("  .amdhsa_group_segment_fixed_size 0")
    A("  .amdhsa_kernarg_size 56")
    A("  .amdhsa_user_sgpr_count 2")
    A("  .amdhsa_user_sgpr_kernarg_segment_ptr 1")
    A("  .amdhsa_system_sgpr_workgroup_id_x 1")
    A("  .amdhsa_float_denorm_mode_32 3")
    A(".end_amdhsa_kernel")
    if warm:
        import subprocess, re
        def offsets(lines):
            open("w_.s", "w").write("\n".join(lines) + "\n")
            subprocess.check_call("clang -x assembler -target amdgcn-amd-amdhsa -mcpu=gfx950 -c w_.s -o w_.o", shell=True)
            d = subprocess.check_output("llvm-objdump -d w_.o", shell=True).decode()
            return [int(m.group(1), 16) for m in re.finditer(r"// ([0-9A-F]{12}):", d)]
        for k in range(1, 5):
            T = L + [f"L_w{j}:" for j in range(k, 5)]
            of = offsets(T)
            il = [i for i, x in enumerate(L) if x.startswith("  ") and not x.startswith("  .")]
            assert len(il) == len(of), (len(il), len(of))
            c = [i for i, o in zip(il, of) if o >= 4096 * k + wd]
            if not c: c = [il[-1]]
            tgt = {3: "L_half1", 4: "L_tail18"}.get(k, "L_wret") if warm == 2 else "L_wret"
            L[c[0]:c[0]] = [f"L_w{k}:", f"  s_cbranch_execz {tgt}"]
    return "\n".join(L) + "\n", nst[0]

if __name__ == "__main__":
    ap = argparse.ArgumentParser()
    ap.add_argument("-o", default="k4.s")
    for k, d in dict(H=9, Q=0, D=3, NA=6, vmsp=3, dmasp=3, cpf=7, rotC=1, rts=0, skew=0, wlat=24, bgap=2, fl0=6, dma0=1, ebar=12, bstep=1, xlead=0, stsp=0, QF=0, g2=8, xl=2, sst=0, pp=0, bpos=1, mrat=2, exw=1, bsl=7, szs=5, w2=0, early=0, warm=0, al12=0, wd=0, hoist=0, alone=0, cpm=0, cpp=0, tch=0, tsx=14, tso=16, zc=0, szp=0, pk=0).items():
        ap.add_argument("--" + k, type=int, default=d)
    ap.add_argument("--stamps", action="store_true")
    ap.add_argument("-v", dest="verbose", action="store_true")
    for k, d in dict(st="", lw="", lx="", drop="", ta="0360360", tb="0000", xo="", probe="", order="B", dbg="", mlag="22234567", x2="8:9", dsp="", fq="", xpre="", xpost="", xsl="", m0="556677889", m1="556677999", pw="").items(): ap.add_argument("--" + k, default=d)
    a = vars(ap.parse_args())
    o = a.pop("o")
    s, n = gen(**a)
    open(o, "w").write(s)
    print(o, "lines", s.count("\n"), "stamps", n)
```

```python
import sys, argparse, bisect
NAME = "standalone__w4a16_gemm_dequant__prompt_kernel"
INF = 10 ** 9

def rl(p, b, n): return [f"{p}{b+i}" for i in range(n)]
def rg(p, b, n): return f"{p}[{b}:{b+n-1}]" if n > 1 else f"{p}{b}"

class Op:
    cnt = 0
    def __init__(s, kind, text, rd=(), wr=(), pre=None, lds=None, cls=None, e=0, dl=INF, prio=None, after=(), tag=None):
        s.kind = kind; s.text = text; s.rd = list(rd); s.wr = list(wr); s.pre = pre; s.lds = lds; s.cls = cls
        s.e = e; s.dl = dl; s.prio = dl if prio is None else prio; s.after = list(after); s.tag = tag
        s.gap = None; s.needs = []; s.id = Op.cnt; Op.cnt += 1; s.alt = None

class Gap:
    def __init__(s, mfma=None, free=None, bar=False, name=""):
        s.mfma = mfma; s.free = free; s.bar = bar; s.ops = []; s.name = name; s.stamp = False; s.label = None
        s.fragwait = False; s.scal = False; s.hoisted = None

def gen(H=9, Q=0, D=3, NA=6, vmsp=3, dmasp=3, stamps=False, st="", lw="", lx="", verbose=False, drop='', ta='0360360', tb='0000',
        cpf=7, rotC=1, rts=0, xo="", skew=0, wlat=24, bgap=2, fl0=6, dma0=1, ebar=12, bstep=1, xlead=0, probe='', order="B", dbg='', stsp=0, QF=0, mlag='22234567', x2='8:9', g2=8, xl=2, dsp='', fq='', sst=0, pp=0, xpre='', xpost='', bpos=1, mrat=2, xsl='', m0='556677889', m1='556677999', exw=1, bsl=7, szs=5, w2=0, early=0, warm=0, al12=0, wd=0, hoist=0, alone=0, cpm=0, cpp=0, tch=0, tsx=14, tso=16, zc=0, szp=0, pw='', pk=0, fol=0, fperm='036147258', ordr=''):
    NST = 9; NS = 9
    EXB = 0; TAB = 32768
    PS = [16384, 53248, 90112, 126976]
    if QF: Q = QF; assert H == 9 and Q <= 2
    TS = 4608 if QF else 6144
    def ps(n): return ([2, 3, 1, 0] if QF else [2, 3, 0, 1])[n % 4]
    S_X, S_W, S_S, S_Z, S_O = 20, 24, 28, 32, 36
    S_WOFS, S_XK, S_D9 = 40, 48, 57
    S_M0, S_C24, S_MSK, S_OS, S_NTL, S_MH = 66, 67, 68, 69, 70, 71
    S_RS = 34
    if pk: assert zc and order == "B"
    STREGS = [72, 74, 76, 78, 80, 82, 84, 86, 88, 90, 92, 94, 96, 98]
    V_W, V_X, V_O, V_TR, V_TW, V_EW, V_ER, V_S, V_OH = 2, 3, 4, 5, 6, 7, 8, 9, 0
    V_R = 12
    V_SZ, V_RAW, V_F, V_T = 16, 32, 96, 240
    def raw(p, j): return V_RAW + p * 32 + j * 4
    def F(i, u): return V_F + (i * 4 + u) * 4
    def AF(i, u): return (i * 4 + u) * 4
    A_ACC = 144; A_FR = 144 + 16 * Q
    def fr(f): return A_FR + (f % NA) * 4
    def acc(n): return ("a", A_ACC + 16 * n) if n < Q else ("v", V_RAW + (n % 3) * 16)
    V_OUT = V_RAW + 48
    nst = [0]
    def stamp_text(real=False):
        r = STREGS[nst[0]]; nst[0] += 1
        return f"s_memrealtime s[{r}:{r+1}]" if (real or rts) else f"s_memtime s[{r}:{r+1}]"

    G = []
    def S(t): return Op("S", t)
    def V(t, rd=(), wr=(), **k): return Op("V", t, rd, wr, **k)
    def BAR(): return Op("B", "s_barrier")
    def txt(lines): return [Op("V" if x.startswith("v_") else "S", x) for x in lines]

    def ldW(i, j):
        r = raw(i & 1, j)
        so = "0" if j == 0 else f"s{S_WOFS+j}"
        return Op("VM", f"buffer_load_dwordx4 {rg('v',r,4)}, v{V_W}, s[{S_W}:{S_W+3}], {so} offen {lw}".rstrip(),
                  rd=[f"v{V_W}"], wr=rl("v", r, 4), cls="VM", tag=("W", i, j))
    def ldSZ(m):
        r = V_T + 4 * m
        return [Op("VM", f"buffer_load_dwordx2 {rg('v',r,2)}, v{V_S+m}, s[{S_S}:{S_S+3}], 0 offen", rd=[f"v{V_S+m}"], wr=rl("v", r, 2), cls="VM"),
                Op("VM", f"buffer_load_dwordx2 {rg('v',r+2,2)}, v{V_S+m}, s[{S_Z}:{S_Z+3}], 0 offen", rd=[f"v{V_S+m}"], wr=rl("v", r + 2, 2), cls="VM")][:1 if zc else 2]
    V_X1 = 1; V_X2 = 252
    def ldX(p, i):
        b = PS[ps(p)] + i * 2048
        vx = V_X1 if p == 1 else (V_X2 if (p == 2 and QF == 2) else V_X)
        lds = [("w", b, b + 2048, False), ("w", b + 18432, b + 18432 + 2048, False)]
        return Op("VM", f"buffer_load_dwordx4 v{vx}, s[{S_X}:{S_X+3}], s{S_XK+i} offen {lx} lds".rstrip().replace("  ", " "),
                  rd=[f"v{vx}"], pre=("m0", f"s_add_u32 m0, s{S_M0}, {b}"), lds=lds, cls="DMA", tag=("X", p, i))
    def advW(i): return V(f"v_lshl_add_u32 v{V_W}, s{S_D9+i}, 17, v{V_W}", [f"v{V_W}"], [f"v{V_W}"])
    tabl = lambda k: [(k, TAB, TAB + 4 * TS, True)]
    def prep(m, t):
        r = V_T + 4 * m
        o = []
        for h in range(2):
            o.append(V(f"v_lshlrev_b32 v{t+2*h}, 16, v{r+h}", [f"v{r+h}"], [f"v{t+2*h}"]))
            o.append(V(f"v_and_b32 v{t+2*h+1}, s{S_MSK}, v{r+h}", [f"v{r+h}"], [f"v{t+2*h+1}"]))
        for h in range(0 if zc else 2):
            o.append(V(f"v_lshlrev_b32 v{t+4+2*h}, 16, v{r+2+h}", [f"v{r+2+h}"], [f"v{t+4+2*h}"]))
            o.append(V(f"v_and_b32 v{t+4+2*h+1}, s{S_MSK}, v{r+2+h}", [f"v{r+2+h}"], [f"v{t+4+2*h+1}"]))
        for u in range(4):
            if zc: o.append(V(f"v_mul_f32 v{t+4+u}, {'0xb2000000' if pk else '0xc1000000'}, v{t+u}", [f"v{t+u}"], [f"v{t+4+u}"]))
            else: o.append(V(f"v_mul_f32_e64 v{t+4+u}, -v{t+4+u}, v{t+u}", [f"v{t+4+u}", f"v{t+u}"], [f"v{t+4+u}"]))
        for u in range(4):
            o.append(V(f"v_mul_f32 v{t+u}, s{S_C24}, v{t+u}", [f"v{t+u}"], [f"v{t+u}"]))
        if m == 2 and QF: o.append(S("s_mov_b64 exec, 0xffff"))
        o.append(Op("DS", f"ds_write_b128 v{V_TW}, {rg('v',t,4)} offset:{m*2048}", rd=[f"v{V_TW}"] + rl("v", t, 4), lds=tabl("w")))
        o.append(Op("DS", f"ds_write_b128 v{V_TW}, {rg('v',t+4,4)} offset:{m*2048+256}", rd=[f"v{V_TW}"] + rl("v", t + 4, 4), lds=tabl("w")))
        if m == 2 and QF: o.append(S("s_mov_b64 exec, -1"))
        return o
    def rdSZ(i):
        z = V_SZ + (i & 1) * 8
        return [Op("DS", f"ds_read_b128 {rg('v',z,4)}, v{V_TR} offset:{i*512}", rd=[f"v{V_TR}"], wr=rl("v", z, 4), lds=tabl("r")),
                Op("DS", f"ds_read_b128 {rg('v',z+4,4)}, v{V_TR} offset:{i*512+256}", rd=[f"v{V_TR}"], wr=rl("v", z + 4, 4), lds=tabl("r"))]
    def deq(i, jj):
        p = i & 1; z = V_SZ + p * 8
        fm = []; cv = []
        for j in (2 * jj, 2 * jj + 1):
            for u in (range(0, 4, 2) if pk else []):
                r = raw(p, j) + u
                fm.append(V(f"v_pk_fma_f32 {rg('v',r,2)}, {rg('v',r,2)}, {rg('v',z+u,2)}, {rg('v',z+4+u,2)}",
                            rl("v", r, 2) + rl("v", z + u, 2) + rl("v", z + 4 + u, 2), rl("v", r, 2)))
            for u in ([] if pk else range(4)):
                r = raw(p, j) + u
                fm.append(V(f"v_fma_mix_f32 v{r}, v{r}, v{z+u}, v{z+4+u} op_sel_hi:[1,0,0]", [f"v{r}", f"v{z+u}", f"v{z+4+u}"], [f"v{r}"]))
        for u in range(4):
            a, b = raw(p, 2 * jj) + u, raw(p, 2 * jj + 1) + u
            cv.append(V(f"v_cvt_pk_bf16_f32 v{F(i,u)+jj}, v{a}, v{b}", [f"v{a}", f"v{b}"], [f"v{F(i,u)+jj}"]))
        return fm, cv
    def exW(i):
        b = EXB + (i & 1) * 16384
        return [Op("DS", f"ds_write_b128 v{V_EW}, {rg('v',F(i,u),4)} offset:{b+u*1024}", rd=[f"v{V_EW}"] + rl("v", F(i, u), 4),
                   lds=[("w", b, b + 16384, False)], cls="AT") for u in range(4)]
    def exR(i):
        b = EXB + (i & 1) * 16384
        return [Op("DS", f"ds_read_b128 {rg('a',AF(i,u),4)}, v{V_ER} offset:{b+u*1024}", rd=[f"v{V_ER}"], wr=rl("a", AF(i, u), 4),
                   lds=[("r", b, b + 16384, False)]) for u in range(4)]
    def rdF(f, n, i, h):
        p = ps(n)
        if n == NS: vr = V_R + h; off = PS[p] - PS[2] + i * 2048
        else: vr = V_R + 2 * (p >> 1) + h; off = (p & 1) * 36864 + i * 2048
        a = fr(f); b = PS[p] + i * 2048
        lds = [("r", b, b + 2048, False), ("r", b + 18432, b + 18432 + 2048, False)]
        return Op("DS", f"ds_read_b128 {rg('a',a,4)}, v{vr} offset:{off}", rd=[f"v{vr}"], wr=rl("a", a, 4), lds=lds, tag=("F", f))
    def mfma(n, u, f, i, h, first, uw=None):
        dp, d = acc(n); d += 4 * u
        dd = rg(dp, d, 4)
        def t(uw):
            w = rg('v', F(i, uw), 4) if h == 0 else rg('a', AF(i, uw), 4)
            x = rg('a', fr(f), 4)
            ab = f"{w}, {x}" if order == "A" else f"{x}, {w}"
            return f"v_mfma_f32_16x16x32_bf16 {dd}, {ab}, {'0' if first else dd}"
        wr_ = (rl("v", F(i, u), 4) if h == 0 else rl("a", AF(i, u), 4))
        o = Op("M", t(u), rd=rl("a", fr(f), 4) + wr_ + ([] if first else rl(dp, d, 4)), wr=rl(dp, d, 4))
        if n == NS: o.alt = t(u + 2)
        return o

    if ordr:
        OR = ordr.split(","); assert len(OR) == 7 and all(sorted(x) == list("012345678") for x in OR)
        ta = "".join(x[0] for x in OR); fol = 127
        REL = [[(int(c) - int(x[0])) % 9 for c in x] for x in OR]
    A_ = sum(int(c) << (4 * i) for i, c in enumerate(ta)); B_ = sum(int(c) << (4 * i) for i, c in enumerate(tb))
    rot = ["s_lshl_b32 s40, s15, 2", f"s_lshr_b32 s40, {A_}, s40", "s_and_b32 s40, s40, 15"]
    if B_: rot += ["s_and_b32 s41, s18, 3", "s_lshl_b32 s41, s41, 2", f"s_lshr_b32 s41, {B_}, s41", "s_and_b32 s41, s41, 15", "s_add_u32 s40, s40, s41"]
    if rotC == 1: rot += ["s_add_u32 s40, s40, s14"]
    elif rotC: rot += [f"s_mul_i32 s41, s14, {rotC}", "s_add_u32 s40, s40, s41"]
    if rotC > 1 or (rotC and B_): rot += ["s_mul_i32 s41, s40, 57", "s_lshr_b32 s41, s41, 9", "s_mul_i32 s41, s41, 9", "s_sub_u32 s19, s40, s41"]
    else: rot += ["s_sub_u32 s41, s40, 9", "s_min_u32 s19, s40, s41"]
    P = []
    FP = sum(int(c) << (4 * i) for i, c in enumerate(fperm)); S_T = 32; assert fperm[0] == "0" and (zc and not pk or not fol)
    VQ = 26 if order == "A" else 16
    if stamps: P += [S(stamp_text(True)), S(stamp_text())]
    P += txt(["s_cmp_ge_u32 s2, 252", "s_cbranch_scc1 L_end", "s_load_dwordx8 s[4:11], s[0:1], 0", "s_load_dwordx2 s[12:13], s[0:1], 32"])
    if stamps: P += txt([f"s_load_dwordx2 s[16:17], s[0:1], 48"])
    CP = []
    if cpf:
        cs = 40 if not cpp else 92 if not stamps else 36
        CP0 = txt([f"s_getpc_b64 s[{cs}:{cs+1}]"]) + [Op("L", "L_pc:")] + txt([f"s_and_b32 s{cs+1}, s{cs+1}, 0xffff", f"s_mov_b32 s{cs+2}, L_end-L_pc", f"s_mov_b32 s{cs+3}, 0x20000",
                  *([f"v_lshlrev_b32 v15, {cpf}, v0"] if not cpm else ["s_lshr_b32 s15, s2, 3", "s_lshl_b32 s15, s15, 7", "v_lshl_add_u32 v15, v0, 12, s15"])])
        CP = [Op("VM", f"buffer_load_dword v255, v15, s[{cs}:{cs+3}], 0 offen", rd=["v15"], wr=["v14x"])]
        P += CP0
        if not cpp: P += CP + txt(["s_nop 4"])
    P += txt([
        "v_lshrrev_b32 v16, 6, v0", "v_and_b32 v1, 63, v0", "v_readfirstlane_b32 s3, v16",
        "s_and_b32 s14, s2, 7", "s_lshr_b32 s15, s2, 3", "s_lshl_b32 s18, s14, 2", "s_and_b32 s19, s15, 3", "s_add_u32 s18, s18, s19",
        "s_lshr_b32 s19, s15, 2", "s_and_b32 s40, s14, 3", "s_add_u32 s40, s40, 32", "s_and_b32 s41, s14, 4", "s_add_u32 s41, s41, s15",
        "s_sub_u32 s41, s41, 28", "s_cmp_ge_u32 s15, 28", "s_cselect_b32 s18, s40, s18", "s_cselect_b32 s15, s41, s19",
        *rot,
        *(sum(([f"s_cmp_eq_u32 s15, {r}"] * (r > 0) + [f"s_{'c' if r else ''}mov_b32 s{S_T}, {sum(c << (4*i) for i, c in enumerate(REL[r][:8]))}"] for r in range(7)), [])
          + ["s_lshl_b32 s40, s15, 2", f"s_lshr_b32 s{S_T+1}, {sum(REL[r][8] << (4*r) for r in range(7))}, s40", f"s_and_b32 s{S_T+1}, s{S_T+1}, 15",
             f"s_bfe_u32 s{S_T+2}, s{S_T}, 0x40004"] if ordr else
          [f"s_lshr_b32 s40, {fol}, s15", f"s_mov_b32 s{S_T}, 0x76543210", "s_bitcmp1_b32 s40, 0", f"s_cmov_b32 s{S_T}, {FP & 0xffffffff}",
           f"s_cselect_b32 s{S_T+1}, {FP >> 32}, 8", f"s_cselect_b32 s{S_T+2}, {int(fperm[1])}, 1"] if fol else []),
        f"s_lshr_b32 s{S_MH}, s3, 1", "s_and_b32 s65, s3, 1",
        "s_lshl_b32 s18, s18, 7", "s_lshl_b32 s40, s65, 6", "s_add_u32 s18, s18, s40",
        "v_and_b32 v16, 15, v1", "v_lshrrev_b32 v17, 4, v1",
        *(["v_and_b32 v26, 1, v1", "v_bfe_u32 v27, v1, 2, 2", "v_lshl_or_b32 v26, v27, 1, v26",
        "v_and_b32 v27, 2, v1", "v_lshl_or_b32 v26, v27, 2, v26"] if order == "A" else []),
        f"s_mov_b32 s{S_WOFS+1}, 18432",
        f"s_mul_i32 s40, s{S_MH}, 9216", "s_lshl1_add_u32 s40, s18, s40",
        f"v_lshl_add_u32 v18, v{VQ}, 3, s40",
        *(["v_add_u32 v19, s19, v17"] if not fol else ["v_lshlrev_b32 v27, 2, v17", f"v_bfe_u32 v19, s{S_T}, v27, 4", "v_add_u32 v19, s19, v19"]),
        "v_add_u32 v20, -9, v19", "v_min_u32 v20, v19, v20",
        f"v_mad_u32_u24 v{V_S}, v20, s{S_WOFS+1}, v18",
        "s_mul_i32 s42, s19, 1179648", f"s_mul_i32 s43, s{S_MH}, 589824", "s_lshl2_add_u32 s43, s18, s43", "s_add_u32 s42, s42, s43",
        f"v_mul_u32_u24 v{V_W}, 147456, v17", f"v_lshl_add_u32 v{V_W}, v{VQ}, 4, v{V_W}", f"v_add_u32 v{V_W}, s42, v{V_W}",
        f"s_mov_b32 s{S_W+2}, {576*4608*4}", f"s_mov_b32 s{S_S+2}, {18*4608*2}", *([] if zc else [f"s_mov_b32 s{S_Z+2}, {18*4608*2}", f"s_mov_b32 s{S_Z+3}, 0x20000"]),
        f"s_mov_b32 s{S_W+3}, 0x20000", f"s_mov_b32 s{S_S+3}, 0x20000"])
    P += txt([f"s_mov_b32 s{S_WOFS+k}, {k*18432}" for k in range(2, 8)])
    P += txt([*(["s_cmp_eq_u32 s19, 8", f"s_cselect_b32 s{S_D9+1}, -72, 9"] if not fol else
          [f"s_add_u32 s40, s19, s{S_T+2}", f"s_sub_u32 s{S_D9}, s40, 9", f"s_min_u32 s40, s40, s{S_D9}", f"s_sub_u32 s40, s40, s19", f"s_mul_i32 s{S_D9+1}, s40, 9"]),
        *(["s_mul_i32 s14, s15, 18", "s_min_u32 s40, s15, 2", "s_add_u32 s14, s14, s40", "s_mul_i32 s100, s14, 18432", "s_mul_i32 s101, s14, 147456"] if pw else []),
        "s_waitcnt lgkmcnt(0)",
        *(["s_load_dword vcc_lo, s[8:9], 0"] if "s" in pw else []),
        *(["s_load_dword vcc_lo, s[4:5], s100"] if "x" in pw else []),
        *(["s_load_dword vcc_lo, s[12:13], s101"] if "o" in pw else []),
        *(["s_load_dword vcc_lo, s[10:11], 0"] if "z" in pw else []),
        f"s_mov_b32 s{S_S}, s8", f"s_and_b32 s{S_S+1}, s9, 0xffff",
        *([] if zc else [f"s_mov_b32 s{S_Z}, s10", f"s_and_b32 s{S_Z+1}, s11, 0xffff"]),
        f"s_mov_b32 s{S_W}, s6", f"s_and_b32 s{S_W+1}, s7, 0xffff"])
    szadr = lambda m: txt([*([f"v_add_u32 v19, 4, v19"] if not fol else
                           ["v_add_u32 v27, 16, v27", f"v_bfe_u32 v19, s{S_T}, v27, 4", "v_add_u32 v19, s19, v19"] if m == 1 else
                           [f"s_add_u32 s40, s19, s{S_T+1}", "v_mov_b32 v19, s40"]), "v_add_u32 v20, -9, v19", "v_min_u32 v20, v19, v20",
                           f"v_mad_u32_u24 v{V_S+m}, v20, s{S_WOFS+1}, v18"])
    XO = txt([
        "s_mul_i32 s14, s15, 18", "s_min_u32 s40, s15, 2", "s_add_u32 s14, s14, s40",
        "s_cmp_lt_u32 s15, 2", f"s_cselect_b32 s{S_NTL}, 19, 18",
        f"s_mul_i32 s15, s14, {0 if 'x' in dbg else 18432}",
        f"s_add_u32 s{S_X}, s4, s15", f"s_addc_u32 s{S_X+1}, s5, 0", f"s_and_b32 s{S_X+1}, s{S_X+1}, 0xffff",
        f"s_mul_i32 s{S_X+2}, s{S_NTL}, 18432", f"s_mov_b32 s{S_X+3}, 0x20000",
        f"s_mul_i32 s15, s14, {0 if 'o' in dbg else 147456}",
        f"s_add_u32 s{S_O}, s12, s15", f"s_addc_u32 s{S_O+1}, s13, 0", f"s_and_b32 s{S_O+1}, s{S_O+1}, 0xffff",
        f"s_mul_i32 s{S_O+2}, s{S_NTL}, 147456", f"s_mov_b32 s{S_O+3}, 0x20000",
        ])
    if tch:
        P += XO + txt([f"v_lshlrev_b32 v21, {tsx}, v0", f"v_lshlrev_b32 v22, {tso}, v0"])
        if tch & 1: P += [Op("VM", f"buffer_load_dword v254, v21, s[{S_X}:{S_X+3}], 0 offen", rd=["v21"], wr=["v14y"])]
        if tch & 2: P += [Op("VM", f"buffer_load_dword v253, v22, s[{S_O}:{S_O+3}], 0 offen", rd=["v22"], wr=["v14z"])]
    W0 = [ldW(0, j) for j in range(8)]
    P += W0[:szp] + ldSZ(0) + (CP if cpp == 3 else []) + W0[szp:]
    if stamps and not sst: P += [S(stamp_text())]
    if cpp == 1: P += CP
    P += [advW(1)] + [ldW(1, j) for j in range(8)]
    if cpp == 2: P += CP
    for m in (1, 2): P += szadr(m) + ldSZ(m)
    if not tch: P += XO
    P += txt([
        f"s_mov_b32 s{S_C24}, {'0x7b000000' if pk else '0x4b800000'}", *([f"s_mov_b32 s{S_RS}, 0x4e800000", f"s_mov_b32 s{S_RS+1}, 0x4e800000"] if pk else []), f"s_mov_b32 s{S_MSK}, 0xffff0000",
        f"s_mul_i32 s40, s3, {TS}", f"s_add_u32 s40, s40, {TAB}",
        f"v_lshl_add_u32 v{V_TR}, v16, 4, s40", f"v_lshl_add_u32 v{V_TW}, v17, 9, v{V_TR}",
        "s_lshl_b32 s40, s3, 12", f"v_lshl_add_u32 v{V_EW}, v1, 4, s40", f"v_xor_b32 v{V_ER}, 0x2000, v{V_EW}",
        "v_lshrrev_b32 v21, 3, v1", "v_lshrrev_b32 v22, 4, v1", "v_and_b32 v22, 2, v22", "v_lshrrev_b32 v23, 2, v1", "v_and_b32 v23, 4, v23",
        "v_and_b32 v24, 7, v1", "v_or3_b32 v22, v22, v23, 0", "v_xor_b32 v22, v22, v24",
        "v_mul_u32_u24 v21, 1152, v21", "v_lshl_add_u32 v21, v22, 4, v21",
        f"s_mul_i32 s57, s{S_MH}, 18432", "s_mul_i32 s40, s65, 9216", "s_add_u32 s40, s40, s57",
        f"v_add_u32 v{V_X}, s40, v21", f"v_add_u32 v{V_X1}, 36864, v{V_X}", *([f"v_add_u32 v{V_X2}, 73728, v{V_X}"] if QF else []),
        "s_lshl_b32 s40, s65, 10", f"s_add_u32 s{S_M0}, s40, s57",
        f"s_mul_i32 s40, s{S_MH}, 147456", "s_lshl1_add_u32 s40, s18, s40",
        *([f"v_mul_u32_u24 v{V_O}, 9216, v16", f"v_lshl_add_u32 v{V_O}, v17, 4, v{V_O}"] if order == "A" else
          [f"v_mul_u32_u24 v{V_O}, 36864, v17", f"v_lshl_add_u32 v{V_O}, v16, 3, v{V_O}"]), f"v_add_u32 v{V_O}, s40, v{V_O}",
        f"s_mul_i32 s40, s{S_MH}, {4-147456}", f"v_add_u32 v{V_OH}, s40, v{V_O}",
        "v_lshrrev_b32 v23, 1, v16", "v_and_b32 v23, 2, v23", "v_lshlrev_b32 v24, 1, v16", "v_and_b32 v24, 4, v24",
        f"s_lshl_b32 s40, s{S_MH}, 2", "v_add_u32 v25, s40, v17", "v_xor_b32 v23, v23, v24", "v_xor_b32 v23, v23, v25",
        "v_lshlrev_b32 v23, 4, v23", f"v_lshl_add_u32 v23, v16, 7, v23",
        f"s_add_u32 s40, s57, {PS[0]}",
        f"v_add_u32 v{V_R}, s40, v23", f"v_xor_b32 v{V_R+1}, 64, v{V_R}",
        f"v_add_u32 v{V_R+2}, {PS[2]-PS[0]}, v{V_R}", f"v_add_u32 v{V_R+3}, {PS[2]-PS[0]}, v{V_R+1}"])
    for i in range(2, NST if not fol else 0):
        P += txt([f"s_cmp_eq_u32 s19, {9-i}", f"s_cselect_b32 s{S_D9+i}, -72, 9"])
    P += txt([f"s_lshl_b32 s{S_XK}, s19, 7"])
    for i in range(1, NST):
        if not fol: P += txt([f"s_add_u32 s15, s19, {i}", f"s_sub_u32 s40, s15, 9", "s_min_u32 s15, s15, s40", f"s_lshl_b32 s{S_XK+i}, s15, 7"])
        else:
            a, b = (15, 14) if i & 1 else (14, 15)
            P += txt([f"s_bfe_u32 s{a}, s{S_T}, {0x40000+4*i}" if i < 8 else f"s_mov_b32 s{a}, s{S_T+1}", f"s_add_u32 s{a}, s{a}, s19",
                      f"s_sub_u32 s40, s{a}, 9", f"s_min_u32 s{a}, s{a}, s40", f"s_lshl_b32 s{S_XK+i}, s{a}, 7"])
            if i >= 2: P += txt([f"s_sub_u32 s40, s{a}, s{b}", f"s_mul_i32 s{S_D9+i}, s40, 9"])
    if warm:
        P += txt(["s_mov_b64 exec, 0", "s_cmp_eq_u32 s3, 0", "s_cbranch_scc1 L_w1", "s_cmp_eq_u32 s3, 1", "s_cbranch_scc1 L_w2",
                  "s_cmp_eq_u32 s3, 2", "s_cbranch_scc1 L_w3", "s_branch L_w4"]) + [Op("L", "L_wret:")] + txt(["s_mov_b64 exec, -1"])
    P += prep(0, F(8, 0)) + rdSZ(0) + rdSZ(1)
    xunits = []
    if Q == 2: xunits = [(p, i) for i in range(9) for p in (0, 1)]
    else: xunits = [(p, i) for p in (0, 1) for i in range(9)]
    xafter = {}
    if not xo: xo = "8:18"
    for t in xo.split(","):
        k, n = map(int, t.split(":")); xafter[k] = n
    assert sum(xafter.values()) <= 18
    xq = list(xunits)
    cvdone = {}; first = True; lastVM = None
    def takeX(k):
        r = [ldX(*xq.pop(0)) for _ in range(xafter.get(k, 0))]
        return r
    F0 = 0; seenM = set()
    if QF:
        xq = []; xafter = {}
        x2q = [(Q, i) for i in range(9)]
        x2after = dict(map(int, t.split(":")) for t in x2.split(","))
        def Mblock(k, ex):
            nonlocal F0
            fs = [(n, h) for h in range(2) for n in range(Q)]
            rd = [rdF(F0 + j, n, k, h) for j, (n, h) in enumerate(fs)]
            r = rd[:Q] + ex + rd[Q:]
            for j, (n, h) in enumerate(fs):
                r += [mfma(n, u, F0 + j, k, h, k == 0 and h == 0) for u in range(4)]
            F0 += len(fs)
            if "M" in drop: r = ex
            return r
        if not pp:
            for k in range(xl): P += [ldX(p, k) for p in range(Q)]
    left = [(8, 0), (8, 1)]
    if pp == 2:
        xq = [(p, i) for i in range(9) for p in range(Q)] + [(Q, i) for i in range(9)] if QF else [(p, i) for p in (0, 1) for i in range(9)]
        x2q = []
        NT = 74
        st1 = S(stamp_text()) if stamps and not sst else None
        SL = [dict(a=[], v=[], c=[], l=[], x=[], w=[], b=[], r=[], m=[]) for _ in range(NT + 16)]
        for i in range(NST):
            for jj in range(4):
                fm, cv = deq(i, jj)
                hf = len(fm) // 2
                if w2 and i >= w2: fm[0].rd = fm[0].rd + fm[hf].rd
                SL[8 * i + 2 * jj]["v"] += fm[:hf]; SL[8 * i + 2 * jj + 1]["v"] += fm[hf:]
                SL[8 * i + 2 * jj + 2]["c"] += cv
                if i + 2 < NST:
                    SL[8 * i + 2 * jj + 2]["l"].append(ldW(i + 2, 2 * jj)); SL[8 * i + 2 * jj + 3]["l"].append(ldW(i + 2, 2 * jj + 1))
            if i + 2 < NST:
                SL[8 * i + 2]["a"].append(advW(i + 2))
                z = rdSZ(i + 2); SL[8 * (i + 1) + szs]["r"].append(z[0]); SL[8 * (i + 1) + szs + 1]["r"].append(z[1])
            for u, o in enumerate(exW(i)): SL[(8 * (i + 1) + exw + u) if i < 8 else 72]["w"].append(o)
            if i < 8:
                SL[8 * (i + 1) + bsl]["b"].append(BAR())
                if stamps and (sst == 1 or (QF and i == 4 and not sst)): SL[8 * (i + 1) + bsl]["b"].append(S(stamp_text()))
                for u, o in enumerate(exR(i)): SL[min(8 * (i + 1) + bsl + 1 + u, 72 if i == 7 else 99)]["r"].append(o)
        SL[8 + 3]["w"] += prep(1, F(7, 0)); SL[8 + 6]["w"] += prep(2, F(6, 0))
        for t in (xsl.split(",") if xsl else []):
            a, b, c = map(int, t.split(":"))
            for k in range(c): SL[a + b * k]["x"].append(None)
        for sl in SL:
            sl["x"] = [ldX(*xq.pop(0)) for _ in sl["x"]]
        if QF:
            left = []
            for stg in range(1, 10):
                kh = sorted([(k, 0) for k in range(9) if int(m0[k]) == stg] + [(k, 1) for k in range(9) if int(m1[k]) == stg],
                            key=lambda t: (t[0] + t[1] * 1.5 if t[0] + t[1] + 1 >= stg else t[0] + t[1] * 0.5))
                if stg == 9: left = kh; break
                if "M" in drop: continue
                fs = [(k, n, h) for (k, h) in kh for n in range(Q)]
                for (k, n, h) in fs: assert stg >= k + 1 + h
                if not fs: continue
                t0 = 8 * stg + bsl + 1 - 8
                rd = [rdF(F0 + j, n, k, h) for j, (k, n, h) in enumerate(fs)]
                SL[t0]["r"] = rd[:2] + SL[t0]["r"]
                M = []
                for j, (k, n, h) in enumerate(fs):
                    g4 = [mfma(n, u, F0 + j, k, h, (n not in seenM)) for u in range(4)]
                    seenM.add(n)
                    if j + 2 < len(fs): g4.insert(1, rd[j + 2])
                    M.append(g4)
                F0 += len(fs)
                for j, g4 in enumerate(M): SL[t0 + 1 + (j * 7) // len(M)]["m"] += g4
        for t, sl in enumerate(SL):
            if t == 0 and stamps and not sst: sl["v"].append(st1)
            T = sl["a"] + sl["v"] + sl["c"] + sl["l"][:1] + sl["r"] + sl["w"] + sl["l"][1:] + sl["x"]
            if hoist and sl["x"] and len(T) > len(sl["x"]) + 1:
                hp = Op("S", sl["x"][0].pre[1], wr=["m0"]); hp.sets = sl["x"][0].pre
                T.insert(len(T) - len(sl["x"]) - 1, hp)
            M = sl["m"]
            c = 0
            while T:
                P.append(T.pop(0)); c += 1
                if c % mrat == 0 and M:
                    P.append(M.pop(0))
                    if M and M[0].kind == "DS": P.append(M.pop(0))
            P += M + sl["b"]
    elif pp:
        assert H == 9
        xq = [(p, i) for i in range(9) for p in range(Q)] + [(Q, i) for i in range(9)] if QF else [(p, i) for p in (0, 1) for i in range(9)]
        x2q = []
        dd = lambda t: dict(map(int, u.split(":")) for u in t.split(",")) if t else {}
        xa, xb = dd(xpre), dd(xpost)
        popx = lambda n: [ldX(*xq.pop(0)) for _ in range(n)]
        for i in range(NST):
            P += popx(xa.get(i, 0))
            if i + 2 < NST: P.append(advW(i + 2))
            grp = []
            for jj in range(4):
                fm, cv = deq(i, jj)
                gq = list(fm)
                if first and stamps and not sst: gq += [S(stamp_text())]
                first = False
                gq += cv
                if i + 2 < NST: gq += [ldW(i + 2, 2 * jj), ldW(i + 2, 2 * jj + 1)]
                grp.append(gq)
            for gq in grp[:bpos]: P += gq
            T = sum(grp[bpos:], [])
            M = []
            if i >= 1:
                P += [BAR()]
                if stamps and (sst or (QF and i == 5)): P += [S(stamp_text())]
                ex = exR(i - 1)
                fs = [(k, n, h) for k in range(8) if QF and int(mlag[k]) == i and "M" not in drop for h in range(2) for n in range(Q)]
                for (k, n, h) in fs: assert k < i
                rd = [rdF(F0 + j, n, k, h) for j, (k, n, h) in enumerate(fs)]
                nl = Q if (fs and fs[0][0] == i - 1) else min(NA, len(fs))
                P += rd[:nl] + ex + rd[nl:NA]
                for j, (k, n, h) in enumerate(fs):
                    M += [mfma(n, u, F0 + j, k, h, k == 0 and h == 0) for u in range(4)]
                    if j + NA < len(fs): M.append(rd[j + NA])
                F0 += len(fs)
            c = 0
            while T:
                P.append(T.pop(0)); c += 1
                if c % mrat == 0 and M:
                    P.append(M.pop(0))
                    if M and M[0].kind == "DS": P.append(M.pop(0))
            P += exW(i)
            P += popx(xb.get(i, 0))
            if i == 1: P += prep(1, F(7, 0)) + prep(2, F(6, 0))
            if i + 2 < NST: P += rdSZ(i + 2)
            P += M
    else: P += takeX(1)
    for i in range(0 if pp else H):
        if QF and i + xl < NST: P += [ldX(p, i + xl) for p in range(Q)]
        if i + 2 < NST: P.append(advW(i + 2))
        for jj in range(4):
            fm, cv = deq(i, jj)
            P += fm
            if first and stamps and not sst: P += [S(stamp_text())]
            first = False
            P += cv
            cvdone[(i, jj)] = cv[-1]
            if i + 2 < NST: P += [ldW(i + 2, 2 * jj), ldW(i + 2, 2 * jj + 1)]
        P += exW(i)
        if i + 2 < NST: P += takeX(i + 2)
        if i == 1: P += prep(1, F(7, 0)) + prep(2, F(6, 0))
        if i + 2 < NST: P += rdSZ(i + 2)
        if QF:
            P += [ldX(*x2q.pop(0)) for _ in range(x2after.get(i + 2, 0))]
            if i < H - 1:
                P += [BAR()]
                if stamps and (i == 4 or sst): P += [S(stamp_text())]
                ex = exR(i)
                for k in range(8):
                    if int(mlag[k]) == i:
                        if k == i: P += Mblock(k, ex); ex = []
                        else: P += Mblock(k, [])
                P += ex
        elif i < H - 1: P += [BAR()] + ([S(stamp_text())] if sst and stamps else []) + exR(i)
    lastVM = [o for o in P if o.kind == "VM"][-1]
    g = Gap(free="fixed", name="prologue"); g.ops = P
    for o in P: o.gap = 0
    G.append(g)

    ops = []
    g = Gap(free="open", bar=True, name="B0"); B0 = len(G); G.append(g)
    if stamps: g.stamp = True
    seq = []
    if QF:
        assert not x2q
        seq = [(n, k, h) for (k, h) in left for n in range(Q)]
    elif Q:
        order1 = []
        for i in range(NST + skew):
            if i < NST: order1.append((i, 0))
            if 0 <= i - skew: order1.append((i - skew, 1))
        for (i, h) in order1:
            for n in range(Q): seq.append((n, i, h))
    for n in range(Q, NS + 1):
        for i in range(NST):
            for h in range(2): seq.append((n, i, h))
    firstuse = {}; lastuse = {}; lastM = {}; st0 = {}; fu = {}
    seen = set(range(QF))
    for f, (n, i, h) in enumerate(seq, F0):
        if n not in st0: st0[n] = len(G)
        nu = 2 if n == NS else 4
        for u in range(nu):
            gp = Gap(mfma(n, u, f, i, h, n not in seen), name=f"n{n}i{i}h{h}u{u}")
            gp.fragwait = (u == nu - 1)
            if u == 0:
                firstuse[f] = len(G); fu.setdefault((i, h), len(G))
            lastuse[f] = len(G); lastM[(n, u)] = len(G)
            G.append(gp)
        seen.add(n)
    HALF = st0[NS]
    tail = len(G); G.append(Gap(free="open", name="tail"))
    END = tail
    bars = [B0]
    gB = {}
    for n in range(max(Q, 1), NS + 1):
        gB[n] = st0[n] - 4 * D - bgap
        if QF and n == Q: gB[n] = st0[n] - g2
        bars.append(gB[n])
    if Q and not QF:
        for i in range(bstep, NST, bstep):
            b = fu[(i, 0)] - 4 * D - bgap
            if b > B0 + 2: bars.append(b)
    bars = sorted(set(bars))
    for b in bars: G[b].bar = True
    def barle(g): return bars[bisect.bisect_right(bars, g) - 1]
    for n in range(0, max(Q, 1)): gB[n] = B0
    if stamps and not sst:
        for n in ((max(Q, 1), 3, 6, NS) if not QF else (Q, 6, NS)): G[st0[n]].stamp = True
    if stamps and sst == 2:
        for n in range(2, NS + 1): G[st0[n]].stamp = True
    for o in exR(H - 1):
        o.e = B0; o.dl = fu[(H - 1, 1)] - 6; o.prio = o.dl - 50; ops.append(o)
    prevF = None
    newR = []
    for f, (n, i, h) in enumerate(seq, F0):
        o = rdF(f, n, i, h)
        if n == NS: d4 = 2 * (D + 1)
        else: d4 = 4 * D
        e = firstuse[f] - d4
        gb = gB[n] if (n >= Q or QF) else barle(fu[(i, 0)] - 4 * D)
        e = max(e, gb)
        if f - NA >= F0: e = max(e, lastuse[f - NA])
        o.dl = firstuse[f] - 1
        o.e = min(e, o.dl); o.prio = -1000 + f
        if prevF: o.after.append((prevF, 0))
        if n == NS - 2 and i == NST - 1 and h == 1: lastA = o
        if n == NS and not newR:
            for hh in range(2):
                a = V(f"v_xor_b32 v{V_R+hh}, v{V_R+2+hh}, v{V_T}", [f"v{V_R+2+hh}", f"v{V_T}"], [f"v{V_R+hh}"])
                newR.append(a)
        if n == NS: o.after += [(a, 0) for a in newR]
        prevF = o
        ops.append(o)
    for hh, a in enumerate(newR):
        a.text = f"v_subrev_u32 v{V_R+hh}, s57, v{V_R+2+hh}"; a.rd = [f"v{V_R+2+hh}"]
        a.e = st0[NS - 1]; a.dl = gB[NS]; a.prio = 0; a.after.append((lastA, 0)); ops.append(a)
    prev = lastVM
    szr = {}
    stream = []
    for i in range(H, NST):
        wl = None
        if i >= H + 2:
            a = advW(i); a.after.append((prev, 0)); a.e = B0 + 1; a.dl = fu[(i, 0)]; a.prio = -300; ops.append(a); prev = a
            wl = []
            for j in range(8):
                o = ldW(i, j); o.e = B0 + 1; o.dl = fu[(i, 0)]; o.prio = -300
                o.after += [(prev, 0), (cvdone[(i - 2, j // 2)], 0)]; prev = o
                ops.append(o); wl.append(o)
            for o in takeX(i):
                o.e = B0 + 1; o.prio = -300; o.after.append((prev, 0)); prev = o
                p_, i_ = o.tag[1:]
                o.dl = (barle(fu[(i_, 0)] - 4 * D) if p_ < Q else gB[p_]) - 1
                ops.append(o)
        pv = None
        eb = barle(fu[(i, 1)] - ebar)
        for jj in range(4):
            fm, cv = deq(i, jj)
            for o in fm + cv:
                o.e = B0 + 1 + (xlead if i == H else 0); o.dl = min(fu[(i, 0)] - 2, eb - 6); o.prio = o.dl
                if wl: o.after.append((wl[2 * jj + 1], wlat))
                if pv: o.after.append((pv, 0))
                pv = o
                for z in szr.get(i, []): o.after.append((z, 4))
                ops.append(o)
            cvdone[(i, jj)] = cv[-1]; lf = fm[-1]
        ew = exW(i)
        for k, o in enumerate(ew):
            o.e = B0 + 1; o.dl = eb - 1; o.prio = o.dl - 20; o.after.append((pv, 0))
            if k: o.after.append((ew[k - 1], 1))
            o.after.append((exr2[i - 2] if i - 2 >= H else None, 0)) if False else None
        ops += ew
        er = exR(i)
        for o in er:
            o.e = eb; o.dl = fu[(i, 1)] - 4; o.prio = o.dl - 50
        ops += er
        if i + 2 < NST:
            z = rdSZ(i + 2)
            for o in z:
                o.e = B0 + 1; o.dl = fu[(i + 2, 0)]; o.prio = -200; o.after.append((lf, 0))
            szr[i + 2] = z; ops += z
    for (p_, i_) in xq:
        o = ldX(p_, i_); o.e = B0 + 1; o.prio = -300; o.after.append((prev, 0)); prev = o
        o.dl = (barle(fu[(i_, 0)] - 4 * D) if p_ < Q else gB[p_]) - 1
        ops.append(o)
    for p in range((QF + 1) if QF else 2, NS + 1):
        inc = 73728 if p == 2 else 36864
        if QF:
            if p == 3 and QF == 2: inc = 3 * 36864
            eg = B0 if p == Q + 1 else gB[p - 2]
        elif p <= 3:
            eg = B0 if H == NST and p == 2 else None
            if eg is None:
                last = max([B0] + [barle(fu[(i, 1)] - ebar) for i in range(H, NST)])
                later = [b for b in bars if b > last]
                eg = later[0] if (H < NST or p == 3) else last
                eg = max(eg, gB[p - 2])
        else:
            eg = gB[max(p - 2, Q if p - 4 < Q else 0)]
            if p - 4 < Q: eg = gB[Q + 1] if p - 2 <= Q else eg
        a = V(f"v_add_u32 v{V_X}, {inc}, v{V_X}", [f"v{V_X}"], [f"v{V_X}"]); a.after.append((prev, 0)); a.prio = -400; a.e = eg - 2
        ops.append(a); prev = a
        eg2 = eg
        if early and QF and p - 3 >= Q: eg = gB[p - 3]; a.e = eg - 2
        for i in range(9):
            o = ldX(p, i); o.e = (eg if i < early else eg2) + dma0; o.dl = gB[p] - 1; o.prio = o.e - 300
            o.after.append((prev, 0)); prev = o
            ops.append(o)
    lastst = None; lastcv = {}
    def flush(n, e0, dl, sched=True):
        kp, base = acc(n)
        ob = V_OUT + obs[n] * 8
        res = []
        src = lambda u, j: base + 4 * u + j
        rds = {}
        if kp == "a":
            for u in range(4):
                for j in range(4):
                    o = V(f"v_accvgpr_read_b32 v{V_SZ+4*u+j}, a{base+4*u+j}", [f"a{base+4*u+j}"], [f"v{V_SZ+4*u+j}"])
                    rds[(u, j)] = o; res.append(o)
            src = lambda u, j: V_SZ + 4 * u + j
        def rescale(r): return V(f"v_pk_mul_f32 {rg('v',r,2)}, {rg('v',r,2)}, s[{S_RS}:{S_RS+1}]", rl("v", r, 2), rl("v", r, 2))
        for j in (range(4) if order == "B" else []):
            if pk and j % 2 == 0: res += [rescale(src(u, j)) for u in range(4)]
            for k in range(2):
                a, b = src(2 * k, j), src(2 * k + 1, j)
                res.append(V(f"v_cvt_pk_bf16_f32 v{ob+2*j+k}, v{a}, v{b}", [f"v{a}", f"v{b}"], [f"v{ob+2*j+k}"]))
            res.append(Op("VM", f"buffer_store_dwordx2 {rg('v',ob+2*j,2)}, v{V_O}, s[{S_O}:{S_O+3}], s{S_OS} offen {st}".rstrip(),
                    rd=rl("v", ob + 2 * j, 2) + [f"v{V_O}"], pre=(f"s{S_OS}", f"s_mov_b32 s{S_OS}, {n*294912+j*9216}"), cls="ST", tag=("O", n)))
        for h in (range(2) if order == "A" else []):
            cvs = []
            for k in range(4):
                j = 2 * h + (k >> 1); u = 2 * (k & 1)
                a, b = src(u, j), src(u + 1, j)
                o = V(f"v_cvt_pk_bf16_f32 v{ob+4*h+k}, v{a}, v{b}", [f"v{a}", f"v{b}"], [f"v{ob+4*h+k}"])
                cvs.append(o)
            s_ = Op("VM", f"buffer_store_dwordx4 {rg('v',ob+4*h,4)}, v{V_O}, s[{S_O}:{S_O+3}], s{S_OS} offen offset:{64*h} {st}".rstrip(),
                    rd=rl("v", ob + 4 * h, 4) + [f"v{V_O}"], pre=(f"s{S_OS}", f"s_mov_b32 s{S_OS}, {n*294912}"), cls="ST", tag=("O", n))
            res += cvs + [s_]
        for k, o in enumerate(res):
            o.e = e0; o.dl = dl; o.prio = e0 + k * 0.01
            if k: o.after.append((res[k - 1], 0))
        return res
    pf = None
    forder = list(range(NS))
    fqs = [int(t) for t in fq.split(",")] if fq else []
    for n, stp in enumerate(fqs):
        forder.remove(n); forder.insert(forder.index(stp - 1) + 1, n)
    obs = {n: k & 1 for k, n in enumerate(forder)}; obs[NS] = NS & 1
    assert obs[NS - 1] != obs[NS]
    for n in forder:
        e0 = lastM[(n, 3)] + fl0
        if n < len(fqs): e0 = st0[fqs[n]] + fl0
        elif n < Q: e0 += n * 20
        nx = n + 3 if n >= Q else INF
        dl = (st0[nx] - 1) if nx in st0 else END
        if n == NS - 1: e0 = HALF + fl0
        else: dl = min(dl, HALF - 1)
        fl = flush(n, e0, dl)
        if pf: fl[0].after.append((pf[-1], 2))
        pf = fl
        ops += fl
    kp, base = acc(NS)
    ob = V_OUT + (NS & 1) * 8
    res = []
    if pk: res += [V(f"v_pk_mul_f32 {rg('v',base+r,2)}, {rg('v',base+r,2)}, s[{S_RS}:{S_RS+1}]", rl("v", base + r, 2), rl("v", base + r, 2)) for r in (0, 4, 2, 6)]
    for j in range(4):
        res.append(V(f"v_cvt_pk_bf16_f32 v{ob+j}, v{base+j}, v{base+4+j}", [f"v{base+j}", f"v{base+4+j}"], [f"v{ob+j}"]))
    for j in range(4):
        of = 64 * (j >> 1) + 8 * (j & 1) if order == "A" else 0
        so = NS * 294912 + (0 if order == "A" else j * 9216)
        res.append(Op("VM", f"buffer_store_dword v{ob+j}, v{V_OH}, s[{S_O}:{S_O+3}], s{S_OS} offen offset:{of} {st}".rstrip(),
                      rd=[f"v{ob+j}", f"v{V_OH}"], pre=(f"s{S_OS}", f"s_mov_b32 s{S_OS}, {so}"), cls="ST", tag=("O", NS)))
    for k, o in enumerate(res):
        o.e = tail; o.dl = END; o.prio = tail + k * 0.01; o.after.append(((res[k - 1] if k else pf[-1]), 0))
    ops += res
    tailA = flush(NS - 1, 0, 0)

    pend = sorted(ops, key=lambda o: (o.prio, o.id))
    cur = {}
    for o in G[0].ops:
        if o.pre: cur[o.pre[0]] = o.pre[1]
    lastvm = -99; lastdma = -99; lastst = -99
    dspm = dict(map(int, t.split(':')) for t in dsp.split(',')) if dsp else {}
    lastuser = {}
    def urgent0(o, gi): return o.dl - gi <= 2
    def hoistgap(o, gi):
        if not hoist or not o.pre: return None
        for k in range(gi - 1, max(lastuser.get(o.pre[0], B0), B0, gi - 8), -1):
            x = G[k]
            if x.free or k == HALF - 1 or gi >= HALF > k: break
            if x.fragwait or x.bar or x.scal or x.hoisted or x.stamp: continue
            if len(x.ops) >= 2 and hoist == 2: continue
            return k
        return None
    for gi, g in enumerate(G):
        if g.free == "fixed": continue
        room = 2
        sc_used = g.fragwait or g.bar
        if g.bar and not g.free: room -= 1
        m0user = None; nat = 0; osuser = None
        while True:
            pick = None
            for o in pend:
                if o.e > gi: continue
                if g.free:
                    if any(a.gap is None for a, d in o.after): continue
                    pick = o; break
                if any(a.gap is None or a.gap + d > gi for a, d in o.after): continue
                cost = 1
                chg = o.pre and cur.get(o.pre[0]) != o.pre[1] and hoistgap(o, gi) is None
                if chg and sc_used: cost = 2
                if cost > room: continue
                if alone and o.kind == "VM" and not urgent0(o, gi) and (g.ops or g.fragwait or g.bar or g.name.endswith("u0")): continue
                if alone and any(x.kind == "VM" for x in g.ops) and not urgent0(o, gi): continue
                if o.pre and o.pre[0] == "m0" and m0user is not None and m0user != o.pre[1]: continue
                if o.pre and o.pre[0] != "m0" and osuser is not None and osuser != o.pre[1]: continue
                urgent = o.dl - gi <= 2
                if o.cls == "AT" and nat >= 1 and not urgent: continue
                if o.kind == "VM" and gi - lastvm < vmsp and not urgent: continue
                if o.cls == "DMA" and gi - lastdma < dspm.get(o.tag[1], dmasp) and not urgent: continue
                if o.cls == "ST" and gi - lastst < stsp and not urgent: continue
                pick = o; break
            if pick is None: break
            o = pick
            pend.remove(o); o.gap = gi; g.ops.append(o)
            chg = o.pre and cur.get(o.pre[0]) != o.pre[1]
            if chg and not g.free:
                hg = hoistgap(o, gi)
                if hg is not None:
                    G[hg].hoisted = o.pre; chg = False
            if o.pre:
                lastuser[o.pre[0]] = gi
                cur[o.pre[0]] = o.pre[1]
                if o.pre[0] == "m0": m0user = o.pre[1]
                else: osuser = o.pre[1]
            if not g.free:
                room -= 1
                if chg:
                    if sc_used: room -= 1
                    sc_used = True; g.scal = True
            if o.cls == "AT": nat += 1
            if o.kind == "VM": lastvm = gi
            if o.cls == "DMA": lastdma = gi
            if o.cls == "ST": lastst = gi
            if room <= 0 and not g.free: break
    assert not pend, [(o.text, o.e, o.dl) for o in pend[:10]]
    late = [o for o in ops if o.gap > o.dl]
    assert not late, [(o.text, o.gap, o.dl, G[o.gap].name) for o in late[:10]]

    def dropped(o):
        if "s" in drop and o.cls == "ST": return True
        if "d" in drop and o.tag and o.tag[0] == "X" and o.tag[1] >= 2: return True
        if "X" in drop and o.tag and o.tag[0] == "X" and o.gap == 0: return True
        if "v" in drop and o.kind == "V" and o.gap > B0: return True
        if "f" in drop and o.tag and o.tag[0] == "F": return True
        return False
    for gi, g in enumerate(G):
        g.ops = [o for o in g.ops if not dropped(o)]
        if "b" in drop and gi > B0: g.bar = False
    Lz = []
    cur = {}
    for gi, g in enumerate(G):
        if gi == HALF: Lz.append(Op("H", ""))
        if g.mfma: Lz.append(g.mfma)
        if g.stamp: Lz.append(S(stamp_text()))
        if g.free:
            if g.bar: Lz.append(BAR())
            for o in g.ops:
                if hasattr(o, "sets"): cur[o.sets[0]] = o.sets[1]
                if o.pre and cur.get(o.pre[0]) != o.pre[1]:
                    cur[o.pre[0]] = o.pre[1]; Lz.append(Op("S", o.pre[1], wr=[o.pre[0]]))
                Lz.append(o)
        else:
            lst = g.ops
            if len(lst) == 2 and lst[0].pre and lst[0].pre[0] == "m0" and not lst[1].pre and not any(a is lst[0] for a, d in lst[1].after) \
               and not (lst[0].kind == lst[1].kind) and not (set(lst[0].rd) & set(lst[1].wr)):
                lst = [lst[1], lst[0]]
            for o in lst:
                if o.pre and cur.get(o.pre[0]) != o.pre[1]:
                    cur[o.pre[0]] = o.pre[1]; Lz.append(Op("S", o.pre[1], wr=[o.pre[0]]))
            wm = Op("WM", ""); wm.look = list(lst) + ([G[gi + 1].mfma] if gi + 1 < len(G) and G[gi + 1].mfma else [])
            Lz.append(wm)
            if g.bar:
                b = BAR(); Lz.append(b); wm.look.append(b)
            Lz += lst
            if g.hoisted:
                cur[g.hoisted[0]] = g.hoisted[1]; Lz.append(Op("S", g.hoisted[1], wr=[g.hoisted[0]]))
    accs = [(k, o) for k, o in enumerate(Lz) if o.lds]
    barp = [k for k, o in enumerate(Lz) if o.kind == "B"]
    for y in range(len(accs)):
        ky, oy = accs[y]
        bi = bisect.bisect_left(barp, ky) - 1
        for x in range(y):
            kx, ox = accs[x]
            conf = False
            for lx_ in ox.lds:
                for ly in oy.lds:
                    if lx_[0] == ly[0]: continue
                    if lx_[3] and ly[3]: continue
                    if lx_[2] <= ly[1] or ly[2] <= lx_[1]: continue
                    conf = True
            if not conf: continue
            if drop and not (bi >= 0 and barp[bi] > kx): continue
            assert bi >= 0 and barp[bi] > kx, ("LDS race", ox.text, G[ox.gap].name, oy.text, G[oy.gap].name)
            Lz[barp[bi]].needs.append(ox)
    issued = {"VM": 0, "DS": 0}; done = {"VM": -1, "DS": -1}; CAP = {"VM": 63, "DS": 15}
    pendreg = {}
    out = []
    inl = 0
    def needs_of(o):
        n = {"VM": -1, "DS": -1}
        for r in o.rd + o.wr:
            if r in pendreg:
                q, i = pendreg[r]; n[q] = max(n[q], i)
        for x in o.needs:
            if hasattr(x, "qi"): n[x.kind] = max(n[x.kind], x.qi)
        return n
    def dowait(n):
        w = []
        for q, nm in (("VM", "vmcnt"), ("DS", "lgkmcnt")):
            if n[q] > done[q]:
                c = min(issued[q] - 1 - n[q], CAP[q])
                done[q] = issued[q] - 1 - c
                w.append(f"{nm}({c})")
        if w: out.append(Op("S", "s_waitcnt " + " ".join(w)))
        return bool(w)
    for o in Lz:
        if o.kind == "WM":
            n = {"VM": -1, "DS": -1}
            for x in o.look:
                m = needs_of(x)
                for q in n: n[q] = max(n[q], m[q])
            dowait(n); continue
        if dowait(needs_of(o)): inl += 1
        if o.kind in ("VM", "DS"):
            o.qi = issued[o.kind]; issued[o.kind] += 1
            for r in o.wr: pendreg[r] = (o.kind, o.qi)
        out.append(o)
    fin = []
    t = 0
    wV = {}; wM = {}; wS = {}
    nops = 0
    for o in out:
        need = 0
        if o.kind == "M":
            for r in o.rd: need = max(need, wV.get(r, -99) + 3 - t)
        elif o.kind in ("V", "DS", "VM"):
            for r in o.rd + o.wr: need = max(need, wM.get(r, -99) + 10 - t)
            if o.pre and o.pre[0] == "m0": need = max(need, wS.get("m0", -99) + 2 - t)
        if need > 0:
            fin.append(Op("S", f"s_nop {need-1}")); t += need; nops += 1
        if o.kind == "V":
            for r in o.wr: wV[r] = t
        elif o.kind == "M":
            for r in o.wr: wM[r] = t
        elif o.kind == "S":
            for r in o.wr: wS[r] = t
        fin.append(o)
        t += 2 if o.kind == "M" else (0 if o.kind == "H" else 1)
    if verbose:
        print("inline waits", inl, "nops", nops, "instr", len(fin), "bars", bars, "gB", gB, "st0", st0, file=sys.stderr)
        for gi, g in enumerate(G):
            if g.free: print(gi, g.name, len(g.ops), file=sys.stderr)

    L = []
    A = L.append
    A("; @launch grid=(252,1,1) block=(256,1,1) lds=163840")
    A('.amdgcn_target "amdgcn-amd-amdhsa--gfx950"')
    A(".text"); A(f".globl {NAME}")
    if al12: A(".p2align 12")
    A(".p2align 8"); A(f".type {NAME},@function"); A(f"{NAME}:")
    hi = [k for k, o in enumerate(fin) if o.kind == "H"][0]
    fini = "  s_branch L_fin" if stamps else "  s_endpgm"
    for o in fin[:hi]: A(o.text if o.kind == "L" else "  " + o.text)
    A(f"  s_cmp_eq_u32 s{S_NTL}, 18"); A("  s_cbranch_scc1 L_tail18")
    A(f"  s_cmp_eq_u32 s{S_MH}, 1"); A("  s_cbranch_scc1 L_half1")
    for o in fin[hi + 1:]: A("  " + o.text)
    A(fini)
    A("L_half1:")
    if warm == 2: A("  s_cbranch_execz L_wret")
    for o in fin[hi + 1:]: A("  " + (o.alt or o.text))
    A(fini)
    A("L_tail18:")
    if warm == 2: A("  s_cbranch_execz L_wret")
    if stamps and sst != 1: A("  " + [o.text for o in fin[hi + 1:] if "s_mem" in o.text][0])
    A("  s_nop 7")
    for o in tailA:
        if o.pre: A("  " + o.pre[1])
        if not dropped(Op("V", "", cls=o.cls, tag=o.tag)) if o.cls == "ST" else True: A("  " + o.text)
    if stamps:
        A("L_fin:")
        A("  " + stamp_text()); A("  s_waitcnt vmcnt(0)"); A("  " + stamp_text()); A("  " + stamp_text(True))
        n = nst[0]
        if probe:
            C, Kf, idx, wg = map(int, probe.split(","))
            for x in ["s_waitcnt lgkmcnt(0)", "s_cmp_lg_u32 s3, 0", "s_cbranch_scc1 L_end"]: A("  " + x)
            if wg >= 0:
                A(f"  s_cmp_lg_u32 s2, {wg}"); A("  s_cbranch_scc1 L_end")
            rt = idx == n - 1
            b0 = STREGS[0 if rt else 1]
            for x in [f"s_sub_u32 s18, s{STREGS[idx]}, s{b0}", f"s_mul_i32 s18, s18, {Kf}", f"s_add_u32 s18, s18, {C}",
                      f"s_min_u32 s18, s18, {20000 if rt else 400000}"]: A("  " + x)
            A("L_spin:")
            for x in ["s_memrealtime s[20:21]" if rt else "s_memtime s[20:21]", "s_waitcnt lgkmcnt(0)", f"s_sub_u32 s19, s20, s{b0}", "s_cmp_lt_u32 s19, s18",
                      "s_cbranch_scc1 L_spin", "s_endpgm"]: A("  " + x)
        for x in ["s_waitcnt lgkmcnt(0)", "s_cmp_lg_u32 s3, 0", "s_cbranch_scc1 L_end",
                  "s_mov_b32 s20, s16", "s_and_b32 s21, s17, 0xffff", "s_mov_b32 s22, 0x100000", "s_mov_b32 s23, 0x20000",
                  f"s_mul_i32 s18, s2, {n*8}", "v_mov_b32 v2, s18", "s_mov_b64 exec, 1"]: A("  " + x)
        for k in range(n):
            for x in [f"v_mov_b32 v4, s{STREGS[k]}", f"v_mov_b32 v5, s{STREGS[k]+1}",
                      f"buffer_store_dwordx2 v[4:5], v2, s[20:23], 0 offen offset:{8*k}", "s_nop 1"]: A("  " + x)
        A("  s_waitcnt vmcnt(0)")
    A("L_end:"); A("  s_endpgm")
    A('.section .rodata,"a"'); A(".p2align 6"); A(f".amdhsa_kernel {NAME}")
    A(f"  .amdhsa_next_free_vgpr {256 + A_FR + NA*4}")
    A("  .amdhsa_next_free_sgpr 102")
    A("  .amdhsa_accum_offset 256")
    A("  .amdhsa_group_segment_fixed_size 0")
    A("  .amdhsa_kernarg_size 56")
    A("  .amdhsa_user_sgpr_count 2")
    A("  .amdhsa_user_sgpr_kernarg_segment_ptr 1")
    A("  .amdhsa_system_sgpr_workgroup_id_x 1")
    A("  .amdhsa_float_denorm_mode_32 3")
    A(".end_amdhsa_kernel")
    if warm:
        import subprocess, re
        def offsets(lines):
            open("w_.s", "w").write("\n".join(lines) + "\n")
            subprocess.check_call("clang -x assembler -target amdgcn-amd-amdhsa -mcpu=gfx950 -c w_.s -o w_.o", shell=True)
            d = subprocess.check_output("llvm-objdump -d w_.o", shell=True).decode()
            return [int(m.group(1), 16) for m in re.finditer(r"// ([0-9A-F]{12}):", d)]
        for k in range(1, 5):
            T = L + [f"L_w{j}:" for j in range(k, 5)]
            of = offsets(T)
            il = [i for i, x in enumerate(L) if x.startswith("  ") and not x.startswith("  .")]
            assert len(il) == len(of), (len(il), len(of))
            c = [i for i, o in zip(il, of) if o >= 4096 * k + wd]
            if not c: c = [il[-1]]
            tgt = {3: "L_half1", 4: "L_tail18"}.get(k, "L_wret") if warm == 2 else "L_wret"
            L[c[0]:c[0]] = [f"L_w{k}:", f"  s_cbranch_execz {tgt}"]
    return "\n".join(L) + "\n", nst[0]

if __name__ == "__main__":
    ap = argparse.ArgumentParser()
    ap.add_argument("-o", default="k4.s")
    for k, d in dict(H=9, Q=0, D=3, NA=6, vmsp=3, dmasp=3, cpf=7, rotC=1, rts=0, skew=0, wlat=24, bgap=2, fl0=6, dma0=1, ebar=12, bstep=1, xlead=0, stsp=0, QF=0, g2=8, xl=2, sst=0, pp=0, bpos=1, mrat=2, exw=1, bsl=7, szs=5, w2=0, early=0, warm=0, al12=0, wd=0, hoist=0, alone=0, cpm=0, cpp=0, tch=0, tsx=14, tso=16, zc=0, szp=0, pk=0, fol=0).items():
        ap.add_argument("--" + k, type=int, default=d)
    ap.add_argument("--stamps", action="store_true")
    ap.add_argument("-v", dest="verbose", action="store_true")
    for k, d in dict(st="", lw="", lx="", drop="", ta="0360360", tb="0000", xo="", probe="", order="B", dbg="", mlag="22234567", x2="8:9", dsp="", fq="", xpre="", xpost="", xsl="", m0="556677889", m1="556677999", pw="", fperm="036147258", ordr="").items(): ap.add_argument("--" + k, default=d)
    a = vars(ap.parse_args())
    o = a.pop("o")
    s, n = gen(**a)
    open(o, "w").write(s)
    print(o, "lines", s.count("\n"), "stamps", n)
```

```python
import sys, argparse, bisect
NAME = "standalone__w4a16_gemm_dequant__prompt_kernel"
INF = 10 ** 9

def rl(p, b, n): return [f"{p}{b+i}" for i in range(n)]
def rg(p, b, n): return f"{p}[{b}:{b+n-1}]" if n > 1 else f"{p}{b}"

class Op:
    cnt = 0
    def __init__(s, kind, text, rd=(), wr=(), pre=None, lds=None, cls=None, e=0, dl=INF, prio=None, after=(), tag=None):
        s.kind = kind; s.text = text; s.rd = list(rd); s.wr = list(wr); s.pre = pre; s.lds = lds; s.cls = cls
        s.e = e; s.dl = dl; s.prio = dl if prio is None else prio; s.after = list(after); s.tag = tag
        s.gap = None; s.needs = []; s.id = Op.cnt; Op.cnt += 1; s.cost = 1; s.dpp = False

class Gap:
    def __init__(s, mfma=None, free=None, bar=False, name=""):
        s.mfma = mfma; s.free = free; s.bar = bar; s.ops = []; s.name = name; s.stamp = False
        s.needs = []; s.fragwait = False; s.scal = False; s.hoisted = None

NST = 9
EXB = 0; TAB = 32768; TS = 2304
PS = [41984, 80896, 119808]
S_X, S_W, S_S, S_T, S_C, S_O = 20, 24, 28, 32, 35, 36
S_WOFS, S_XP, S_D9, S_D1 = 40, 47, 55, 63
S_MH, S_NTL, S_C24, S_MSK, S_M0, S_M18, S_OS = 100, 101, 10, 11, 8, 9, 6
STREGS = [72, 74, 76, 78, 80, 82, 84, 86, 88, 90, 92, 94, 96, 98]
V_O18, V_X18, V_W, V_X, V_O, V_TR, V_TW, V_EW, V_ER, V_S = 0, 1, 2, 3, 4, 5, 6, 7, 8, 9
V_RD = 9
V_R, V_R18 = 12, 18
V_SZ, V_Z, V_F, V_RAW, V_ACC = 20, 28, 32, 96, 32
V_T = 12
TP = 64
V_PT = 84
V_FT = 20

def gen(D=3, NA=8, stamps=False, st="", lw="", lx="", verbose=False, drop='', ta='0360360', tb='0000',
        rotC=1, bgap=2, fl0=4, sst=1, warm=0, al12=0, wd=0, hoist=1, ordr='', x4=0, n0=6, pm=5, la='8', dlag='8',
        b9=24, stsp=0, two=0, szp=8, cpf=1, dbg='', nost=0, exm=128, pre=6, RD=3, pc=3, pp=0, skew=1, pst=0, cw=4, dr='0.2', er='1', un='7:012345678,8:012345678', w8=1, laf='', u9=0, su=0, nP=6):
    vmsp = 0; tmaj = 1; hord = 0
    def raw(i, j): return V_RAW + (i % RD) * 32 + j * 4
    def F(i, u): return V_F + ((i & 1) * 4 + u) * 4
    def AF(h, u): return (h * 4 + u) * 4
    A_FR = 32
    def fr(f): return A_FR + (f % NA) * 4
    def acc(n): return ("v", V_ACC + 16 * n)
    nst = [0]
    def stamp_text(real=False):
        r = STREGS[nst[0]]; nst[0] += 1
        return f"s_memrealtime s[{r}:{r+1}]" if real else f"s_memtime s[{r}:{r+1}]"
    def S(t): return Op("S", t)
    def V(t, rd=(), wr=(), **k): return Op("V", t, rd, wr, **k)
    def BAR(): return Op("B", "s_barrier")
    def txt(lines): return [Op("V" if x.startswith("v_") else "S", x) for x in lines]

    def ldW(i, j):
        r = raw(i, j)
        so = "0" if j == 0 else f"s{S_WOFS+j}"
        return Op("VM", f"buffer_load_dwordx4 {rg('v',r,4)}, v{V_W}, s[{S_W}:{S_W+3}], {so} offen {lw}".rstrip(),
                  rd=[f"v{V_W}"], wr=rl("v", r, 4), cls="VM", tag=("W", i, j))
    def ldSZ(m):
        r = V_T + 2 * m
        return Op("VM", f"buffer_load_dwordx2 {rg('v',r,2)}, v{V_S+m}, s[{S_S}:{S_S+3}], 0 offen", rd=[f"v{V_S+m}"], wr=rl("v", r, 2), cls="VM")
    def ldX(i, p):
        b = PS[i % 3] + p * 4096
        V_X = 18 if i == 8 else 3
        if p < 9:
            so = "0" if p == 0 else f"s{S_XP+p}"
            return Op("VM", f"buffer_load_dwordx4 v{V_X}, s[{S_X}:{S_X+3}], {so} offen {lx} lds".replace("  ", " "),
                      rd=[f"v{V_X}"], pre=("m0", f"s_add_u32 m0, s{S_M0}, {b}"), lds=[("w", b, b + 4096, False)], cls="DMA", tag=("X", i, p))
        o = Op("VM", f"s_mov_b32 exec_hi, 0\n  buffer_load_dwordx4 v{V_X18}, s[{S_X}:{S_X+3}], 0 offen {lx} lds\n  s_mov_b32 exec_hi, -1".replace("offen  ", "offen "),
               rd=[f"v{V_X18}"], pre=("m0", f"s_add_u32 m0, s{S_M18}, {b}"), lds=[("w", b, b + 2048, False)], cls="DMA", tag=("X", i, p))
        o.cost = 2
        return o
    def advW(i): return V(f"v_lshl_add_u32 v{V_W}, s{S_D9+i}, 17, v{V_W}", [f"v{V_W}"], [f"v{V_W}"])
    def advX(i, r):
        d = 18 if i == 8 and r == V_X else r
        return V(f"v_lshl_add_u32 v{d}, s{S_D1+i}, 7, v{r}", [f"v{r}"], [f"v{d}"])
    def units(sh):
        U = [(i, list(range(10 if sh else 9))) for i in range(7)]
        F_ = [(int(x[0]), [int(c) for c in x[2:]]) for x in un.split(",")]
        for st_ in (7, 8):
            own = [x for x in F_ if x[0] == st_]
            assert sorted(sum((x[1] for x in own), [])) == list(range(9))
            if sh: own[u9][1].insert(0, 9)
        return U + F_
    tabl = lambda k: [(k, TAB, TAB + 4 * TS, True)]
    def prep(m, t):
        r = V_T + 2 * m
        o = []
        for h in range(2):
            o.append(V(f"v_lshlrev_b32 v{t+2*h}, 16, v{r+h}", [f"v{r+h}"], [f"v{t+2*h}"]))
            o.append(V(f"v_and_b32 v{t+2*h+1}, s{S_MSK}, v{r+h}", [f"v{r+h}"], [f"v{t+2*h+1}"]))
        for u in range(4):
            o.append(V(f"v_mul_f32 v{t+u}, s{S_C24}, v{t+u}", [f"v{t+u}"], [f"v{t+u}"]))
        if m == 2: o.append(S("s_mov_b64 exec, 0xffff"))
        o.append(Op("DS", f"ds_write_b128 v{V_TW}, {rg('v',t,4)} offset:{m*1024}", rd=[f"v{V_TW}"] + rl("v", t, 4), lds=tabl("w")))
        if m == 2: o.append(S("s_mov_b64 exec, -1"))
        return o
    def rdSZ(i):
        z = V_SZ + (i & 1) * 4
        return Op("DS", f"ds_read_b128 {rg('v',z,4)}, v{V_TR} offset:{i*256}", rd=[f"v{V_TR}"], wr=rl("v", z, 4), lds=tabl("r"))
    def mkZ(i):
        z = V_SZ + (i & 1) * 4
        return [V(f"v_mul_f32 v{V_Z+u}, 0xb5000000, v{z+u}", [f"v{z+u}"], [f"v{V_Z+u}"]) for u in range(4)]
    def deq(i, jj):
        p = i & 1; z = V_SZ + p * 4
        fm = []; cv = []
        for j in (2 * jj, 2 * jj + 1):
            for u in range(4):
                r = raw(i, j) + u
                fm.append(V(f"v_fma_mix_f32 v{r}, v{r}, v{z+u}, v{V_Z+u} op_sel_hi:[1,0,0]", [f"v{r}", f"v{z+u}", f"v{V_Z+u}"], [f"v{r}"]))
        for u in range(4):
            a, b = raw(i, 2 * jj) + u, raw(i, 2 * jj + 1) + u
            cv.append(V(f"v_cvt_pk_bf16_f32 v{F(i,u)+jj}, v{a}, v{b}", [f"v{a}", f"v{b}"], [f"v{F(i,u)+jj}"]))
        return fm, cv
    def exW(i):
        b = EXB + (i & 1) * 16384
        return [Op("DS", f"ds_write_b128 v{V_EW}, {rg('v',F(i,u),4)} offset:{b+u*1024}", rd=[f"v{V_EW}"] + rl("v", F(i, u), 4),
                   lds=[("w", b, b + 16384, False)], cls="AT") for u in range(4)]
    def exR(i, h):
        b = EXB + (i & 1) * 16384
        vr = V_ER if h else V_EW
        return [Op("DS", f"ds_read_b128 {rg('a',AF(h,u),4)}, v{vr} offset:{b+u*1024}", rd=[f"v{vr}"], wr=rl("a", AF(h, u), 4),
                   lds=[("r", b, b + 16384, False)], tag=("R", i, h)) for u in range(4)]
    def rdF(f, i, n, h):
        s_ = i % 3
        if n == 9: vr = V_R18 + (s_ >> 1); off = (s_ & 1) * (PS[1] - PS[0]); b = PS[s_] + 36864; e_ = b + 2048
        else: vr = V_R + 2 * s_ + h; off = n * 4096; b = PS[s_] + off; e_ = b + 4096
        a = fr(f)
        return Op("DS", f"ds_read_b128 {rg('a',a,4)}, v{vr} offset:{off}", rd=[f"v{vr}"], wr=rl("a", a, 4), lds=[("r", b, e_, False)], tag=("F", f))
    def mfma(n, u, f, i, h, first):
        dp, d = acc(n); d += 4 * u
        dd = rg(dp, d, 4)
        wp, wb = 'a', AF(h, u)
        return Op("M", f"v_mfma_f32_16x16x32_bf16 {dd}, {rg('a',fr(f),4)}, {rg(wp,wb,4)}, {'0' if first else dd}",
                  rd=rl("a", fr(f), 4) + rl(wp, wb, 4) + ([] if first else rl(dp, d, 4)), wr=rl(dp, d, 4))

    if not ordr: ordr = ",".join("".join(str((int(c) + k) % 9) for k in range(9)) for c in ta)
    OR = ordr.split(","); assert len(OR) == 7 and all(sorted(x) == list("012345678") for x in OR)
    ta = "".join(x[0] for x in OR)
    REL = [[(int(c) - int(x[0])) % 9 for c in x] for x in OR]
    lin = all(r == list(range(9)) for r in REL)
    A_ = sum(int(c) << (4 * i) for i, c in enumerate(ta)); B_ = sum(int(c) << (4 * i) for i, c in enumerate(tb))
    rot = ["s_lshl_b32 s40, s15, 2", f"s_lshr_b32 s40, {A_}, s40", "s_and_b32 s40, s40, 15"]
    if B_: rot += ["s_and_b32 s41, s18, 3", "s_lshl_b32 s41, s41, 2", f"s_lshr_b32 s41, {B_}, s41", "s_and_b32 s41, s41, 15", "s_add_u32 s40, s40, s41"]
    if rotC == 1: rot += ["s_add_u32 s40, s40, s14"]
    elif rotC: rot += [f"s_mul_i32 s41, s14, {rotC}", "s_add_u32 s40, s40, s41"]
    if rotC > 1 or (rotC and B_): rot += ["s_mul_i32 s41, s40, 57", "s_lshr_b32 s41, s41, 9", "s_mul_i32 s41, s41, 9", "s_sub_u32 s19, s40, s41"]
    else: rot += ["s_sub_u32 s41, s40, 9", "s_min_u32 s19, s40, s41"]
    t = lambda k: f"v{TP+k}"
    P = []
    if stamps: P += [S(stamp_text(True)), S(stamp_text())]
    P += txt(["s_cmp_ge_u32 s2, 252", "s_cbranch_scc1 L_end", "s_load_dwordx8 s[4:11], s[0:1], 0", "s_load_dwordx2 s[12:13], s[0:1], 32"])
    if stamps: P += txt([f"s_load_dwordx2 s[16:17], s[0:1], 48"])
    if cpf:
        P += txt([f"s_getpc_b64 s[40:41]"]) + [Op("L", "L_pc:")] + txt([f"s_and_b32 s41, s41, 0xffff", f"s_mov_b32 s42, L_end-L_pc", f"s_mov_b32 s43, 0x20000",
                  "s_lshr_b32 s15, s2, 3", "s_lshl_b32 s15, s15, 7", f"v_lshl_add_u32 {t(15)}, v0, 12, s15"])
        P += [Op("VM", f"buffer_load_dword v95, {t(15)}, s[40:43], 0 offen", rd=[t(15)], wr=["v95"])] + txt(["s_nop 4"])
    VQ = t(10) if x4 else t(0)
    if lin: tabs = [f"s_mov_b32 s{S_T}, 0x76543210", f"s_mov_b32 s{S_T+1}, 8"]
    else:
        tabs = (sum(([f"s_cmp_eq_u32 s15, {r}"] * (r > 0) + [f"s_{'c' if r else ''}mov_b32 s{S_T}, {sum(c << (4*i) for i, c in enumerate(REL[r][:8]))}"] for r in range(7)), [])
          + ["s_lshl_b32 s40, s15, 2", f"s_lshr_b32 s{S_T+1}, {sum(REL[r][8] << (4*r) for r in range(7))}, s40", f"s_and_b32 s{S_T+1}, s{S_T+1}, 15"])
    P += txt([
        f"v_lshrrev_b32 {t(0)}, 6, v0", "v_and_b32 v1, 63, v0", f"v_readfirstlane_b32 s34, {t(0)}",
        "s_and_b32 s14, s2, 7", "s_lshr_b32 s15, s2, 3", "s_lshl_b32 s18, s14, 2", "s_and_b32 s19, s15, 3", "s_add_u32 s18, s18, s19",
        "s_lshr_b32 s19, s15, 2", "s_and_b32 s40, s14, 3", "s_add_u32 s40, s40, 32", "s_and_b32 s41, s14, 4", "s_add_u32 s41, s41, s15",
        "s_sub_u32 s41, s41, 28", "s_cmp_ge_u32 s15, 28", "s_cselect_b32 s18, s40, s18", "s_cselect_b32 s15, s41, s19",
        *(["s_and_b32 s3, s34, 3"] if cw == 4 else ["s_lshr_b32 s3, s34, 1"]),
        f"s_lshr_b32 s{S_MH}, s3, 1", f"s_and_b32 s{S_C}, s3, 1",
        f"s_lshl_b32 s42, s18, 7", f"s_lshl_b32 s40, s{S_C}, 6", "s_add_u32 s42, s42, s40",
        f"v_and_b32 {t(0)}, 15, v1", f"v_lshrrev_b32 {t(1)}, 4, v1",
        f"s_bitcmp1_b32 s34, {2 if cw == 4 else 0}", "s_cbranch_scc1 L_cons"])
    rows = ["s_mul_i32 s14, s15, 18", "s_min_u32 s40, s15, 2", "s_add_u32 s14, s14, s40",
            "s_cmp_lt_u32 s15, 2", f"s_cselect_b32 s{S_NTL}, 19, 18"]
    P1 = txt([*([f"s_setprio {pp}"] if pp else []), *rot, "s_mov_b32 s18, s42",
        *([f"v_and_b32 {t(10)}, 7, v1", f"v_bfe_u32 {t(11)}, v1, 3, 1", f"v_lshl_or_b32 {t(10)}, {t(10)}, 1, {t(11)}"] if x4 else []),
        "s_mul_i32 s42, s19, 1179648", f"s_mul_i32 s43, s{S_MH}, 589824", "s_lshl2_add_u32 s43, s18, s43", "s_add_u32 s42, s42, s43",
        f"v_mul_u32_u24 v{V_W}, 147456, {t(1)}", f"v_lshl_add_u32 v{V_W}, {VQ}, 4, v{V_W}", f"v_add_u32 v{V_W}, s42, v{V_W}",
        f"s_mov_b32 s{S_W+2}, {576*4608*4}", f"s_mov_b32 s{S_W+3}, 0x20000"])
    P1 += txt([f"s_mov_b32 s{S_WOFS+k}, {k*18432}" for k in range(1, 8)])
    SA = txt([*tabs,
        f"s_mul_i32 s40, s{S_MH}, 9216", "s_lshl1_add_u32 s40, s18, s40",
        f"v_lshl_add_u32 {t(2)}, {VQ}, 3, s40",
        f"v_lshlrev_b32 {t(11)}, 2, {t(1)}", f"v_bfe_u32 {t(3)}, s{S_T}, {t(11)}, 4", f"v_add_u32 {t(3)}, s19, {t(3)}",
        f"v_add_u32 {t(4)}, -9, {t(3)}", f"v_min_u32 {t(4)}, {t(3)}, {t(4)}",
        f"v_mad_u32_u24 v{V_S}, {t(4)}, s{S_WOFS+1}, {t(2)}",
        f"s_mov_b32 s{S_S+2}, {18*4608*2}", f"s_mov_b32 s{S_S+3}, 0x20000"])
    szadr = lambda m: txt([*([f"v_add_u32 {t(11)}, 16, {t(11)}", f"v_bfe_u32 {t(3)}, s{S_T}, {t(11)}, 4", f"v_add_u32 {t(3)}, s19, {t(3)}"] if m == 1 else
                           [f"s_add_u32 s40, s19, s{S_T+1}", f"v_mov_b32 {t(3)}, s40"]), f"v_add_u32 {t(4)}, -9, {t(3)}", f"v_min_u32 {t(4)}, {t(3)}, {t(4)}",
                           f"v_mad_u32_u24 v{V_S+m}, {t(4)}, s{S_WOFS+1}, {t(2)}"])
    P1 += SA
    P1 += txt(["s_waitcnt lgkmcnt(0)", f"s_mov_b32 s{S_W}, s6", f"s_and_b32 s{S_W+1}, s7, 0xffff"])
    W0 = [ldW(0, j) for j in range(8)]
    P1 += W0[:szp] + txt([f"s_mov_b32 s{S_S}, s8", f"s_and_b32 s{S_S+1}, s9, 0xffff"]) + [ldSZ(0)] + W0[szp:]
    for m in (1, 2): P1 += szadr(m) + [ldSZ(m)]
    P1 += txt([*rows,
        f"s_mul_i32 s15, s14, {0 if 'x' in dbg else 18432}",
        f"s_add_u32 s{S_X}, s4, s15", f"s_addc_u32 s{S_X+1}, s5, 0", f"s_and_b32 s{S_X+1}, s{S_X+1}, 0xffff",
        f"s_mul_i32 s{S_X+2}, s{S_NTL}, 18432", f"s_mov_b32 s{S_X+3}, 0x20000",
        f"v_lshrrev_b32 {t(5)}, 3, v1", f"v_lshrrev_b32 {t(6)}, 4, v1", f"v_and_b32 {t(6)}, 2, {t(6)}", f"v_lshrrev_b32 {t(7)}, 2, v1", f"v_and_b32 {t(7)}, 4, {t(7)}",
        f"v_and_b32 {t(8)}, 7, v1", f"v_xor_b32 {t(7)}, {t(7)}, {t(8)}", f"v_xor_b32 {t(6)}, {t(6)}, {t(7)}",
        f"v_mul_u32_u24 {t(5)}, 1152, {t(5)}", f"v_lshl_add_u32 {t(6)}, {t(6)}, 4, {t(5)}",
        f"s_mul_i32 s15, s{S_MH}, 18432", f"s_mul_i32 s40, s{S_C}, 9216", "s_add_u32 s40, s40, s15", "s_lshl_b32 s15, s19, 7", "s_add_u32 s40, s40, s15",
        f"v_add_u32 v{V_X}, s40, {t(6)}",
        f"s_lshl_b32 s40, s{S_C}, 10", f"s_lshl_b32 s{S_M0}, s{S_MH}, 11", f"s_add_u32 s{S_M0}, s{S_M0}, s40"])
    P1 += txt([f"s_mov_b32 s{S_XP+k}, {k*36864}" for k in range(1, 9)])
    P2 = txt([
        f"s_lshl_b32 s40, s{S_C}, 1", f"v_xor_b32 {t(7)}, s40, {t(7)}", f"v_lshl_add_u32 {t(7)}, {t(7)}, 4, {t(5)}",
        f"s_mul_i32 s40, s3, 4608", "s_add_u32 s40, s40, s15", f"s_add_u32 s40, s40, {18*18432}",
        f"v_add_u32 {t(12)}, s40, {t(7)}",
        f"s_lshl_b32 s{S_M18}, s3, 9",
        f"s_mov_b32 s{S_C24}, 0x4b800000", f"s_mov_b32 s{S_MSK}, 0xffff0000",
        f"s_mul_i32 s40, s3, {TS}", f"s_add_u32 s40, s40, {TAB}",
        f"v_lshl_add_u32 v{V_TR}, {t(0)}, 4, s40", f"v_lshl_add_u32 v{V_TW}, {t(1)}, 8, v{V_TR}",
        "s_lshl_b32 s40, s3, 12", f"v_lshl_add_u32 v{V_EW}, v1, 4, s40",
        f"v_mov_b32 v{V_X18}, {t(12)}"])
    for i in range(1, NST):
        a, b = (15, 14) if i & 1 else (14, 15)
        P2 += txt([f"s_bfe_u32 s{a}, s{S_T}, {0x40000+4*i}" if i < 8 else f"s_mov_b32 s{a}, s{S_T+1}", f"s_add_u32 s{a}, s{a}, s19",
                   f"s_sub_u32 s40, s{a}, 9", f"s_min_u32 s{a}, s{a}, s40",
                   f"s_sub_u32 s{S_D1+i}, s{a}, s{b if i >= 2 else 19}", f"s_mul_i32 s{S_D9+i}, s{S_D1+i}, 9"])
    PC = txt([*([f"s_setprio {pc}"] if pc else []), "s_mov_b32 s18, s42", *rows,
        "s_lshl_b32 s40, s3, 12", f"v_lshl_add_u32 v{V_EW}, v1, 4, s40", f"v_xor_b32 v{V_ER}, 0x2000, v{V_EW}",
        f"s_mul_i32 s40, s{S_MH}, 147456", "s_lshl1_add_u32 s40, s18, s40",
        f"v_mul_u32_u24 v{V_O}, 36864, {t(1)}",
        *([f"v_bfe_u32 {t(8)}, v1, 3, 1", f"v_mul_u32_u24 {t(8)}, 9216, {t(8)}", f"v_and_b32 {t(9)}, 7, v1", f"v_lshl_add_u32 {t(8)}, {t(9)}, 4, {t(8)}",
           f"v_add_u32 v{V_O}, {t(8)}, v{V_O}"] if x4 else [f"v_lshl_add_u32 v{V_O}, {t(0)}, 3, v{V_O}"]),
        f"v_add_u32 v{V_O}, s40, v{V_O}",
        f"s_mul_i32 s40, s{S_MH}, {18432-147456}", f"s_add_u32 s40, s40, {18*147456}", f"v_add_u32 v{V_O18}, s40, v{V_O}",
        f"v_lshrrev_b32 {t(7)}, 1, {t(0)}", f"v_and_b32 {t(7)}, 2, {t(7)}", f"v_lshlrev_b32 {t(8)}, 1, {t(0)}", f"v_and_b32 {t(8)}, 4, {t(8)}",
        f"s_lshl_b32 s40, s{S_MH}, 2", f"v_add_u32 {t(9)}, s40, {t(1)}", f"v_xor_b32 {t(7)}, {t(7)}, {t(8)}", f"v_xor_b32 {t(7)}, {t(7)}, {t(9)}",
        f"v_lshlrev_b32 {t(7)}, 4, {t(7)}", f"v_lshl_add_u32 {t(7)}, {t(0)}, 7, {t(7)}",
        f"v_add_u32 v{V_R18}, {PS[0]+36864}, {t(7)}", f"v_add_u32 v{V_R18+1}, {PS[2]+36864}, {t(7)}",
        f"s_lshl_b32 s40, s{S_MH}, 11", f"s_add_u32 s40, s40, {PS[0]}",
        f"v_add_u32 v{V_R}, s40, {t(7)}", f"v_xor_b32 v{V_R+1}, 64, v{V_R}",
        f"v_add_u32 v{V_R+2}, {PS[1]-PS[0]}, v{V_R}", f"v_add_u32 v{V_R+3}, {PS[1]-PS[0]}, v{V_R+1}",
        f"v_add_u32 v{V_R+4}, {PS[2]-PS[0]}, v{V_R}", f"v_add_u32 v{V_R+5}, {PS[2]-PS[0]}, v{V_R+1}",
        f"v_and_b32 v{V_RD}, 0x1fff, v{V_EW}", f"s_lshl_b32 s40, s{S_MH}, 3", f"v_add_u32 v{V_RD}, s40, v{V_RD}",
        "s_waitcnt lgkmcnt(0)",
        f"s_mul_i32 s15, s14, {0 if 'o' in dbg else 147456}",
        f"s_add_u32 s{S_O}, s12, s15", f"s_addc_u32 s{S_O+1}, s13, 0", f"s_and_b32 s{S_O+1}, s{S_O+1}, 0xffff",
        f"s_mul_i32 s{S_O+2}, s{S_NTL}, 147456", f"s_mov_b32 s{S_O+3}, 0x20000"])
    LA = [int(x) for x in la.split(",")]; LA += [LA[-1]] * 10
    DL = [float(x) for x in dlag.split(",")]; DL = [0] + DL + [DL[-1]] * 10

    DR = [float(x) for x in dr.split(",")]; DR = [0] + DR + [DR[-1]] * 10
    ER = [float(x) for x in er.split(",")]; ER = [0] + ER + [ER[-1]] * 10
    def need9(U): return 9 in U[-1][1]
    def buildp(NTL, tagl):
        sh = NTL == 19
        NX = 10 if sh else 9
        items = []
        def put(key, ops): items.append((key, len(items), ops))
        pos = {}; k = 0; XL = {}
        U = units(sh); seenX = set()
        for ui, (i, tl) in enumerate(U):
            for iw in ([i] if 0 < ui <= 7 else []) + ([8] if ui == 7 + w8 else []):
                for j in range(8):
                    pos[("W", iw, j)] = k; put(k, ([advW(iw)] if j == 0 else []) + [ldW(iw, j)]); k += 1
            XL[ui] = []
            for p in sorted(tl):
                o = ldX(i, p); XL[ui].append(o)
                adv = []
                if i and (i, p == 9) not in seenX:
                    seenX.add((i, p == 9)); adv = [advX(i, V_X18 if p == 9 else V_X)]
                pos[("X", i, p)] = k; put(k, adv + [o]); k += 1
        LAF = [int(x) for x in laf.split(",")] if laf else [LA[7]]
        LAF += [LAF[-1]] * 20
        assert nP <= 9 and nP <= n0
        put(nP - 0.6, P2)
        put(n0 - 0.5, prep(0, V_PT) + [rdSZ(0)] + prep(1, V_PT + 4) + mkZ(0))
        kq = {}; kB = {}; EW = {}
        c = 0
        for jj in range(4):
            fm, cv = deq(0, jj)
            for o in fm + cv:
                put(n0 - 0.4 + c // pm, [o]); c += 1
            kq[(0, jj)] = n0 - 0.4 + (c - 1) // pm
        put(kq[(0, 3)] + 0.01, prep(2, V_PT + 8) + [rdSZ(1)])
        kU = {}; NEED = {}
        for ui, (i, tl) in enumerate(U):
            ke = 0; NEED[ui] = list(XL[ui])
            if i not in kB:
                if i:
                    c = 0; k0 = max(pos[("W", i, 0)] + DL[i] + 0.5, kq[(i - 1, 3)] + 0.02, kB[i - 2] + 0.01 if i >= 2 else 0)
                    for jj in range(4):
                        fm, cv = deq(i, jj)
                        grp = (mkZ(i) if jj == 0 else []) + fm + cv + ([rdSZ(i + 1)] if jj == 3 and i + 1 < NST else [])
                        for o in grp:
                            kq[(i, jj)] = max(k0 + c * DR[i], pos[("W", i, 2 * jj + 1)] + 0.5); c += 1
                            put(kq[(i, jj)], [o])
                ke = max(kq[(i, 3)] + 0.03, kB[i - 1] + 0.01 if i else 0)
                EW[i] = exW(i)
                for o in EW[i]:
                    put(ke, [o]); ke += ER[i]
                NEED[ui] += EW[i]
            kU[ui] = max(max(pos[("X", i, p)] for p in tl) + (LA[i] if ui < 7 else LAF[ui - 7]) + 0.6, ke + 0.01, kU[ui - 1] + 0.001 if ui else 0)
            kB.setdefault(i, kU[ui])
            put(kU[ui], ("B", ui))
            if i >= 3: assert min(pos[("X", i, p)] for p in tl) > kB[i - 2], ("slot", i)
            if i >= RD:
                for j in range(8): assert pos[("W", i, j)] > kq[(i - RD, j // 2)], ("raw", i, j)
        items.sort(key=lambda x: (x[0], x[1]))
        G = [Gap(free="fixed", name="p")]
        for key, _, ops in items:
            if isinstance(ops, tuple):
                g = Gap(free="fixed", bar=True, name=f"B{ops[1]}"); g.needs = NEED[ops[1]]; g.stamp = stamps and pst and ops[1] in ([0] + list(range(len(U) - 8, len(U))) if su else list(range(8)) + [len(U) - 1]); G.append(g)
            else: G[-1].ops += ops
        if sh and need9(U): G.append(Gap(free="fixed", bar=True, name="B9"))
        for gi, g in enumerate(G):
            if gi and "d" in drop: g.ops = [o for o in g.ops if o.cls != "DMA"]
            if gi and "w" in drop: g.ops = [o for o in g.ops if not (o.tag and o.tag[0] == "W")]
            if gi and "v" in drop: g.ops = [o for o in g.ops if o.kind != "V"]
            if gi and "e" in drop: g.ops = [o for o in g.ops if o.cls != "AT"]
        if verbose: print(tagl, "kU", kU, "n", k, "kq", {i: kq[(i, 3)] for i in range(NST)}, file=sys.stderr)
        if verbose > 1:
            for g in G: print(g.name, [o.text.split()[0] + (str(o.tag[1:]) if o.tag else "") for o in g.ops if o.kind != "S"], file=sys.stderr)
        return G

    def build(NTL, tagl):
        sh = NTL == 19
        NX = 10 if sh else 9
        Pp = []
        if warm:
            Pp += txt(["s_mov_b64 exec, 0"])
            for k in range(1, warm + 1):
                Pp += txt(["s_cmp_eq_u32 s3, 0", f"s_cbranch_scc1 L_w{4*k-3}{tagl}", "s_cmp_eq_u32 s3, 1", f"s_cbranch_scc1 L_w{4*k-2}{tagl}",
                       "s_cmp_eq_u32 s3, 2", f"s_cbranch_scc1 L_w{4*k-1}{tagl}", f"s_branch L_w{4*k}{tagl}"]) + [Op("L", f"L_wret{k}{tagl}:")]
            Pp += txt(["s_mov_b64 exec, -1"])
        G = []
        g = Gap(free="fixed", name="pro"); g.ops = Pp
        for o in Pp: o.gap = 0
        G.append(g)
        ops = []
        g = Gap(free="open", bar=True, name="B0"); B0 = len(G); G.append(g)
        if stamps and not pst: g.stamp = True
        U = units(sh); NU = len(U)
        seq = []
        for ui, (i, tl) in enumerate(U):
            own = [n for n in tl if n < 9]
            if ui < NU - 1 or skew < 0:
                seq += [(ui, n, 0) for n in (tl if ui >= 7 else range(NX))] + [(ui, n, 1) for n in own]
            else:
                if 9 in tl: seq.append((ui, 9, 0))
                sk = min(skew, len(own))
                for k in range(len(own) + sk):
                    if k < len(own): seq.append((ui, own[k], 0))
                    if k >= sk: seq.append((ui, own[k - sk], 1))
        firstuse = {}; lastuse = {}; lastM = {}; st0 = {}; fu = {}; lub = {}; luh = {}
        seen = set()
        for f, (ui, n, h) in enumerate(seq):
            i = U[ui][0]
            if ui not in st0: st0[ui] = len(G)
            for u in range(4):
                gp = Gap(mfma(n, u, f, i, h, n not in seen), name=f"U{ui}i{i}n{n}h{h}u{u}")
                gp.fragwait = (u == 3)
                if u == 0: firstuse[f] = len(G)
                if (ui, h, u) not in fu:
                    fu[(ui, h, u)] = len(G); lub[(ui, h, u)] = luh.get((h, u), 0)
                lastuse[f] = len(G); lastM[n] = len(G); luh[(h, u)] = len(G)
                G.append(gp)
            seen.add(n)
        last = sorted(lastM, key=lambda n: lastM[n])
        tail = len(G); G.append(Gap(free="open", name="tail"))
        END = tail
        gB = {0: B0}
        for ui in range(1, NU): gB[ui] = max(st0[ui] - 4 * D - bgap, st0[ui - 1] + 1)
        bars = sorted(gB.values())
        g9 = None
        if sh:
            if need9(U): g9 = lastM[9] + b9; bars.append(g9)
            else: g9 = min(b for b in bars if b >= lastM[9] + fl0 + 6)
        for b in bars: G[b].bar = True
        if stamps and not pst:
            for ui in (range(NU - 8, NU) if su else list(range(1, 8)) + [NU - 1]): G[st0[ui] if sst == 1 else gB[ui]].stamp = True
        prevF = None
        for f, (ui, n, h) in enumerate(seq):
            i = U[ui][0]
            o = rdF(f, i, n, h)
            e = firstuse[f] - 4 * D
            if ui < 7: e = min(e, gB[ui + 1] - pre)
            e = max(e, gB[ui])
            if f - NA >= 0: e = max(e, lastuse[f - NA])
            o.dl = firstuse[f] - 1
            o.e = min(e, o.dl); o.prio = -1000 + f
            if prevF: o.after.append((prevF, 0))
            prevF = o
            ops.append(o)
            if ui < 7: G[gB[ui + 1]].needs.append(o)
        fbar = {}
        for ui, (i, tl) in enumerate(U):
            fbar.setdefault(i, gB[ui])
            if ui and U[ui - 1][0] == i: continue
            for h in range(2):
                for u, o in enumerate(exR(i, h)):
                    o.e = max(fbar[i], lub[(ui, h, u)])
                    o.dl = fu[(ui, h, u)] - (3 if ui else 1); o.prio = (-2000 if h == 0 or ui >= 7 else o.e + 20) + u
                    ops.append(o)
                    if ui < 7: G[gB[ui + 1]].needs.append(o)
        nbuf = [0]
        def rowpair(src, j, so, vo):
            res = []
            if x4:
                ob = V_FT + (nbuf[0] % 2) * 6; nbuf[0] += 1
                for k, (d, jx) in enumerate(((ob + 4, j), (ob + 2, j + 1), (ob, j))):
                    for kk in range(2):
                        a, b = src(2 * kk, jx), src(2 * kk + 1, jx)
                        res.append(V(f"v_cvt_pk_bf16_f32 v{d+kk}, v{a}, v{b}", [f"v{a}", f"v{b}"], [f"v{d+kk}"]))
                for kk in range(2):
                    o = V(f"v_mov_b32_dpp v{ob+kk}, v{ob+2+kk} row_ror:8 row_mask:0xf bank_mask:0xc", [f"v{ob+kk}", f"v{ob+2+kk}"], [f"v{ob+kk}"]); o.dpp = True; res.append(o)
                for kk in range(2):
                    o = V(f"v_mov_b32_dpp v{ob+2+kk}, v{ob+4+kk} row_ror:8 row_mask:0xf bank_mask:0x3", [f"v{ob+2+kk}", f"v{ob+4+kk}"], [f"v{ob+2+kk}"]); o.dpp = True; res.append(o)
                res.append(Op("VM", f"buffer_store_dwordx4 {rg('v',ob,4)}, v{vo}, s[{S_O}:{S_O+3}], s{S_OS} offen {st}".rstrip(),
                              rd=rl("v", ob, 4) + [f"v{vo}"], pre=(f"s{S_OS}", f"s_mov_b32 s{S_OS}, {so}"), cls="ST"))
            else:
                for jx in (j, j + 1):
                    ob = V_FT + (nbuf[0] % 6) * 2; nbuf[0] += 1
                    for kk in range(2):
                        a, b = src(2 * kk, jx), src(2 * kk + 1, jx)
                        res.append(V(f"v_cvt_pk_bf16_f32 v{ob+kk}, v{a}, v{b}", [f"v{a}", f"v{b}"], [f"v{ob+kk}"]))
                    res.append(Op("VM", f"buffer_store_dwordx2 {rg('v',ob,2)}, v{vo}, s[{S_O}:{S_O+3}], s{S_OS} offen {st}".rstrip(),
                                  rd=rl("v", ob, 2) + [f"v{vo}"], pre=(f"s{S_OS}", f"s_mov_b32 s{S_OS}, {so+(jx-j)*9216}"), cls="ST"))
            return res
        pf = None
        TMP = V_ACC + 16 * 9 - 16
        def chain(res, e0):
            nonlocal pf
            for k, o in enumerate(res):
                o.e = min(e0, tail); o.dl = END; o.prio = e0 + k * 0.01
                if k: o.after.append((res[k - 1], 0))
                elif pf: o.after.append((pf, 0))
            pf = res[-1]
            ops.extend(res)
        red = None
        if sh:
            b = PS[0]
            w_ = [Op("DS", f"ds_write_b128 v{V_EW}, {rg('v',TMP+16+4*u,4)} offset:{b+u*1024}", rd=[f"v{V_EW}"] + rl("v", TMP + 16 + 4 * u, 4),
                     lds=[("w", b, b + 16384, False)], cls="AT") for u in range(4)]
            for k, o in enumerate(w_):
                o.e = lastM[9] + fl0; o.dl = g9 - 1; o.prio = -500 + k
                if k: o.after.append((w_[k - 1], 1))
            ops += w_
            r_ = [Op("DS", f"ds_read2st64_b64 {rg('v',TMP+16+4*u,4)}, v{V_RD} offset0:{(b+u*1024)//512} offset1:{(b+u*1024+8192)//512}", rd=[f"v{V_RD}"],
                     wr=rl("v", TMP + 16 + 4 * u, 4), lds=[("r", b, b + 16384, False)]) for u in range(4)]
            for k, o in enumerate(r_):
                o.e = g9; o.dl = END; o.prio = -500 + k
            ops += r_
            red = []
            for u in range(4):
                for j in range(2):
                    a = TMP + 16 + 4 * u + j
                    red.append(V(f"v_add_f32 v{a}, v{a}, v{a+2}", [f"v{a}", f"v{a+2}"], [f"v{a}"]))
            red[0].after.append((r_[-1], 8))
            red += rowpair(lambda u, j: TMP + 16 + 4 * u + j, 0, 0, V_O18)
        for n in last:
            if n == 9: continue
            kp, base = acc(n)
            res = []
            src = lambda u, j, base=base: base + 4 * u + j
            if kp == "a":
                for j in range(4):
                    for u in range(4):
                        res.append(V(f"v_accvgpr_read_b32 v{TMP+4*u+j}, a{base+4*u+j}", [f"a{base+4*u+j}"], [f"v{TMP+4*u+j}"]))
                src = lambda u, j: TMP + 4 * u + j
            for j in (0, 2): res += rowpair(src, j, n * 294912 + j * 9216, V_O)
            chain(res, lastM[n] + fl0)
            if red and lastM[n] + fl0 >= g9 + 4:
                chain(red, g9 + 8); red = None
        assert not red

        pend = sorted(ops, key=lambda o: (o.prio, o.id))
        cur = {}
        for o in G[0].ops:
            if o.pre: cur[o.pre[0]] = o.pre[1]
        lastvm = -99; lastst = -99
        lastuser = {}
        def hoistgap(o, gi):
            if not hoist or not o.pre: return None
            for k in range(gi - 1, max(lastuser.get(o.pre[0], B0), B0, gi - 8), -1):
                x = G[k]
                if x.free: break
                if x.fragwait or x.bar or x.scal or x.hoisted or x.stamp: continue
                return k
            return None
        for gi, g in enumerate(G):
            if g.free == "fixed": continue
            room = 2
            sc_used = g.fragwait or g.bar
            if g.bar and not g.free: room -= 1
            m0user = None; nat = 0; osuser = None
            while True:
                pick = None
                for o in pend:
                    if o.e > gi: continue
                    if g.free:
                        if any(a.gap is None for a, d in o.after): continue
                        pick = o; break
                    if any(a.gap is None or a.gap + d > gi for a, d in o.after): continue
                    cost = o.cost
                    chg = o.pre and cur.get(o.pre[0]) != o.pre[1] and hoistgap(o, gi) is None
                    if chg and sc_used: cost += 1
                    if cost > room and not (cost > 2 and room == 2): continue
                    if o.cost > 1 and sc_used and o.dl - gi > 2: continue
                    if o.pre and o.pre[0] == "m0" and m0user is not None and m0user != o.pre[1]: continue
                    if o.pre and o.pre[0] != "m0" and osuser is not None and osuser != o.pre[1]: continue
                    urgent = o.dl - gi <= 2
                    if o.cls == "AT" and nat >= 1 and not urgent: continue
                    if o.kind == "VM" and gi - lastvm < (vmsp if o.cls != "ST" else stsp) and not urgent: continue
                    pick = o; break
                if pick is None: break
                o = pick
                pend.remove(o); o.gap = gi; g.ops.append(o)
                chg = o.pre and cur.get(o.pre[0]) != o.pre[1]
                if chg and not g.free:
                    hg = hoistgap(o, gi)
                    if hg is not None:
                        G[hg].hoisted = o.pre; chg = False
                if o.pre:
                    lastuser[o.pre[0]] = gi
                    cur[o.pre[0]] = o.pre[1]
                    if o.pre[0] == "m0": m0user = o.pre[1]
                    else: osuser = o.pre[1]
                if not g.free:
                    room -= o.cost
                    if o.cost > 1: g.scal = True
                    if chg:
                        if sc_used: room -= 1
                        sc_used = True; g.scal = True
                if o.cls == "AT": nat += 1
                if o.kind == "VM": lastvm = gi
                if room <= 0 and not g.free: break
        assert not pend, [(o.text, o.e, o.dl) for o in pend[:10]]
        late = [o for o in ops if o.gap > o.dl]
        assert not late, [(o.text, o.gap, o.dl, G[o.gap].name) for o in late[:10]]
        def dropped(o):
            if "s" in drop and o.cls == "ST": return True
            if "d" in drop and o.tag and o.tag[0] == "X" and o.gap > 0: return True
            if "w" in drop and o.tag and o.tag[0] == "W" and o.gap > 0: return True
            if "v" in drop and o.kind == "V" and o.gap > B0: return True
            if "f" in drop and o.tag and o.tag[0] == "F": return True
            if "e" in drop and o.kind == "DS" and o.gap > B0 and o.cls == "AT": return True
            if "r" in drop and o.kind == "DS" and o.gap > B0 and o.cls != "AT" and not o.tag: return True
            return False
        for gi, g in enumerate(G):
            g.ops = [o for o in g.ops if not dropped(o)]
            if "b" in drop and gi > B0: g.bar = False
        if verbose:
            print(tagl, "gB", gB, "st0", st0, "tail ops", len(G[tail].ops), "B0 ops", len(G[B0].ops), file=sys.stderr)
            if verbose > 1:
                for gi, g in enumerate(G[1:], 1): print(gi, g.name, "BAR" if g.bar else "", [o.text.split()[0] + (str(o.tag[1:]) if o.tag else "") for o in g.ops], file=sys.stderr)
        return G

    def linearise(G, pre):
        Lz = list(pre)
        cur = {}
        for gi, g in enumerate(G):
            if g.mfma: Lz.append(g.mfma)
            if g.stamp and not g.free:
                tx = stamp_text()
                Lz.append(S(tx if not nost else "s_mov_b64 " + tx.split()[1] + ", 0"))
            if g.free:
                if g.bar:
                    Lz.append(BAR()); Lz[-1].needs += g.needs
                if g.stamp: Lz.append(S(stamp_text()))
                for o in g.ops:
                    if o.pre and cur.get(o.pre[0]) != o.pre[1]:
                        cur[o.pre[0]] = o.pre[1]; Lz.append(Op("S", o.pre[1], wr=[o.pre[0]]))
                    Lz.append(o)
            else:
                lst = g.ops
                if len(lst) == 2 and lst[0].pre and lst[0].pre[0] == "m0" and not lst[1].pre and not any(a is lst[0] for a, d in lst[1].after) \
                   and not (lst[0].kind == lst[1].kind) and not (set(lst[0].rd) & set(lst[1].wr)):
                    lst = [lst[1], lst[0]]
                for o in lst:
                    if o.pre and cur.get(o.pre[0]) != o.pre[1]:
                        cur[o.pre[0]] = o.pre[1]; Lz.append(Op("S", o.pre[1], wr=[o.pre[0]]))
                wm = Op("WM", ""); wm.look = list(lst) + ([G[gi + 1].mfma] if gi + 1 < len(G) and G[gi + 1].mfma else [])
                Lz.append(wm)
                if g.bar:
                    b = BAR(); b.needs += g.needs; Lz.append(b); wm.look.append(b)
                Lz += lst
                if g.hoisted:
                    cur[g.hoisted[0]] = g.hoisted[1]; Lz.append(Op("S", g.hoisted[1], wr=[g.hoisted[0]]))
        accs = [(k, o) for k, o in enumerate(Lz) if o.lds]
        barp = [k for k, o in enumerate(Lz) if o.kind == "B"]
        for y in range(len(accs)):
            ky, oy = accs[y]
            bi = bisect.bisect_left(barp, ky) - 1
            for x in range(y):
                kx, ox = accs[x]
                conf = False
                for lx_ in ox.lds:
                    for ly in oy.lds:
                        if lx_[0] == ly[0] == "r": continue
                        if lx_[0] == ly[0] and ox.cls == oy.cls and abs(kx - ky) < 400 and (bi < 0 or barp[bi] < kx): continue
                        if lx_[3] and ly[3]: continue
                        if lx_[2] <= ly[1] or ly[2] <= lx_[1]: continue
                        conf = True
                if not conf: continue
                if drop and not (bi >= 0 and barp[bi] > kx): continue
                assert bi >= 0 and barp[bi] > kx, ("LDS race", ox.text, oy.text)
                Lz[barp[bi]].needs.append(ox)
        issued = {"VM": 0, "DS": 0}; done = {"VM": -1, "DS": -1}; CAP = {"VM": 63, "DS": 15}
        pendreg = {}
        out = []
        inl = 0
        def needs_of(o):
            n = {"VM": -1, "DS": -1}
            for r in o.rd + o.wr:
                if r in pendreg:
                    q, i = pendreg[r]; n[q] = max(n[q], i)
            for x in o.needs:
                if hasattr(x, "qi"): n[x.kind] = max(n[x.kind], x.qi)
            return n
        def dowait(n):
            w = []
            for q, nm in (("VM", "vmcnt"), ("DS", "lgkmcnt")):
                if n[q] > done[q]:
                    c = min(issued[q] - 1 - n[q], CAP[q])
                    done[q] = issued[q] - 1 - c
                    w.append(f"{nm}({c})")
            if w: out.append(Op("S", "s_waitcnt " + " ".join(w)))
            return bool(w)
        for o in Lz:
            if o.kind == "WM":
                n = {"VM": -1, "DS": -1}
                for x in o.look:
                    m = needs_of(x)
                    for q in n: n[q] = max(n[q], m[q])
                dowait(n); continue
            if dowait(needs_of(o)): inl += 1
            if o.kind in ("VM", "DS"):
                o.qi = issued[o.kind]; issued[o.kind] += 1
                for r in o.wr: pendreg[r] = (o.kind, o.qi)
            out.append(o)
        fin = []
        tt = 0
        wV = {}; wM = {}; wS = {}; rST = {}
        nops = 0
        for o in out:
            need = 0
            if o.kind == "M":
                for r in o.rd: need = max(need, wV.get(r, -99) + 3 - tt)
            elif o.kind in ("V", "DS", "VM"):
                for r in o.rd + o.wr: need = max(need, wM.get(r, -99) + 10 - tt)
                if o.pre and o.pre[0] == "m0": need = max(need, wS.get("m0", -99) + 2 - tt)
                if o.dpp:
                    for r in o.rd: need = max(need, wV.get(r, -99) + 3 - tt)
                if o.kind == "V":
                    for r in o.wr: need = max(need, rST.get(r, -99) + 3 - tt)
            if need > 0:
                fin.append(Op("S", f"s_nop {need-1}")); tt += need; nops += 1
            if o.kind == "V":
                for r in o.wr: wV[r] = tt
            elif o.kind == "M":
                for r in o.wr: wM[r] = tt
            elif o.kind == "S":
                for r in o.wr: wS[r] = tt
            elif o.cls == "ST":
                for r in o.rd: rST[r] = tt
            fin.append(o)
            tt += 2 if o.kind == 'M' else 1
        if verbose: print("inline waits", inl, "nops", nops, "instr", len(fin), file=sys.stderr)
        return fin

    L = []
    A = L.append
    A("; @launch grid=(252,1,1) block=(512,1,1) lds=163840")
    A('.amdgcn_target "amdgcn-amd-amdhsa--gfx950"')
    A(".text"); A(f".globl {NAME}")
    if al12: A(".p2align 12")
    A(".p2align 8"); A(f".type {NAME},@function"); A(f"{NAME}:")
    fini = "  s_branch L_fin" if stamps else "  s_endpgm"
    n_pre = nst[0]
    vers = [(19, "a")] + ([(18, "b")] if two else [])
    nmax = 0
    for role, (bld, pro) in enumerate(((buildp, P1), (build, PC))):
        for vi, (ntl, tg) in enumerate(vers):
            nst[0] = n_pre
            mark = Op("L", "MARK"); mark0 = Op("L", "MARK0")
            fin = linearise(bld(ntl, tg), P + [mark0] + pro + [mark])
            k0 = fin.index(mark0); k = fin.index(mark)
            if vi == 0:
                if role == 0:
                    for o in fin[:k0]: A(o.text if o.kind == "L" else "  " + o.text)
                else: A("L_cons:")
                for o in fin[k0 + 1:k]: A(o.text if o.kind == "L" else "  " + o.text)
                if two: A(f"  s_cmp_eq_u32 s{S_NTL}, 18"); A(f"  s_cbranch_scc1 L_beg{role}b")
            A(f"L_beg{role}{tg}:")
            for o in fin[k + 1:]:
                for x in o.text.split("\n  "): A(x if o.kind == "L" else "  " + x)
            A(fini if role != pst else "  s_endpgm")
            A(f"L_endc{role}{tg}:")
            nmax = max(nmax, nst[0])
    nst[0] = nmax
    if stamps:
        A("L_fin:")
        A("  " + stamp_text()); A("  s_waitcnt vmcnt(0)"); A("  " + stamp_text()); A("  " + stamp_text(True))
        n = nst[0]
        for x in ["s_waitcnt lgkmcnt(0)", "s_cmp_lg_u32 s3, 0", "s_cbranch_scc1 L_end",
                  "s_mov_b32 s20, s16", "s_and_b32 s21, s17, 0xffff", "s_mov_b32 s22, 0x100000", "s_mov_b32 s23, 0x20000",
                  f"s_mul_i32 s18, s2, {n*8}", "v_mov_b32 v2, s18", "s_mov_b64 exec, 1"]: A("  " + x)
        for k in range(n):
            for x in [f"v_mov_b32 v4, s{STREGS[k]}", f"v_mov_b32 v5, s{STREGS[k]+1}",
                      f"buffer_store_dwordx2 v[4:5], v2, s[20:23], 0 offen offset:{8*k}", "s_nop 1"]: A("  " + x)
        A("  s_waitcnt vmcnt(0)")
    A("L_end:"); A("  s_endpgm")
    A('.section .rodata,"a"'); A(".p2align 6"); A(f".amdhsa_kernel {NAME}")
    A(f"  .amdhsa_next_free_vgpr {192 + A_FR + NA*4}")
    A("  .amdhsa_next_free_sgpr 102")
    A("  .amdhsa_accum_offset 192")
    A("  .amdhsa_group_segment_fixed_size 0")
    A("  .amdhsa_kernarg_size 56")
    A("  .amdhsa_user_sgpr_count 2")
    A("  .amdhsa_user_sgpr_kernarg_segment_ptr 1")
    A("  .amdhsa_system_sgpr_workgroup_id_x 1")
    A("  .amdhsa_float_denorm_mode_32 3")
    A(".end_amdhsa_kernel")
    if warm:
        import subprocess, re
        def offsets(lines):
            open("w_.s", "w").write("\n".join(lines) + "\n")
            subprocess.check_call("clang -x assembler -target amdgcn-amd-amdhsa -mcpu=gfx950 -c w_.s -o w_.o", shell=True)
            d = subprocess.check_output("llvm-objdump -d w_.o", shell=True).decode()
            return [int(m.group(1), 16) for m in re.finditer(r"// ([0-9A-F]{12}):", d)]
        todo = [(k, tg) for (_, tg) in vers for k in range(1, 4 * warm + 1)]
        while todo:
            k, tg = todo.pop(0)
            T_ = L + [f"L_w{j}{g_}:" for (j, g_) in [(k, tg)] + todo]
            of = offsets(T_)
            il = [i for i, x in enumerate(L) if x.startswith("  ") and not x.startswith("  .")]
            assert len(il) == len(of), (len(il), len(of))
            tg_ = []
            for role in (1, 0):
                bi_ = L.index(f"L_wret{warm}{tg}:") if role else L.index(f"L_beg0{tg}:"); ei = L.index(f"L_endc{role}{tg}:")
                o0 = [o for i, o in zip(il, of) if i > bi_][0]; o1 = [o for i, o in zip(il, of) if i < ei][-1]
                pg = (o0 - wd) // 4096 + 1
                while 4096 * pg + wd < o1:
                    c = [i for i, o in zip(il, of) if o >= 4096 * pg + wd and i < ei and "exec" not in L[i] and "exec" not in L[i - 1]]
                    if c: tg_.append(c[0])
                    pg += 1
            at = tg_[k - 1] if k - 1 < len(tg_) else L.index(f"L_endc1{tg}:") - 1
            L[at:at] = [f"L_w{k}{tg}:", f"  s_cbranch_execz L_wret{(k + 3) // 4}{tg}"]
    return "\n".join(L) + "\n", nst[0]

if __name__ == "__main__":
    import inspect
    ap = argparse.ArgumentParser()
    ap.add_argument("-o", default="k5.s")
    for k, p in inspect.signature(gen).parameters.items():
        if k == "stamps": ap.add_argument("--stamps", action="store_true")
        elif k == "verbose": ap.add_argument("-v", dest="verbose", action="count", default=0)
        else: ap.add_argument("--" + k, type=type(p.default), default=p.default)
    a = vars(ap.parse_args())
    o = a.pop("o")
    s, n = gen(**a)
    open(o, "w").write(s)
    print(o, "lines", s.count("\n"), "stamps", n)
```
